```python
import torch

def _softmax(x, axis=-1):
    return torch.softmax(x, dim=axis)
def _gelu(x):
    return torch.nn.functional.gelu(x, approximate="tanh")
def _silu(x):
    return torch.nn.functional.silu(x)
def _sigmoid(x):
    return torch.sigmoid(x)
def _layernorm(x, axis=-1, eps=1e-5):
    m = x.mean(dim=axis, keepdim=True)
    v = x.var(dim=axis, keepdim=True, unbiased=False)
    return (x - m) / torch.sqrt(v + eps)
def _scatter_add(tgt, idx, src, axis=0):
    return tgt.clone().index_add_(axis, idx, src)
def _segment_sum(src, seg, n):
    out = torch.zeros((n,) + src.shape[1:], dtype=src.dtype)
    return out.index_add_(0, seg, src)
def _pad(x, pw):
    flat = tuple(v for pair in reversed(pw) for v in pair)
    return torch.nn.functional.pad(x, flat)

kernel_name = 'gated_mix__mha_block_cached__glu_gated_swiglu__decode'

def setup_inputs():

    _w = (lambda a: (lambda t: t.to(torch.bfloat16) if t.is_floating_point() else t)(torch.as_tensor(a)))
    def _A_setup():
        B, Sq, D = 1, 1, 640
        H, Sk, Dh = 32, 8192, 192
        return {
            "x": _w((lambda *s: torch.randn(*s, dtype=torch.bfloat16) * 0.05)(B, Sq, D)),
            "k_cache": _w((lambda *s: torch.randn(*s, dtype=torch.bfloat16) * 3.2)(B, H, Sk, Dh)),
            "v_cache": _w((lambda *s: torch.randn(*s, dtype=torch.bfloat16) * 0.2)(B, H, Sk, Dh)),
            "wq": _w((lambda *s: torch.randn(*s, dtype=torch.bfloat16) * 3.2)(D, H * Dh) * (D ** -0.5)),
            "wo": _w((lambda *s: torch.randn(*s, dtype=torch.bfloat16) * 0.2)(H * Dh, D) * ((H * Dh) ** -0.5)),
        }
    _A_in = _A_setup()

    def _B_setup():
        B, S, D, F = 1, 1, 640, 1536
        return {
            "x": _w((lambda *s: torch.randn(*s, dtype=torch.bfloat16) * 0.05)(B, S, D)),
            "w1": _w((lambda *s: torch.randn(*s, dtype=torch.bfloat16) * 0.4)(D, F) * (2.0 / D) ** 0.5),
            "w3": _w((lambda *s: torch.randn(*s, dtype=torch.bfloat16) * 0.4)(D, F) * (2.0 / D) ** 0.5),
            "w2": _w((lambda *s: torch.randn(*s, dtype=torch.bfloat16) * 0.4)(F, D) * (2.0 / F) ** 0.5),
        }
    _B_in = _B_setup()

    return {
        "A_x": _A_in["x"],
        "A_k_cache": _A_in["k_cache"],
        "A_v_cache": _A_in["v_cache"],
        "A_wq": _A_in["wq"],
        "A_wo": _A_in["wo"],
        "B_x": _B_in["x"],
        "B_w1": _B_in["w1"],
        "B_w3": _B_in["w3"],
        "B_w2": _B_in["w2"],
        "gate_w": _w((lambda *s: torch.randn(*s, dtype=torch.bfloat16) * 0.05)(640) * 16.0),
    }

def reference(A_x, A_k_cache, A_v_cache, A_wq, A_wo, B_x, B_w1, B_w3, B_w2, gate_w):
    def _A_ref(x, k_cache, v_cache, wq, wo):
        B, Sq, D = x.shape
        H, Dh = 32, 192
        q = (lambda x, *d: x.permute(*d))((x @ wq).reshape(B, Sq, H, Dh), 0, 2, 1, 3)
        scores = torch.einsum("bhqd,bhkd->bhqk", q, k_cache) * (Dh ** -0.5)
        p = _softmax(scores, axis=-1)
        o = torch.einsum("bhqk,bhkd->bhqd", p, v_cache)
        return (lambda x, *d: x.permute(*d))(o, 0, 2, 1, 3).reshape(B, Sq, H * Dh) @ wo

    def _B_ref(x, w1, w3, w2):
        gate = torch.einsum("bsd,df->bsf", x, w1)
        up = torch.einsum("bsd,df->bsf", x, w3)
        h = _silu(gate) * up
        out = torch.einsum("bsf,fd->bsd", h, w2)
        return out

    x = A_x
    g = _sigmoid((x * gate_w).sum(-1, keepdims=True))
    a = _A_ref(x, A_k_cache, A_v_cache, A_wq, A_wo)
    b = _B_ref(x, B_w1, B_w3, B_w2)
    return g * a + (1 - g) * b
```

```python
import sys

NAME = "gated_mix__mha_block_cached__glu_gated_swiglu__decode"
HEADER = open(f"cdna_kernels/{NAME}.s.ref").read().split("; Override launch geometry")[0]

OPT = dict(
    w_nt=True,
    spin_cap=400000,
    sleep=1,
)
for a in sys.argv[2:]:
    k, v = a.split("=")
    OPT[k] = type(OPT[k])(int(v))

L = []
def e(s=""):
    L.append("    " + s if s and not s.endswith(":") else s)
def lab(s):
    L.append(s + ":")
def cm(s):
    L.append("    ; " + s)

P_X, P_K, P_V, P_WQ, P_WO, P_BX, P_W1, P_W3, P_W2, P_GW, P_OUT, P_DBG, P_WS = [4 + 2 * i for i in range(13)]
R_K, R_V, R_WQ, R_WO, R_W1, R_W3, R_W2, R_X, R_GW, R_OUT, R_DBG, R_WS = [32 + 4 * i for i in range(12)]
S_HEAD, S_SPLIT, S_WAVE, S_OFF, S_HI, S_L2E, S_SCALE, S_T0, S_T1, S_T2, S_CNT = 80, 81, 82, 83, 84, 85, 86, 87, 92, 93, 94
S_MC8 = 88
S_MSK = 90
S_EX = 96
def srd(r): return f"s[{r}:{r+3}]"

V_TID, V_KOFF, V_VOFF, V_LANE = 0, 1, 2, 3
V_SC = 4
V_ACC = 20
V_QF = 20
V_MACC = 36
V_XW = 44
V_WQO = 54
V_T = 52
RING0 = 64
NS = 48
def slot(n): return RING0 + 4 * (n % NS)
def vr(a, n): return f"v[{a}:{a+n-1}]"

LDS_RED = 0
LDS_STAT = 12288
LDS_MLPR = 12352
LDS_QBF = 12864
LDS_ZERO = 13248
LDS_HG = 13280
LDS_GATH = 13312
LDS_RED2 = 21504
LDS_RED3 = 26624
LDS_TOTAL = 31744

WS_OUT1 = 0
WS_OUT2 = 262144
WS_BYTES = 262144 + 8 * 32 * 640
OOB = 0x80000000

class VM:
    def __init__(self): self.n = 0
    def issue(self, s):
        e(s); self.n += 1; return self.n - 1
    def wait(self, idx):
        k = self.n - 1 - idx
        assert k >= 0
        e(f"s_waitcnt vmcnt({min(k, 63)})")
vm = VM()

WNT = " nt" if OPT["w_nt"] else ""

def make_srd(r, p, off_s=None, nrec=None, nrec_s=None):
    if off_s is None:
        e(f"s_mov_b32 s{r}, s{p}")
        e(f"s_and_b32 s{r+1}, s{p+1}, 0xffff")
    else:
        e(f"s_add_u32 s{r}, s{p}, s{off_s}")
        e(f"s_addc_u32 s{r+1}, s{p+1}, 0")
        e(f"s_and_b32 s{r+1}, s{r+1}, 0xffff")
    if nrec_s is not None:
        e(f"s_sub_u32 s{r+2}, {nrec}, s{nrec_s}")
    else:
        e(f"s_mov_b32 s{r+2}, {nrec}")
    e(f"s_mov_b32 s{r+3}, 0x00020000")

def fma_tile(src, p, acc, t0, t1):
    for d in range(4):
        e(f"v_lshlrev_b32 v{t0}, 16, v{src+d}")
        e(f"v_and_b32 v{t1}, s{S_HI}, v{src+d}")
        e(f"v_fmac_f32 v{acc+2*d}, v{p}, v{t0}")
        e(f"v_fmac_f32 v{acc+2*d+1}, v{p}, v{t1}")

def swap_reduce(acc, n):
    h = n // 2
    e("s_nop 1")
    for i in range(h):
        e(f"v_permlane32_swap_b32 v{acc+i}, v{acc+i+h}")
    for i in range(h):
        e(f"v_add_f32 v{acc+i}, v{acc+i}, v{acc+i+h}")
    q = h // 2
    e("s_nop 1")
    for i in range(q):
        e(f"v_permlane16_swap_b32 v{acc+i}, v{acc+i+q}")
    for i in range(q):
        e(f"v_add_f32 v{acc+i}, v{acc+i}, v{acc+i+q}")

def allgroups(op, v, t):
    e(f"v_mov_b32 v{t}, v{v}")
    e("s_nop 1")
    e(f"v_permlane32_swap_b32 v{v}, v{t}")
    e(f"{op} v{v}, v{v}, v{t}")
    e(f"v_mov_b32 v{t}, v{v}")
    e("s_nop 1")
    e(f"v_permlane16_swap_b32 v{v}, v{t}")
    e(f"{op} v{v}, v{v}, v{t}")

def red24_to_lds(acc, tA, tB, tC, tD):
    e(f"v_and_b32 v{tD}, 15, v{V_LANE}")
    e(f"v_lshlrev_b32 v{tD}, 5, v{tD}")
    e(f"s_mul_i32 s{S_T0}, s{S_WAVE}, 1536")
    e(f"v_add_u32 v{tD}, s{S_T0}, v{tD}")
    e(f"v_lshrrev_b32 v{tA}, 4, v{V_LANE}")
    e(f"v_mul_u32_u24 v{tA}, 6, v{tA}")
    for p in range(3):
        e(f"v_add_u32 v{tB}, {2*p}, v{tA}")
        e(f"v_lshrrev_b32 v{tC}, 3, v{tB}")
        e(f"v_lshl_add_u32 v{tC}, v{tC}, 9, v{tD}")
        e(f"v_and_b32 v{tB}, 7, v{tB}")
        e(f"v_lshl_add_u32 v{tC}, v{tB}, 2, v{tC}")
        e(f"ds_write_b64 v{tC}, v[{acc+2*p}:{acc+2*p+1}] offset:{LDS_RED}")

def canon4(r, t):
    e(f"v_mov_b32 v{t}, 0x7fc00000")
    for i in range(4):
        e(f"v_cmp_eq_u32 vcc, -1, v{r+i}")
        e("s_nop 1")
        e(f"v_cndmask_b32 v{r+i}, v{r+i}, v{t}, vcc")

def bf16_round(v, t=None):
    e(f"v_cvt_pk_bf16_f32 v{v}, v{v}, v{v}")
    e(f"v_lshlrev_b32 v{v}, 16, v{v}")

_lbl = [0]
def newlabel(p):
    _lbl[0] += 1
    return f"L_{p}_{_lbl[0]}"

def spin_counter(lane_sel, target, vcnt, voff):
    lo, done = newlabel("cspin"), newlabel("cdone")
    e(f"s_mov_b32 s{S_CNT}, {OPT['spin_cap']}")
    lab(lo)
    e(f"v_readlane_b32 s{S_T0}, v{vcnt}, {lane_sel}")
    e("s_nop 3")
    e(f"s_cmp_ge_u32 s{S_T0}, {target}")
    e(f"s_cbranch_scc1 {done}")
    e(f"s_sub_u32 s{S_CNT}, s{S_CNT}, 1")
    e(f"s_cmp_eq_u32 s{S_CNT}, 0")
    e(f"s_cbranch_scc1 {done}")
    e(f"s_sleep {OPT['sleep']}")
    e(f"buffer_load_dword v{vcnt}, v{voff}, {srd(R_DBG)}, 0 offen sc1")
    e("s_waitcnt vmcnt(0)")
    e(f"s_branch {lo}")
    lab(done)

def poll_quads(regs, voff, offs, t):
    lo, done = newlabel("poll"), newlabel("pdone")
    e(f"s_mov_b32 s{S_CNT}, {OPT['spin_cap']}")
    lab(lo)
    for r, o in zip(regs, offs):
        e(f"buffer_load_dwordx4 {vr(r,4)}, v{voff}, {srd(R_WS)}, 0 offen offset:{o} sc1")
    e("s_waitcnt vmcnt(0)")
    first = True
    for r in regs:
        if first:
            e(f"v_max_u32 v{t}, v{r}, v{r+1}")
            first = False
        else:
            e(f"v_max3_u32 v{t}, v{t}, v{r}, v{r+1}")
        e(f"v_max3_u32 v{t}, v{t}, v{r+2}, v{r+3}")
    e(f"v_cmp_eq_u32 vcc, -1, v{t}")
    e("s_nop 4")
    e(f"s_cbranch_vccz {done}")
    e(f"s_sub_u32 s{S_CNT}, s{S_CNT}, 1")
    e(f"s_cmp_eq_u32 s{S_CNT}, 0")
    e(f"s_cbranch_scc1 {done}")
    e(f"s_sleep {OPT['sleep']}")
    e(f"s_branch {lo}")
    lab(done)

stream = [("wq", i) for i in range(30)] + [("mlp", i) for i in range(4)] + \
         [("k", i) for i in range(48)] + [("v", i) for i in range(48)] + [("tw", i) for i in range(8)]
BASE = {"wq": 0, "mlp": 30, "k": 34, "v": 82, "tw": 130}
vmid = {}
next_load = [0]
V_MLPO = 57
V_TWO, V_TWO2 = 60, 61
def issue_load(n):
    kind, i = stream[n]
    r = slot(n)
    if kind == "wq":
        T, j = divmod(i, 3)
        if j == 0:
            e(f"s_mov_b32 s{S_OFF}, {T*24576}")
        vmid[n] = vm.issue(f"buffer_load_dwordx4 {vr(r,4)}, v{V_WQO+j}, {srd(R_WQ)}, s{S_OFF} offen{WNT}")
    elif kind == "mlp":
        rr = R_W1 if i < 2 else R_W3
        e(f"s_mov_b32 s{S_OFF}, {(i&1)*122880}")
        vmid[n] = vm.issue(f"buffer_load_dwordx3 {vr(r,3)}, v{V_MLPO}, {srd(rr)}, s{S_OFF} offen{WNT}")
    elif kind == "k":
        T, j = divmod(i, 3)
        e(f"s_mov_b32 s{S_OFF}, {T*3072}")
        vmid[n] = vm.issue(f"buffer_load_dwordx4 {vr(r,4)}, v{V_KOFF}, {srd(R_K)}, s{S_OFF} offen offset:{256*j} nt")
    elif kind == "v":
        T, j = divmod(i, 3)
        e(f"s_mov_b32 s{S_OFF}, {T*3072}")
        vmid[n] = vm.issue(f"buffer_load_dwordx4 {vr(r,4)}, v{V_VOFF}, {srd(R_V)}, s{S_OFF} offen offset:{256*j} nt")
    elif kind == "tw":
        if i < 6:
            e(f"s_mov_b32 s{S_OFF}, {i*40960}")
            vmid[n] = vm.issue(f"buffer_load_dwordx4 {vr(r,4)}, v{V_TWO}, {srd(R_WO)}, s{S_OFF} offen{WNT}")
        else:
            e(f"s_mov_b32 s{S_OFF}, {(i-6)*40960}")
            vo = V_TWO if i == 6 else V_TWO2
            vmid[n] = vm.issue(f"buffer_load_dwordx4 {vr(r,4)}, v{vo}, {srd(R_W2)}, s{S_OFF} offen{WNT}")
def issue_upto(n):
    while next_load[0] < min(n, len(stream)):
        issue_load(next_load[0]); next_load[0] += 1
def consumed(n_last):
    issue_upto(n_last + 1 + NS)

L.append(HEADER.rstrip("\n"))
L.append(f"; @launch grid=(256,1,1) block=(512,1,1) lds={LDS_TOTAL}")
L.append('.amdgcn_target "amdgcn-amd-amdhsa--gfx950"')
L.append(".text")
L.append(f".globl {NAME}_kernel")
L.append(".p2align 8")
L.append(f".type {NAME}_kernel,@function")
lab(f"{NAME}_kernel")
e("s_cmp_ge_u32 s2, 256")
e("s_cbranch_scc1 L_end")
e("s_load_dwordx16 s[4:19], s[0:1], 0")
e("s_load_dwordx8 s[20:27], s[0:1], 64")
e("s_load_dwordx2 s[28:29], s[0:1], 96")
cm("head = (b&7)*4 + (b>>6) ; split = (b>>3)&7")
e(f"s_and_b32 s{S_T0}, s2, 7")
e(f"s_lshl_b32 s{S_T0}, s{S_T0}, 2")
e(f"s_lshr_b32 s{S_T1}, s2, 6")
e(f"s_add_u32 s{S_HEAD}, s{S_T0}, s{S_T1}")
e(f"s_lshr_b32 s{S_SPLIT}, s2, 3")
e(f"s_and_b32 s{S_SPLIT}, s{S_SPLIT}, 7")
e(f"v_lshrrev_b32 v{V_T}, 6, v{V_TID}")
e(f"v_and_b32 v{V_LANE}, 63, v{V_TID}")
e(f"v_readfirstlane_b32 s{S_WAVE}, v{V_T}")
e(f"s_mov_b32 s{S_HI}, 0xffff0000")
e(f"s_mov_b32 s{S_L2E}, 0x3fb8aa3b")
e(f"s_mov_b32 s{S_SCALE}, 0x3d93cd3a")
cm("lane fields: v58=c=l&15 v59=g=l>>4")
Vc, Vg = 58, 59
e(f"v_and_b32 v{Vc}, 15, v{V_LANE}")
e(f"v_lshrrev_b32 v{Vg}, 4, v{V_LANE}")
e(f"v_cmp_gt_u32 s[{S_MC8}:{S_MC8+1}], 8, v{Vc}")
cm("K voffset = w*49152 + m*768 + g*64 + u*16 ; V voffset = w*49152 + g*768 + c*16")
e(f"s_mul_i32 s{S_T0}, s{S_WAVE}, 49152")
e(f"v_bfe_u32 v60, v{V_LANE}, 2, 2")
e(f"v_mul_u32_u24 v60, 768, v60")
e(f"v_lshl_add_u32 v60, v{Vg}, 6, v60")
e(f"v_and_b32 v61, 3, v{V_LANE}")
e(f"v_lshl_add_u32 v60, v61, 4, v60")
e(f"v_add_u32 v{V_KOFF}, s{S_T0}, v60")
e(f"v_mul_u32_u24 v60, 768, v{Vg}")
e(f"v_lshl_add_u32 v60, v{Vc}, 4, v60")
e(f"v_add_u32 v{V_VOFF}, s{S_T0}, v60")
cm("wq voffsets: row0 = 80w + 20g ; off0 = row0*12288 + 16c")
e(f"s_mul_i32 s{S_T0}, s{S_WAVE}, 80")
e(f"v_mul_u32_u24 v60, 20, v{Vg}")
e(f"v_add_u32 v60, s{S_T0}, v60")
e(f"v_lshlrev_b32 v61, 1, v60")
e(f"s_mov_b32 s{S_T1}, 12288")
e(f"v_mul_lo_u32 v60, v60, s{S_T1}")
e(f"v_lshl_add_u32 v{V_WQO}, v{Vc}, 4, v60")
e(f"v_add_u32 v{V_WQO+2}, 12416, v{V_WQO}")
e(f"v_add_u32 v62, 256, v{V_WQO}")
e(f"v_add_u32 v63, 12160, v{V_WQO}")
e(f"v_cndmask_b32 v{V_WQO+1}, v63, v62, s[{S_MC8}:{S_MC8+1}]")
cm("mlp rows: r0 = 80w + l (l<40)")
e(f"v_add_u32 v62, s{S_T0}, v{V_LANE}")
e(f"v_mul_u32_u24 v{V_MLPO}, 3072, v62")
e(f"v_lshlrev_b32 v62, 1, v62")
e(f"v_mov_b32 v63, {OOB:#x}")
e(f"v_cmp_gt_u32 vcc, 40, v{V_LANE}")
e("s_nop 1")
e(f"v_cndmask_b32 v{V_MLPO}, v63, v{V_MLPO}, vcc")
e(f"v_cndmask_b32 v62, v63, v62, vcc")
e("s_waitcnt lgkmcnt(0)")
cm("SRDs")
e(f"s_lshl_b32 s{S_T0}, s{S_HEAD}, 3")
e(f"s_add_u32 s{S_T0}, s{S_T0}, s{S_SPLIT}")
e(f"s_mul_i32 s{S_T1}, s{S_T0}, 393216")
make_srd(R_K, P_K, S_T1, 393216)
make_srd(R_V, P_V, S_T1, 393216)
make_srd(R_X, P_X, None, 1280)
make_srd(R_GW, P_GW, None, 1280)
e(f"s_mul_i32 s{S_T1}, s{S_HEAD}, 384")
make_srd(R_WQ, P_WQ, S_T1, 640 * 12288, S_T1)
e(f"s_mul_i32 s{S_T1}, s{S_T0}, 12")
make_srd(R_W1, P_W1, S_T1, 640 * 3072, S_T1)
make_srd(R_W3, P_W3, S_T1, 640 * 3072, S_T1)
make_srd(R_WS, P_WS, None, WS_BYTES)
make_srd(R_DBG, P_DBG, None, 256)
make_srd(R_OUT, P_OUT, None, 1280)
e(f"s_mul_i32 s{S_T1}, s{S_HEAD}, {192*1280}")
e(f"s_mul_i32 s{S_T2}, s{S_SPLIT}, 160")
e(f"s_add_u32 s{S_T1}, s{S_T1}, s{S_T2}")
make_srd(R_WO, P_WO, S_T1, 6144 * 1280, S_T1)
e(f"s_mul_i32 s{S_T1}, s{S_HEAD}, {48*1280}")
e(f"s_add_u32 s{S_T1}, s{S_T1}, s{S_T2}")
make_srd(R_W2, P_W2, S_T1, 1536 * 1280, S_T1)

cm("wave 7: clear own outboxes to the sentinel")
e(f"s_cmp_lg_u32 s{S_WAVE}, 7")
e("s_cbranch_scc1 L_noclear")
e("v_mov_b32 v4, -1"); e("v_mov_b32 v5, -1"); e("v_mov_b32 v6, -1"); e("v_mov_b32 v7, -1")
e(f"s_lshl_b32 s{S_T1}, s{S_T0}, 10")
e(f"v_lshlrev_b32 v8, 4, v{V_LANE}")
e(f"v_add_u32 v9, s{S_T1}, v8")
e(f"buffer_store_dwordx4 v[4:7], v9, {srd(R_WS)}, 0 offen sc1")
e(f"s_lshl_b32 s{S_T1}, s{S_SPLIT}, 5")
e(f"s_add_u32 s{S_T1}, s{S_T1}, s{S_HEAD}")
e(f"s_mul_i32 s{S_T1}, s{S_T1}, 640")
e(f"s_add_u32 s{S_T1}, s{S_T1}, {WS_OUT2}")
e(f"v_add_u32 v9, s{S_T1}, v8")
e(f"v_cmp_gt_u32 vcc, 40, v{V_LANE}")
e("s_nop 1")
e(f"v_cndmask_b32 v9, v63, v9, vcc")
e(f"buffer_store_dwordx4 v[4:7], v9, {srd(R_WS)}, 0 offen sc1")
lab("L_noclear")

cm("small loads: x pairs for the wq rows, x / gate_w for the mlp rows")
id_x = vm.issue(f"buffer_load_dwordx4 {vr(V_XW,4)}, v61, {srd(R_X)}, 0 offen")
vm.issue(f"buffer_load_dwordx4 {vr(V_XW+4,4)}, v61, {srd(R_X)}, 0 offen offset:16")
vm.issue(f"buffer_load_dwordx2 {vr(V_XW+8,2)}, v61, {srd(R_X)}, 0 offen offset:32")
V_MX = 16
vm.issue(f"buffer_load_ushort v{V_MX}, v62, {srd(R_X)}, 0 offen")
vm.issue(f"buffer_load_ushort v{V_MX+1}, v62, {srd(R_X)}, 0 offen offset:80")
vm.issue(f"buffer_load_ushort v{V_MX+2}, v62, {srd(R_GW)}, 0 offen")
id_small = vm.issue(f"buffer_load_ushort v{V_MX+3}, v62, {srd(R_GW)}, 0 offen offset:80")
issue_upto(NS)
cm("zero q-proj accumulators, LDS zero block")
for i in range(24):
    e(f"v_mov_b32 v{V_ACC+i}, 0")
e(f"v_mov_b32 v4, {LDS_ZERO}")
e(f"ds_write_b128 v4, v[{V_ACC}:{V_ACC+3}]")

cm("==== q projection ====")
pX, pY, pM, t0, t1 = 4, 5, 6, 7, 8
for T in range(10):
    n0 = BASE["wq"] + 3 * T
    vm.wait(vmid[n0 + 2])
    if T == 0:
        cm("wave 7: clear stores are complete -> signal counters")
        e(f"s_cmp_lg_u32 s{S_WAVE}, 7")
        e("s_cbranch_scc1 L_nosig")
        e(f"v_mov_b32 v9, s{S_HEAD}")
        e(f"v_mov_b32 v10, s{S_SPLIT}")
        e(f"v_add_u32 v10, 32, v10")
        e(f"v_cmp_eq_u32 vcc, 0, v{V_LANE}")
        e("s_nop 1")
        e(f"v_cndmask_b32 v9, v10, v9, vcc")
        e(f"v_lshlrev_b32 v9, 2, v9")
        e(f"v_cmp_gt_u32 vcc, 2, v{V_LANE}")
        e("s_nop 1")
        e(f"v_cndmask_b32 v9, v63, v9, vcc")
        e(f"v_mov_b32 v10, 1")
        e(f"buffer_atomic_add v10, v9, {srd(R_DBG)}, 0 offen")
        lab("L_nosig")
    e(f"v_lshlrev_b32 v{pX}, 16, v{V_XW+T}")
    e(f"v_and_b32 v{pY}, s{S_HI}, v{V_XW+T}")
    e(f"v_cndmask_b32 v{pM}, v{pY}, v{pX}, s[{S_MC8}:{S_MC8+1}]")
    for j, p in enumerate((pX, pM, pY)):
        fma_tile(slot(n0 + j), p, V_ACC + 8 * j, t0, t1)
    consumed(n0 + 2)
swap_reduce(V_ACC, 24)
red24_to_lds(V_ACC, 4, 5, 6, 7)

cm("==== mlp phase 1 ====")
n0 = BASE["mlp"]
vm.wait(vmid[n0 + 3])
MA = V_ACC
for i in range(4):
    e(f"v_lshlrev_b32 v{V_MX+i}, 16, v{V_MX+i}")
for m in range(2):
    for half in range(2):
        src = slot(n0 + 2 * m + half)
        xr = V_MX + half
        for d in range(3):
            e(f"v_lshlrev_b32 v{t0}, 16, v{src+d}")
            e(f"v_and_b32 v{t1}, s{S_HI}, v{src+d}")
            if half == 0:
                e(f"v_mul_f32 v{MA+6*m+2*d}, v{xr}, v{t0}")
                e(f"v_mul_f32 v{MA+6*m+2*d+1}, v{xr}, v{t1}")
            else:
                e(f"v_fmac_f32 v{MA+6*m+2*d}, v{xr}, v{t0}")
                e(f"v_fmac_f32 v{MA+6*m+2*d+1}, v{xr}, v{t1}")
consumed(n0 + 3)
e(f"v_mul_f32 v{t0}, v{V_MX}, v{V_MX+2}")
e(f"v_mul_f32 v{t1}, v{V_MX+1}, v{V_MX+3}")
e(f"v_cvt_pk_bf16_f32 v{t0}, v{t0}, v{t1}")
e(f"v_lshlrev_b32 v{t1}, 16, v{t0}")
e(f"v_and_b32 v{t0}, s{S_HI}, v{t0}")
e(f"v_add_f32 v{MA+12}, v{t0}, v{t1}")
for i in (13, 14, 15):
    e(f"v_mov_b32 v{MA+i}, 0")
swap_reduce(MA, 16)
for sh in (8, 4, 2, 1):
    if sh == 8:
        e("s_nop 1")
    for i in range(4):
        e(f"v_add_f32_dpp v{MA+i}, v{MA+i}, v{MA+i} row_ror:{sh} row_mask:0xf bank_mask:0xf")
e(f"s_lshl_b32 s{S_T0}, s{S_WAVE}, 6")
e(f"v_lshrrev_b32 v4, 4, v{V_LANE}")
e(f"v_lshlrev_b32 v4, 4, v4")
e(f"v_add_u32 v4, s{S_T0}, v4")
e(f"ds_write_b128 v4, v[{MA}:{MA+3}] offset:{LDS_MLPR}")
e("s_waitcnt lgkmcnt(0)")
e("s_barrier")

cm("==== P1: waves 0-2 -> q ; wave 3 -> h, g ====")
e(f"s_cmp_gt_u32 s{S_WAVE}, 3")
e("s_cbranch_scc1 L_p1done")
e(f"s_cmp_eq_u32 s{S_WAVE}, 3")
e("s_cbranch_scc1 L_p1h")
e(f"v_lshlrev_b32 v4, 2, v{V_TID}")
for w in range(8):
    e(f"ds_read2st64_b32 v[{20+2*w}:{21+2*w}], v4 offset0:{6*w} offset1:{6*w+3}")
e("s_waitcnt lgkmcnt(0)")
for w in range(8):
    e(f"v_add_f32 v{20+2*w}, v{20+2*w}, v{21+2*w}")
for a, b in ((20, 22), (24, 26), (28, 30), (32, 34), (20, 24), (28, 32), (20, 28)):
    e(f"v_add_f32 v{a}, v{a}, v{b}")
e("v_cvt_pk_bf16_f32 v20, v20, v20")
e(f"v_lshlrev_b32 v4, 1, v{V_TID}")
e(f"ds_write_b16 v4, v20 offset:{LDS_QBF}")
e("s_branch L_p1done")
lab("L_p1h")
e(f"v_and_b32 v4, 15, v{V_LANE}")
e(f"v_lshlrev_b32 v4, 2, v4")
for w in range(8):
    e(f"ds_read_b32 v{20+w}, v4 offset:{LDS_MLPR+64*w}")
e("s_waitcnt lgkmcnt(0)")
for a, b in ((20, 21), (22, 23), (24, 25), (26, 27), (20, 22), (24, 26), (20, 24)):
    e(f"v_add_f32 v{a}, v{a}, v{b}")
bf16_round(20)
e("s_nop 1")
e("v_mov_b32_dpp v21, v20 row_shl:6 row_mask:0xf bank_mask:0xf")
e(f"v_mul_f32 v22, s{S_L2E}, v20")
e("v_sub_f32 v22, 0, v22")
e("v_exp_f32 v22, v22")
e("s_nop 0")
e("v_add_f32 v22, 1.0, v22")
e("v_rcp_f32 v22, v22")
e("s_nop 0")
e("v_mul_f32 v23, v20, v22")
bf16_round(23)
e("v_mul_f32 v23, v23, v21")
bf16_round(23)
bf16_round(22)
e(f"v_cmp_eq_u32 vcc, 12, v{V_LANE}")
e("s_nop 1")
e("v_cndmask_b32 v23, v23, v22, vcc")
e("v_mov_b32 v5, 28")
e("v_cndmask_b32 v4, v4, v5, vcc")
e(f"v_cmp_gt_u32 s[{S_MSK}:{S_MSK+1}], 6, v{V_LANE}")
e(f"s_or_b64 vcc, vcc, s[{S_MSK}:{S_MSK+1}]")
e(f"s_and_saveexec_b64 s[{S_EX}:{S_EX+1}], vcc")
e(f"ds_write_b32 v4, v23 offset:{LDS_HG}")
e(f"s_mov_b64 exec, s[{S_EX}:{S_EX+1}]")
lab("L_p1done")
e("s_waitcnt lgkmcnt(0)")
e("s_barrier")

cm("==== q fragments ====")
e(f"v_lshrrev_b32 v4, 4, v{V_LANE}")
e(f"v_and_b32 v5, 3, v{V_LANE}")
e(f"v_lshlrev_b32 v5, 4, v5")
e(f"v_lshl_add_u32 v5, v4, 6, v5")
e(f"v_add_u32 v5, {LDS_QBF}, v5")
e(f"v_mov_b32 v6, {LDS_ZERO}")
e(f"v_cmp_gt_u32 vcc, 32, v{V_LANE}")
e(f"v_add_u32 v7, 256, v5")
e(f"v_subrev_u32 v8, 128, v5")
e(f"v_cndmask_b32 v7, v6, v7, vcc")
e(f"v_cndmask_b32 v8, v8, v6, vcc")
B0, B1L, B1H, B2 = V_QF, V_QF + 4, V_QF + 8, V_QF + 12
e(f"ds_read_b128 {vr(B0,4)}, v5")
e(f"ds_read_b128 {vr(B1L,4)}, v7")
e(f"ds_read_b128 {vr(B1H,4)}, v8")
e(f"ds_read_b128 {vr(B2,4)}, v5 offset:128")
V_MAX = 63
e(f"v_mov_b32 v{V_MAX}, 0xff800000")
e("s_waitcnt lgkmcnt(0)")

cm("==== phase 1: scores ====")
def post_scores(T):
    aX = V_MACC + 8 * (T & 1); aY = aX + 4
    tx, ty = V_T, V_T + 1
    e(f"v_mov_b32_dpp v{tx}, v{aX} quad_perm:[0,0,0,0] row_mask:0xf bank_mask:0xf")
    e(f"v_mov_b32_dpp v{ty}, v{aY} quad_perm:[0,0,0,0] row_mask:0xf bank_mask:0xf")
    for r in (1, 2, 3):
        e(f"v_add_f32_dpp v{tx}, v{aX+r}, v{tx} quad_perm:[{r},{r},{r},{r}] row_mask:0xf bank_mask:0xf")
        e(f"v_add_f32_dpp v{ty}, v{aY+r}, v{ty} quad_perm:[{r},{r},{r},{r}] row_mask:0xf bank_mask:0xf")
    e(f"v_cvt_pk_bf16_f32 v{tx}, v{tx}, v{ty}")
    e(f"v_and_b32 v{ty}, s{S_HI}, v{tx}")
    e(f"v_lshlrev_b32 v{tx}, 16, v{tx}")
    e(f"v_mul_f32 v{tx}, s{S_SCALE}, v{tx}")
    e(f"v_mul_f32 v{ty}, s{S_SCALE}, v{ty}")
    e(f"v_cvt_pk_bf16_f32 v{V_SC+T}, v{tx}, v{ty}")
    e(f"v_and_b32 v{ty}, s{S_HI}, v{V_SC+T}")
    e(f"v_lshlrev_b32 v{tx}, 16, v{V_SC+T}")
    e(f"v_max3_f32 v{V_MAX}, v{V_MAX}, v{tx}, v{ty}")
for T in range(16):
    n0 = BASE["k"] + 3 * T
    aX = V_MACC + 8 * (T & 1); aY = aX + 4
    vm.wait(vmid[n0 + 2])
    e(f"v_mfma_f32_16x16x32_bf16 {vr(aX,4)}, {vr(slot(n0),4)}, {vr(B0,4)}, 0")
    e(f"v_mfma_f32_16x16x32_bf16 {vr(aY,4)}, {vr(slot(n0+1),4)}, {vr(B1H,4)}, 0")
    e(f"v_mfma_f32_16x16x32_bf16 {vr(aX,4)}, {vr(slot(n0+1),4)}, {vr(B1L,4)}, {vr(aX,4)}")
    e(f"v_mfma_f32_16x16x32_bf16 {vr(aY,4)}, {vr(slot(n0+2),4)}, {vr(B2,4)}, {vr(aY,4)}")
    consumed(n0 + 2)
    if T > 0:
        post_scores(T - 1)
e("s_nop 7")
e("s_nop 1")
post_scores(15)
cm("wave max")
allgroups("v_max_f32", V_MAX, V_T)
V_ML2 = 62
e(f"v_mul_f32 v{V_ML2}, s{S_L2E}, v{V_MAX}")
cm("tail weight voffsets: rgrp*1280 + cc*16 (cc<10)")
e(f"v_lshrrev_b32 v{V_T}, 4, v{V_LANE}")
e(f"s_lshl_b32 s{S_T0}, s{S_WAVE}, 2")
e(f"v_add_u32 v{V_T}, s{S_T0}, v{V_T}")
e(f"v_mul_u32_u24 v{V_T}, 1280, v{V_T}")
e(f"v_and_b32 v{V_T+1}, 15, v{V_LANE}")
e(f"v_lshl_add_u32 v{V_T}, v{V_T+1}, 4, v{V_T}")
e(f"v_mov_b32 v{V_T+2}, {OOB:#x}")
e(f"v_cmp_gt_u32 vcc, 10, v{V_T+1}")
e("s_nop 1")
e(f"v_cndmask_b32 v{V_TWO}, v{V_T+2}, v{V_T}, vcc")
e(f"s_cmp_lt_u32 s{S_WAVE}, 4")
e(f"s_cselect_b64 vcc, vcc, 0")
e("s_nop 1")
e(f"v_cndmask_b32 v{V_TWO2}, v{V_T+2}, v{V_T}, vcc")
V_LS = 59
e(f"v_mov_b32 v{V_LS}, 0")
for i in range(24):
    e(f"v_mov_b32 v{V_ACC+i}, 0")

cm("==== phase 2: PV ====")
pX, pY, pM, t0, t1 = 52, 53, 54, 55, 56
V_CNT, V_CNTO = 57, 58
for T in range(16):
    n0 = BASE["v"] + 3 * T
    e(f"v_lshlrev_b32 v{pX}, 16, v{V_SC+T}")
    e(f"v_and_b32 v{pY}, s{S_HI}, v{V_SC+T}")
    e(f"v_fma_f32 v{pX}, v{pX}, s{S_L2E}, -v{V_ML2}")
    e(f"v_fma_f32 v{pY}, v{pY}, s{S_L2E}, -v{V_ML2}")
    e(f"v_exp_f32 v{pX}, v{pX}")
    e(f"v_exp_f32 v{pY}, v{pY}")
    vm.wait(vmid[n0 + 2])
    e(f"v_cndmask_b32 v{pM}, v{pY}, v{pX}, s[{S_MC8}:{S_MC8+1}]")
    e(f"v_add_f32 v{V_LS}, v{V_LS}, v{pX}")
    e(f"v_add_f32 v{V_LS}, v{V_LS}, v{pY}")
    for j, p in enumerate((pX, pM, pY)):
        fma_tile(slot(n0 + j), p, V_ACC + 8 * j, t0, t1)
    consumed(n0 + 2)
    if T == 3:
        cm("prefetch the clear-counters (lane0: group, lane1: slice)")
        e(f"v_mov_b32 v{V_CNTO}, s{S_HEAD}")
        e(f"v_mov_b32 v{V_CNT}, s{S_SPLIT}")
        e(f"v_add_u32 v{V_CNT}, 32, v{V_CNT}")
        e(f"v_cmp_eq_u32 vcc, 0, v{V_LANE}")
        e("s_nop 1")
        e(f"v_cndmask_b32 v{V_CNTO}, v{V_CNT}, v{V_CNTO}, vcc")
        e(f"v_lshlrev_b32 v{V_CNTO}, 2, v{V_CNTO}")
        id_cnt = vm.issue(f"buffer_load_dword v{V_CNT}, v{V_CNTO}, {srd(R_DBG)}, 0 offen sc1")
assert next_load[0] == len(stream)

cm("==== T0: wave reduce ====")
swap_reduce(V_ACC, 24)
red24_to_lds(V_ACC, 4, 5, 6, 7)
allgroups("v_add_f32", V_LS, V_T)
e(f"s_lshl_b32 s{S_T0}, s{S_WAVE}, 3")
e(f"v_mov_b32 v4, s{S_T0}")
e(f"v_mov_b32 v6, v{V_MAX}")
e(f"v_mov_b32 v7, v{V_LS}")
e(f"ds_write_b64 v4, v[6:7] offset:{LDS_STAT}")
e("s_waitcnt lgkmcnt(0)")
e("s_barrier")

cm("==== T1: wave 0 combines the 8 waves and publishes ====")
e(f"s_lshl_b32 s{S_T1}, s{S_HEAD}, 3")
e(f"s_add_u32 s{S_T2}, s{S_T1}, s{S_SPLIT}")
e(f"s_cmp_lg_u32 s{S_WAVE}, 0")
e("s_cbranch_scc1 L_t1done")
e("v_mov_b32 v4, 0")
for w in range(4):
    e(f"ds_read_b128 v[{20+4*w}:{23+4*w}], v4 offset:{LDS_STAT+16*w}")
e(f"v_lshlrev_b32 v5, 4, v{V_LANE}")
e(f"v_min_u32 v5, 752, v5")
RB = RING0 + 4 * 10
RB = RING0
for w in range(8):
    e(f"ds_read_b128 {vr(RB+8*w,4)}, v5 offset:{LDS_RED+1536*w}")
    e(f"ds_read_b128 {vr(RB+8*w+4,4)}, v5 offset:{LDS_RED+1536*w+768}")
e(f"ds_read_b128 v[40:43], v4 offset:{LDS_HG}")
e(f"ds_read_b128 v[44:47], v4 offset:{LDS_HG+16}")
e("s_waitcnt lgkmcnt(15)")
e("s_waitcnt lgkmcnt(0)")
e("v_max3_f32 v6, v20, v22, v24")
e("v_max3_f32 v6, v6, v26, v28")
e("v_max3_f32 v6, v6, v30, v32")
e("v_max_f32 v6, v6, v34")
e(f"v_mul_f32 v7, s{S_L2E}, v6")
for w in range(8):
    e(f"v_fma_f32 v{20+2*w}, v{20+2*w}, s{S_L2E}, -v7")
for w in range(8):
    e(f"v_exp_f32 v{20+2*w}, v{20+2*w}")
e("s_nop 0")
e("v_mul_f32 v7, v20, v21")
for w in range(1, 8):
    e(f"v_fmac_f32 v7, v{20+2*w}, v{21+2*w}")
for w in range(8):
    for i in range(4):
        e(f"v_add_f32 v{RB+8*w+i}, v{RB+8*w+i}, v{RB+8*w+4+i}")
    for i in range(4):
        if w == 0:
            e(f"v_mul_f32 v{8+i}, v20, v{RB+i}")
        else:
            e(f"v_fmac_f32 v{8+i}, v{20+2*w}, v{RB+8*w+i}")
cm("lane48: (M,L,h0,h1) lane49: (h2..h5) lanes>=50: 0")
e(f"v_cmp_eq_u32 vcc, 48, v{V_LANE}")
e("s_nop 1")
e("v_cndmask_b32 v8, v8, v6, vcc")
e("v_cndmask_b32 v9, v9, v7, vcc")
e("v_cndmask_b32 v10, v10, v40, vcc")
e("v_cndmask_b32 v11, v11, v41, vcc")
e(f"v_cmp_eq_u32 vcc, 49, v{V_LANE}")
e("s_nop 1")
e("v_cndmask_b32 v8, v8, v42, vcc")
e("v_cndmask_b32 v9, v9, v43, vcc")
e("v_cndmask_b32 v10, v10, v44, vcc")
e("v_cndmask_b32 v11, v11, v45, vcc")
e(f"v_cmp_lt_u32 vcc, 49, v{V_LANE}")
e("s_nop 1")
for i in range(4):
    e(f"v_cndmask_b32 v{8+i}, v{8+i}, v4, vcc")
canon4(8, 12)
e(f"s_lshl_b32 s{S_T0}, s{S_T2}, 10")
e(f"v_lshlrev_b32 v5, 4, v{V_LANE}")
e(f"v_add_u32 v5, s{S_T0}, v5")
e(f"buffer_store_dwordx4 v[8:11], v5, {srd(R_WS)}, 0 offen sc1")
lab("L_t1done")
cm("all waves: wave j gathers outbox j of this head")
vm.wait(id_cnt)
spin_counter(0, 8, V_CNT, V_CNTO)
e(f"s_add_u32 s{S_T0}, s{S_T1}, s{S_WAVE}")
e(f"s_lshl_b32 s{S_T0}, s{S_T0}, 10")
e(f"v_lshlrev_b32 v5, 4, v{V_LANE}")
e(f"v_add_u32 v6, s{S_T0}, v5")
poll_quads([8], 6, [0], 7)
e(f"s_lshl_b32 s{S_T0}, s{S_WAVE}, 10")
e(f"v_add_u32 v5, s{S_T0}, v5")
e(f"ds_write_b128 v5, v[8:11] offset:{LDS_GATH}")
e("s_waitcnt lgkmcnt(0)")
e("s_barrier")

cm("==== T3: combine splits, output GEMV slice ====")
e("v_mov_b32 v4, 0")
for j in range(8):
    e(f"ds_read_b64 v[{20+2*j}:{21+2*j}], v4 offset:{LDS_GATH+1024*j+768}")
e(f"v_lshrrev_b32 v5, 4, v{V_LANE}")
e(f"s_lshl_b32 s{S_T0}, s{S_WAVE}, 2")
e(f"v_add_u32 v5, s{S_T0}, v5")
e(f"v_and_b32 v6, 15, v{V_LANE}")
e(f"v_min_u32 v6, 5, v6")
e(f"v_lshl_add_u32 v6, v6, 5, v5")
e(f"v_lshlrev_b32 v6, 2, v6")
for j in range(8):
    e(f"ds_read_b32 v{36+j}, v6 offset:{LDS_GATH+1024*j}")
cm("h addresses: f = rgrp, min(rgrp+32,47)")
for k, (fr, ar) in enumerate(((7, 8), (9, 10))):
    if k == 0:
        e(f"v_mov_b32 v{fr}, v5")
    else:
        e(f"v_add_u32 v{fr}, 32, v5")
        e(f"v_min_u32 v{fr}, 47, v{fr}")
    e(f"v_mul_u32_u24 v{ar}, 43, v{fr}")
    e(f"v_lshrrev_b32 v{ar}, 8, v{ar}")
    e(f"v_mul_u32_u24 v11, 6, v{ar}")
    e(f"v_sub_u32 v{fr}, v{fr}, v11")
    e(f"v_lshlrev_b32 v{fr}, 2, v{fr}")
    e(f"v_lshl_add_u32 v{ar}, v{ar}, 10, v{fr}")
    e(f"ds_read_b32 v{44+k}, v{ar} offset:{LDS_GATH+776}")
e("s_waitcnt lgkmcnt(0)")
e("v_max3_f32 v6, v20, v22, v24")
e("v_max3_f32 v6, v6, v26, v28")
e("v_max3_f32 v6, v6, v30, v32")
e("v_max_f32 v6, v6, v34")
e(f"v_mul_f32 v7, s{S_L2E}, v6")
for j in range(8):
    e(f"v_fma_f32 v{20+2*j}, v{20+2*j}, s{S_L2E}, -v7")
for j in range(8):
    e(f"v_exp_f32 v{20+2*j}, v{20+2*j}")
e("s_nop 0")
e("v_mul_f32 v7, v20, v21")
e("v_mul_f32 v8, v20, v36")
for j in range(1, 8):
    e(f"v_fmac_f32 v7, v{20+2*j}, v{21+2*j}")
    e(f"v_fmac_f32 v8, v{20+2*j}, v{36+j}")
e("v_rcp_f32 v7, v7")
e("s_nop 0")
e("v_mul_f32 v8, v8, v7")
bf16_round(8)
e("s_nop 1")
for k in range(6):
    e(f"v_mov_b32_dpp v{46+k}, v8 row_newbcast:{k} row_mask:0xf bank_mask:0xf")
GA = V_ACC
for i in range(16):
    e(f"v_mov_b32 v{GA+i}, 0")
cm("tail weights landed long ago (covered by the vmcnt(0) of the polls)")
for k in range(6):
    fma_tile(slot(BASE["tw"] + k), 46 + k, GA, 4, 5)
for k in range(2):
    fma_tile(slot(BASE["tw"] + 6 + k), 44 + k, GA + 8, 4, 5)
swap_reduce(GA, 16)
cm("RED2[w] + (g>>1)*320 + cc*32 + (g&1)*16, cc<10")
e(f"v_lshrrev_b32 v5, 5, v{V_LANE}")
e(f"v_mul_u32_u24 v5, 320, v5")
e(f"v_bfe_u32 v6, v{V_LANE}, 4, 1")
e(f"v_lshl_add_u32 v5, v6, 4, v5")
e(f"v_and_b32 v6, 15, v{V_LANE}")
e(f"v_lshl_add_u32 v5, v6, 5, v5")
e(f"s_mul_i32 s{S_T0}, s{S_WAVE}, 640")
e(f"v_add_u32 v5, s{S_T0}, v5")
e(f"v_cmp_gt_u32 vcc, 10, v6")
e(f"s_and_saveexec_b64 s[{S_EX}:{S_EX+1}], vcc")
e(f"ds_write_b128 v5, v[{GA}:{GA+3}] offset:{LDS_RED2}")
e(f"s_mov_b64 exec, s[{S_EX}:{S_EX+1}]")
e("s_waitcnt lgkmcnt(0)")
e("s_barrier")

cm("==== T4: wave 0 publishes the slice partial ====")
e(f"s_cmp_lg_u32 s{S_WAVE}, 0")
e("s_cbranch_scc1 L_t4done")
e(f"v_lshlrev_b32 v5, 4, v{V_LANE}")
e(f"v_min_u32 v6, 624, v5")
for w in range(8):
    e(f"ds_read_b128 {vr(RB+4*w,4)}, v6 offset:{LDS_RED2+640*w}")
e("s_waitcnt lgkmcnt(0)")
for st in (1, 2, 4):
    for w in range(0, 8, 2 * st):
        for i in range(4):
            e(f"v_add_f32 v{RB+4*w+i}, v{RB+4*w+i}, v{RB+4*(w+st)+i}")
canon4(RB, 12)
e(f"s_lshl_b32 s{S_T0}, s{S_SPLIT}, 5")
e(f"s_add_u32 s{S_T0}, s{S_T0}, s{S_HEAD}")
e(f"s_mul_i32 s{S_T0}, s{S_T0}, 640")
e(f"s_add_u32 s{S_T0}, s{S_T0}, {WS_OUT2}")
e(f"v_add_u32 v5, s{S_T0}, v5")
e(f"v_mov_b32 v6, {OOB:#x}")
e(f"v_cmp_gt_u32 vcc, 40, v{V_LANE}")
e("s_nop 1")
e(f"v_cndmask_b32 v5, v6, v5, vcc")
e(f"buffer_store_dwordx4 {vr(RB,4)}, v5, {srd(R_WS)}, 0 offen sc1")
lab("L_t4done")

cm("==== T5: reducer WGs (head == 4*split) ====")
e(f"s_lshl_b32 s{S_T0}, s{S_SPLIT}, 2")
e(f"s_cmp_lg_u32 s{S_T0}, s{S_HEAD}")
e("s_cbranch_scc1 L_end")
spin_counter(1, 32, V_CNT, V_CNTO)
e(f"s_lshl_b32 s{S_T0}, s{S_SPLIT}, 5")
e(f"s_lshl_b32 s{S_T1}, s{S_WAVE}, 2")
e(f"s_add_u32 s{S_T0}, s{S_T0}, s{S_T1}")
e(f"s_mul_i32 s{S_T0}, s{S_T0}, 640")
e(f"s_add_u32 s{S_T0}, s{S_T0}, {WS_OUT2}")
e(f"v_lshlrev_b32 v5, 4, v{V_LANE}")
e(f"v_add_u32 v7, s{S_T0}, v5")
e(f"v_mov_b32 v6, {OOB:#x}")
e(f"v_cmp_gt_u32 vcc, 40, v{V_LANE}")
e("s_nop 1")
e(f"v_cndmask_b32 v7, v6, v7, vcc")
poll_quads([20, 24, 28, 32], 7, [0, 640, 1280, 1920], 8)
for i in range(4):
    e(f"v_add_f32 v{20+i}, v{20+i}, v{24+i}")
    e(f"v_add_f32 v{28+i}, v{28+i}, v{32+i}")
for i in range(4):
    e(f"v_add_f32 v{20+i}, v{20+i}, v{28+i}")
e(f"s_mul_i32 s{S_T0}, s{S_WAVE}, 640")
e(f"v_add_u32 v5, s{S_T0}, v5")
e(f"v_cmp_gt_u32 vcc, 40, v{V_LANE}")
e(f"s_and_saveexec_b64 s[{S_EX}:{S_EX+1}], vcc")
e(f"ds_write_b128 v5, v[20:23] offset:{LDS_RED3}")
e(f"s_mov_b64 exec, s[{S_EX}:{S_EX+1}]")
e("s_waitcnt lgkmcnt(0)")
e("s_barrier")
e(f"s_cmp_gt_u32 s{S_WAVE}, 1")
e("s_cbranch_scc1 L_end")
e(f"v_min_u32 v5, 79, v{V_TID}")
e(f"v_lshlrev_b32 v5, 2, v5")
for w in range(8):
    e(f"ds_read_b32 v{20+w}, v5 offset:{LDS_RED3+640*w}")
    e(f"ds_read_b32 v{28+w}, v5 offset:{LDS_RED3+640*w+320}")
e("v_mov_b32 v4, 0")
e(f"ds_read_b32 v36, v4 offset:{LDS_HG+28}")
e("s_waitcnt lgkmcnt(0)")
for base in (20, 28):
    for a, b in ((0, 1), (2, 3), (4, 5), (6, 7), (0, 2), (4, 6), (0, 4)):
        e(f"v_add_f32 v{base+a}, v{base+a}, v{base+b}")
bf16_round(20)
bf16_round(28)
e("v_mul_f32 v20, v36, v20")
bf16_round(20)
e("v_sub_f32 v21, 1.0, v36")
bf16_round(21)
e("v_mul_f32 v21, v21, v28")
bf16_round(21)
e("v_add_f32 v20, v20, v21")
e("v_cvt_pk_bf16_f32 v20, v20, v20")
e(f"s_mul_i32 s{S_T0}, s{S_SPLIT}, 160")
e(f"v_lshlrev_b32 v5, 1, v{V_TID}")
e(f"v_add_u32 v5, s{S_T0}, v5")
e(f"v_mov_b32 v6, {OOB:#x}")
e(f"v_cmp_gt_u32 vcc, 80, v{V_TID}")
e("s_nop 1")
e(f"v_cndmask_b32 v5, v6, v5, vcc")
e(f"buffer_store_short v20, v5, {srd(R_OUT)}, 0 offen")
lab("L_end")
e("s_endpgm")
L.append('.section .rodata,"a"')
L.append(".p2align 6")
L.append(f".amdhsa_kernel {NAME}_kernel")
L.append("  .amdhsa_next_free_vgpr 256")
L.append("  .amdhsa_next_free_sgpr 102")
L.append("  .amdhsa_accum_offset 256")
L.append("  .amdhsa_group_segment_fixed_size 0")
L.append("  .amdhsa_kernarg_size 104")
L.append("  .amdhsa_user_sgpr_count 2")
L.append("  .amdhsa_user_sgpr_kernarg_segment_ptr 1")
L.append("  .amdhsa_system_sgpr_workgroup_id_x 1")
L.append("  .amdhsa_float_denorm_mode_32 3")
L.append(".end_amdhsa_kernel")
out = sys.argv[1] if len(sys.argv) > 1 else f"cdna_kernels/{NAME}.s"
open(out, "w").write("\n".join(L) + "\n")
print("wrote", out, len(L), "lines")
```

```python
import sys

NAME = "gated_mix__mha_block_cached__glu_gated_swiglu__decode"
HEADER = open(f"cdna_kernels/{NAME}.s.ref").read().split("; Override launch geometry")[0]

OPT = dict(
    w_nt=True,
    spin_cap=400000,
    sleep=1,
    stamps=0,
    depth=5,
)
for a in sys.argv[2:]:
    k, v = a.split("=")
    OPT[k] = type(OPT[k])(int(v))


L = []
def e(s=""):
    L.append("    " + s if s and not s.endswith(":") else s)
def lab(s):
    L.append(s + ":")
def cm(s):
    L.append("    ; " + s)

P_X, P_K, P_V, P_WQ, P_WO, P_BX, P_W1, P_W3, P_W2, P_GW, P_OUT, P_DBG, P_WS = [4 + 2 * i for i in range(13)]
R_K, R_V, R_WQ, R_WO, R_W1, R_W3, R_W2, R_X, R_GW, R_OUT, R_DBG, R_WS = [32 + 4 * i for i in range(12)]
S_HEAD, S_SPLIT, S_WAVE, S_OFF, S_HI, S_L2E, S_SCALE, S_T0, S_T1, S_T2, S_CNT = 80, 81, 82, 83, 84, 85, 86, 87, 92, 93, 94
S_MC8 = 88
S_MSK = 90
S_EX = 96
def srd(r): return f"s[{r}:{r+3}]"

V_TID, V_KOFF, V_VOFF, V_LANE = 0, 1, 2, 3
V_SC = 4
V_ACC = 20
V_QF = 20
V_MACC = 36
V_XW = 44
V_WQO = 54
V_T = 52
RING0 = 64
NVGPR = 168
NS = (NVGPR - RING0) // 4
def vr(a, n): return f"v[{a}:{a+n-1}]"

LDS_RED = 0
LDS_STAT = 12288
LDS_MLPR = 12352
LDS_QBF = 12864
LDS_ZERO = 13248
LDS_HG = 13280
LDS_GATH = 13312
LDS_RED2 = 21504
LDS_RED3 = 26624
LDS_STAMP = 31744
LDS_TOTAL = 31744 + (640 if OPT["stamps"] else 0)

WS_OUT1 = 0
WS_OUT2 = 262144
WS_QBOX = WS_OUT2 + 8 * 32 * 640
QB = 1280
WS_BYTES = WS_QBOX + 256 * QB if not OPT["stamps"] else (2 << 20)
LDS_H48 = LDS_MLPR
LDS_FLAG = LDS_HG + 24
OOB = 0x80000000

class VM:
    def __init__(self): self.n = 0
    def issue(self, s):
        e(s); self.n += 1; return self.n - 1
    def wait(self, idx):
        k = self.n - 1 - idx
        assert k >= 0
        e(f"s_waitcnt vmcnt({min(k, 63)})")
vm = VM()

WNT = " nt" if OPT["w_nt"] else ""

def make_srd(r, p, off_s=None, nrec=None, nrec_s=None):
    if off_s is None:
        e(f"s_mov_b32 s{r}, s{p}")
        e(f"s_and_b32 s{r+1}, s{p+1}, 0xffff")
    else:
        e(f"s_add_u32 s{r}, s{p}, s{off_s}")
        e(f"s_addc_u32 s{r+1}, s{p+1}, 0")
        e(f"s_and_b32 s{r+1}, s{r+1}, 0xffff")
    if nrec_s is not None:
        e(f"s_sub_u32 s{r+2}, {nrec}, s{nrec_s}")
    else:
        e(f"s_mov_b32 s{r+2}, {nrec}")
    e(f"s_mov_b32 s{r+3}, 0x00020000")

def fma_tile(src, p, acc, t0, t1):
    for d in range(4):
        e(f"v_lshlrev_b32 v{t0}, 16, v{src+d}")
        e(f"v_and_b32 v{t1}, s{S_HI}, v{src+d}")
        e(f"v_fmac_f32 v{acc+2*d}, v{p}, v{t0}")
        e(f"v_fmac_f32 v{acc+2*d+1}, v{p}, v{t1}")

def swap_reduce(acc, n):
    h = n // 2
    e("s_nop 1")
    for i in range(h):
        e(f"v_permlane32_swap_b32 v{acc+i}, v{acc+i+h}")
    for i in range(h):
        e(f"v_add_f32 v{acc+i}, v{acc+i}, v{acc+i+h}")
    q = h // 2
    e("s_nop 1")
    for i in range(q):
        e(f"v_permlane16_swap_b32 v{acc+i}, v{acc+i+q}")
    for i in range(q):
        e(f"v_add_f32 v{acc+i}, v{acc+i}, v{acc+i+q}")

def allgroups(op, v, t):
    e(f"v_mov_b32 v{t}, v{v}")
    e("s_nop 1")
    e(f"v_permlane32_swap_b32 v{v}, v{t}")
    e(f"{op} v{v}, v{v}, v{t}")
    e(f"v_mov_b32 v{t}, v{v}")
    e("s_nop 1")
    e(f"v_permlane16_swap_b32 v{v}, v{t}")
    e(f"{op} v{v}, v{v}, v{t}")

def red24_to_lds(acc, tA, tB, tC, tD, sreg=None):
    e(f"v_and_b32 v{tD}, 15, v{V_LANE}")
    e(f"v_lshlrev_b32 v{tD}, 5, v{tD}")
    e(f"s_mul_i32 s{S_T0}, s{S_WAVE if sreg is None else sreg}, 1536")
    e(f"v_add_u32 v{tD}, s{S_T0}, v{tD}")
    e(f"v_lshrrev_b32 v{tA}, 4, v{V_LANE}")
    e(f"v_mul_u32_u24 v{tA}, 6, v{tA}")
    for p in range(3):
        e(f"v_add_u32 v{tB}, {2*p}, v{tA}")
        e(f"v_lshrrev_b32 v{tC}, 3, v{tB}")
        e(f"v_lshl_add_u32 v{tC}, v{tC}, 9, v{tD}")
        e(f"v_and_b32 v{tB}, 7, v{tB}")
        e(f"v_lshl_add_u32 v{tC}, v{tB}, 2, v{tC}")
        e(f"ds_write_b64 v{tC}, v[{acc+2*p}:{acc+2*p+1}] offset:{LDS_RED}")

def canon4(r, t):
    e(f"v_mov_b32 v{t}, 0x7fc00000")
    for i in range(4):
        e(f"v_cmp_eq_u32 vcc, -1, v{r+i}")
        e("s_nop 1")
        e(f"v_cndmask_b32 v{r+i}, v{r+i}, v{t}, vcc")

def bf16_round(v, t=None):
    e(f"v_cvt_pk_bf16_f32 v{v}, v{v}, v{v}")
    e(f"v_lshlrev_b32 v{v}, 16, v{v}")

def stamp(k, ta, tb):
    if not OPT["stamps"]:
        return
    e("s_memrealtime s[98:99]")
    e(f"s_lshl_b32 s100, s{S_WAVE}, 6")
    e("s_waitcnt lgkmcnt(0)")
    e(f"v_mov_b32 v{ta}, s98")
    e(f"v_mov_b32 v{tb}, s100")
    e(f"ds_write_b32 v{tb}, v{ta} offset:{LDS_STAMP+4*k}")

_lbl = [0]
def newlabel(p):
    _lbl[0] += 1
    return f"L_{p}_{_lbl[0]}"

def spin_counter(lane_sel, target, vcnt, voff, hi=False):
    lo, done = newlabel("cspin"), newlabel("cdone")
    e(f"s_mov_b32 s{S_CNT}, {OPT['spin_cap']}")
    lab(lo)
    e(f"v_readlane_b32 s{S_T0}, v{vcnt}, {lane_sel}")
    e("s_nop 3")
    if hi:
        e(f"s_lshr_b32 s{S_T0}, s{S_T0}, 16")
    else:
        e(f"s_and_b32 s{S_T0}, s{S_T0}, 0xffff")
    e(f"s_cmp_ge_u32 s{S_T0}, {target}")
    e(f"s_cbranch_scc1 {done}")
    e(f"s_sub_u32 s{S_CNT}, s{S_CNT}, 1")
    e(f"s_cmp_eq_u32 s{S_CNT}, 0")
    e(f"s_cbranch_scc1 {done}")
    e("s_sleep 32")
    e(f"buffer_load_dword v{vcnt}, v{voff}, {srd(R_DBG)}, 0 offen sc1")
    e("s_waitcnt vmcnt(0)")
    e(f"s_branch {lo}")
    lab(done)

def poll_quads(regs, voff, offs, t):
    big = max(offs) > 4095
    lo, done = newlabel("poll"), newlabel("pdone")
    e(f"s_mov_b32 s{S_CNT}, {OPT['spin_cap']}")
    lab(lo)
    for r, o in zip(regs, offs):
        if big:
            e(f"s_mov_b32 s{S_OFF}, {o}")
            e(f"buffer_load_dwordx4 {vr(r,4)}, v{voff}, {srd(R_WS)}, s{S_OFF} offen sc1")
        else:
            e(f"buffer_load_dwordx4 {vr(r,4)}, v{voff}, {srd(R_WS)}, 0 offen offset:{o} sc1")
    e("s_waitcnt vmcnt(0)")
    first = True
    for r in regs:
        if first:
            e(f"v_max_u32 v{t}, v{r}, v{r+1}")
            first = False
        else:
            e(f"v_max3_u32 v{t}, v{t}, v{r}, v{r+1}")
        e(f"v_max3_u32 v{t}, v{t}, v{r+2}, v{r+3}")
    e(f"v_cmp_eq_u32 vcc, -1, v{t}")
    e("s_nop 4")
    e(f"s_cbranch_vccz {done}")
    e(f"s_sub_u32 s{S_CNT}, s{S_CNT}, 1")
    e(f"s_cmp_eq_u32 s{S_CNT}, 0")
    e(f"s_cbranch_scc1 {done}")
    e(f"s_sleep {OPT['sleep']}")
    e(f"s_branch {lo}")
    lab(done)

free_slots = list(range(NS))
slot_of = {}
vmid = {}
V_TWO, V_TWO2 = 60, 61
def sl(kind, i): return RING0 + 4 * slot_of[(kind, i)]
def issue(kind, i):
    free_slots.sort()
    slot_of[(kind, i)] = free_slots.pop(-1 if kind == "tw" else 0)
    r = sl(kind, i)
    n = (kind, i)
    if kind == "k":
        T, j = divmod(i, 3)
        e(f"s_mov_b32 s{S_OFF}, {T*3072}")
        vmid[n] = vm.issue(f"buffer_load_dwordx4 {vr(r,4)}, v{V_KOFF}, {srd(R_K)}, s{S_OFF} offen offset:{256*j} nt")
    elif kind == "v":
        T, j = divmod(i, 3)
        e(f"s_mov_b32 s{S_OFF}, {T*3072}")
        vmid[n] = vm.issue(f"buffer_load_dwordx4 {vr(r,4)}, v{V_VOFF}, {srd(R_V)}, s{S_OFF} offen offset:{256*j} nt")
    elif kind == "tw":
        if i < 6:
            e(f"s_mov_b32 s{S_OFF}, {i*40960}")
            vmid[n] = vm.issue(f"buffer_load_dwordx4 {vr(r,4)}, v{V_TWO}, {srd(R_WO)}, s{S_OFF} offen{WNT}")
        else:
            e(f"s_mov_b32 s{S_OFF}, {(i-6)*40960}")
            vo = V_TWO if i == 6 else V_TWO2
            vmid[n] = vm.issue(f"buffer_load_dwordx4 {vr(r,4)}, v{vo}, {srd(R_W2)}, s{S_OFF} offen{WNT}")
def release(kind, idxs):
    for i in idxs:
        free_slots.append(slot_of[(kind, i)])
main = [("k", i) for i in range(48)] + [("v", i) for i in range(36)] + [("tw", i) for i in range(8)] + [("v", i) for i in range(36, 48)]
pos_of = {n: i for i, n in enumerate(main)}
st = dict(pos=0, landed=0)
D = OPT["depth"]
def can_issue():
    return st["pos"] < len(main) and bool(free_slots)
def wait_main(j):
    if st["landed"] <= j:
        vm.wait(vmid[main[j]])
        st["landed"] = j + 1
def paced_issue():
    p = st["pos"]
    if p >= D:
        wait_main(p - D)
    issue(*main[p]); st["pos"] += 1

L.append(HEADER.rstrip("\n"))
L.append(f"; @launch grid=(256,1,1) block=(640,1,1) lds={LDS_TOTAL}")
L.append('.amdgcn_target "amdgcn-amd-amdhsa--gfx950"')
L.append(".text")
L.append(f".globl {NAME}_kernel")
L.append(".p2align 8")
L.append(f".type {NAME}_kernel,@function")
lab(f"{NAME}_kernel")
e("s_cmp_ge_u32 s2, 256")
e("s_cbranch_scc1 L_end")
e("s_load_dwordx16 s[4:19], s[0:1], 0")
e("s_load_dwordx8 s[20:27], s[0:1], 64")
e("s_load_dwordx2 s[28:29], s[0:1], 96")
cm("head = (b&7)*4 + (b>>6) ; split = (b>>3)&7")
e(f"s_and_b32 s{S_T0}, s2, 7")
e(f"s_lshl_b32 s{S_T0}, s{S_T0}, 2")
e(f"s_lshr_b32 s{S_T1}, s2, 6")
e(f"s_add_u32 s{S_HEAD}, s{S_T0}, s{S_T1}")
e(f"s_lshr_b32 s{S_SPLIT}, s2, 3")
e(f"s_and_b32 s{S_SPLIT}, s{S_SPLIT}, 7")
e(f"v_lshrrev_b32 v{V_T}, 6, v{V_TID}")
e(f"v_and_b32 v{V_LANE}, 63, v{V_TID}")
e(f"v_readfirstlane_b32 s{S_WAVE}, v{V_T}")
e(f"s_mov_b32 s{S_HI}, 0xffff0000")
e(f"s_mov_b32 s{S_L2E}, 0x3fb8aa3b")
e(f"s_mov_b32 s{S_SCALE}, 0x3d93cd3a")
Vc, Vg = 58, 59
e(f"v_and_b32 v{Vc}, 15, v{V_LANE}")
e(f"v_lshrrev_b32 v{Vg}, 4, v{V_LANE}")
e(f"v_cmp_gt_u32 s[{S_MC8}:{S_MC8+1}], 8, v{Vc}")
cm("K voffset = w*49152 + m*768 + g*64 + u*16 ; V voffset = w*49152 + g*768 + c*16")
e(f"s_mul_i32 s{S_T0}, s{S_WAVE}, 49152")
e(f"v_bfe_u32 v60, v{V_LANE}, 2, 2")
e(f"v_mul_u32_u24 v60, 768, v60")
e(f"v_lshl_add_u32 v60, v{Vg}, 6, v60")
e(f"v_and_b32 v61, 3, v{V_LANE}")
e(f"v_lshl_add_u32 v60, v61, 4, v60")
e(f"v_add_u32 v{V_KOFF}, s{S_T0}, v60")
e(f"v_mul_u32_u24 v60, 768, v{Vg}")
e(f"v_lshl_add_u32 v60, v{Vc}, 4, v60")
e(f"v_add_u32 v{V_VOFF}, s{S_T0}, v60")
e("s_waitcnt lgkmcnt(0)")
cm("SRDs")
S_LW = 95
e(f"s_lshl_b32 s{S_LW}, s{S_HEAD}, 3")
e(f"s_add_u32 s{S_LW}, s{S_LW}, s{S_SPLIT}")
e(f"s_mul_i32 s{S_T1}, s{S_LW}, 393216")
make_srd(R_K, P_K, S_T1, 393216)
make_srd(R_V, P_V, S_T1, 393216)
make_srd(R_X, P_X, None, 1280)
make_srd(R_GW, P_GW, None, 1280)
e(f"s_mul_i32 s{S_T1}, s{S_HEAD}, 384")
make_srd(R_WQ, P_WQ, S_T1, 640 * 12288, S_T1)
e(f"s_mul_i32 s{S_T1}, s{S_HEAD}, 96")
make_srd(R_W1, P_W1, S_T1, 640 * 3072, S_T1)
make_srd(R_W3, P_W3, S_T1, 640 * 3072, S_T1)
make_srd(R_WS, P_WS, None, WS_BYTES)
make_srd(R_DBG, P_DBG, None, 256)
make_srd(R_OUT, P_OUT, None, 1280)
e(f"s_mul_i32 s{S_T1}, s{S_HEAD}, {192*1280}")
e(f"s_mul_i32 s{S_T2}, s{S_SPLIT}, 160")
e(f"s_add_u32 s{S_T1}, s{S_T1}, s{S_T2}")
make_srd(R_WO, P_WO, S_T1, 6144 * 1280, S_T1)
e(f"s_mul_i32 s{S_T1}, s{S_HEAD}, {48*1280}")
e(f"s_add_u32 s{S_T1}, s{S_T1}, s{S_T2}")
make_srd(R_W2, P_W2, S_T1, 1536 * 1280, S_T1)
stamp(0, 4, 5)
e(f"s_cmp_ge_u32 s{S_WAVE}, 8")
e("s_cbranch_scc1 L_helper")

cm("================= streaming waves =================")
cm("park K tiles until q is ready")
for _ in range(D):
    paced_issue()
e("s_barrier")
while can_issue():
    paced_issue()
cm("tail weight voffsets: rgrp*1280 + cc*16 (cc<10)")
e(f"v_lshrrev_b32 v{V_T}, 4, v{V_LANE}")
e(f"s_lshl_b32 s{S_T0}, s{S_WAVE}, 2")
e(f"v_add_u32 v{V_T}, s{S_T0}, v{V_T}")
e(f"v_mul_u32_u24 v{V_T}, 1280, v{V_T}")
e(f"v_and_b32 v{V_T+1}, 15, v{V_LANE}")
e(f"v_lshl_add_u32 v{V_T}, v{V_T+1}, 4, v{V_T}")
e(f"v_mov_b32 v{V_T+2}, {OOB:#x}")
e(f"v_cmp_gt_u32 vcc, 10, v{V_T+1}")
e("s_nop 1")
e(f"v_cndmask_b32 v{V_TWO}, v{V_T+2}, v{V_T}, vcc")
e(f"s_cmp_lt_u32 s{S_WAVE}, 4")
e(f"s_cselect_b64 vcc, vcc, 0")
e("s_nop 1")
e(f"v_cndmask_b32 v{V_TWO2}, v{V_T+2}, v{V_T}, vcc")
cm("q fragment addresses: g=l>>4,u=l&3 ; qo = g*64+u*16")
e(f"v_lshrrev_b32 v4, 4, v{V_LANE}")
e(f"v_and_b32 v5, 3, v{V_LANE}")
e(f"v_lshlrev_b32 v5, 4, v5")
e(f"v_lshl_add_u32 v5, v4, 6, v5")
e(f"v_add_u32 v5, {LDS_QBF}, v5")
e(f"v_mov_b32 v6, {LDS_ZERO}")
e(f"v_cmp_gt_u32 vcc, 32, v{V_LANE}")
e(f"v_add_u32 v7, 256, v5")
e(f"v_subrev_u32 v8, 128, v5")
e(f"v_cndmask_b32 v7, v6, v7, vcc")
e(f"v_cndmask_b32 v8, v8, v6, vcc")
V_MAX = 63
e(f"v_mov_b32 v{V_MAX}, 0xff800000")
stamp(1, 52, 53)
e("s_barrier")
B0, B1L, B1H, B2 = V_QF, V_QF + 4, V_QF + 8, V_QF + 12
e(f"ds_read_b128 {vr(B0,4)}, v5")
e(f"ds_read_b128 {vr(B1L,4)}, v7")
e(f"ds_read_b128 {vr(B1H,4)}, v8")
e(f"ds_read_b128 {vr(B2,4)}, v5 offset:128")
e("s_waitcnt lgkmcnt(0)")
stamp(2, 52, 53)

def post_scores(T):
    aX = V_MACC + 8 * (T & 1); aY = aX + 4
    tx, ty = V_T, V_T + 1
    e(f"v_mov_b32_dpp v{tx}, v{aX} quad_perm:[0,0,0,0] row_mask:0xf bank_mask:0xf")
    e(f"v_mov_b32_dpp v{ty}, v{aY} quad_perm:[0,0,0,0] row_mask:0xf bank_mask:0xf")
    for r in (1, 2, 3):
        e(f"v_add_f32_dpp v{tx}, v{aX+r}, v{tx} quad_perm:[{r},{r},{r},{r}] row_mask:0xf bank_mask:0xf")
        e(f"v_add_f32_dpp v{ty}, v{aY+r}, v{ty} quad_perm:[{r},{r},{r},{r}] row_mask:0xf bank_mask:0xf")
    e(f"v_cvt_pk_bf16_f32 v{tx}, v{tx}, v{ty}")
    e(f"v_and_b32 v{ty}, s{S_HI}, v{tx}")
    e(f"v_lshlrev_b32 v{tx}, 16, v{tx}")
    e(f"v_mul_f32 v{tx}, s{S_SCALE}, v{tx}")
    e(f"v_mul_f32 v{ty}, s{S_SCALE}, v{ty}")
    e(f"v_cvt_pk_bf16_f32 v{V_SC+T}, v{tx}, v{ty}")
    e(f"v_and_b32 v{ty}, s{S_HI}, v{V_SC+T}")
    e(f"v_lshlrev_b32 v{tx}, 16, v{V_SC+T}")
    e(f"v_max3_f32 v{V_MAX}, v{V_MAX}, v{tx}, v{ty}")
V_ML2 = 62
V_LS = 59
pX, pY, pM, t0, t1 = 52, 53, 54, 55, 56
V_CNT, V_CNTO = 57, 58
def consume_k(T):
    n0 = 3 * T
    aX = V_MACC + 8 * (T & 1); aY = aX + 4
    cm(f"K tile {T}")
    e(f"v_mfma_f32_16x16x32_bf16 {vr(aX,4)}, {vr(sl('k',n0),4)}, {vr(B0,4)}, 0")
    e(f"v_mfma_f32_16x16x32_bf16 {vr(aY,4)}, {vr(sl('k',n0+1),4)}, {vr(B1H,4)}, 0")
    e(f"v_mfma_f32_16x16x32_bf16 {vr(aX,4)}, {vr(sl('k',n0+1),4)}, {vr(B1L,4)}, {vr(aX,4)}")
    e(f"v_mfma_f32_16x16x32_bf16 {vr(aY,4)}, {vr(sl('k',n0+2),4)}, {vr(B2,4)}, {vr(aY,4)}")
    release("k", range(n0, n0 + 3))
    if T > 0:
        post_scores(T - 1)
    else:
        e("s_nop 7")
    if T == 15:
        e("s_nop 1")
        post_scores(15)
        stamp(3, 52, 53)
        cm("wave max")
        allgroups("v_max_f32", V_MAX, V_T)
        e(f"v_mul_f32 v{V_ML2}, s{S_L2E}, v{V_MAX}")
        e(f"v_mov_b32 v{V_LS}, 0")
        for i in range(24):
            e(f"v_mov_b32 v{V_ACC+i}, 0")
def consume_v(T):
    n0 = 3 * T
    cm(f"V tile {T}")
    e(f"v_lshlrev_b32 v{pX}, 16, v{V_SC+T}")
    e(f"v_and_b32 v{pY}, s{S_HI}, v{V_SC+T}")
    e(f"v_fma_f32 v{pX}, v{pX}, s{S_L2E}, -v{V_ML2}")
    e(f"v_fma_f32 v{pY}, v{pY}, s{S_L2E}, -v{V_ML2}")
    e(f"v_exp_f32 v{pX}, v{pX}")
    e(f"v_exp_f32 v{pY}, v{pY}")
    e("s_nop 0")
    e(f"v_cndmask_b32 v{pM}, v{pY}, v{pX}, s[{S_MC8}:{S_MC8+1}]")
    e(f"v_add_f32 v{V_LS}, v{V_LS}, v{pX}")
    e(f"v_add_f32 v{V_LS}, v{V_LS}, v{pY}")
    for j, p in enumerate((pX, pM, pY)):
        fma_tile(sl("v", n0 + j), p, V_ACC + 8 * j, t0, t1)
    release("v", range(n0, n0 + 3))
tile = 0
id_cnt = None
while tile < 32:
    last = pos_of[("k", 3 * tile + 2) if tile < 16 else ("v", 3 * (tile - 16) + 2)]
    if can_issue():
        paced_issue()
        if st["pos"] == len(main) - 6:
            cm("prefetch the clear-counters (lane0: group, lane1: slice)")
            e(f"v_mov_b32 v{V_CNTO}, s{S_HEAD}")
            e(f"v_mov_b32 v{V_CNT}, s{S_SPLIT}")
            e(f"v_add_u32 v{V_CNT}, 32, v{V_CNT}")
            e(f"v_cmp_eq_u32 vcc, 0, v{V_LANE}")
            e("s_nop 1")
            e(f"v_cndmask_b32 v{V_CNTO}, v{V_CNT}, v{V_CNTO}, vcc")
            e(f"v_lshlrev_b32 v{V_CNTO}, 2, v{V_CNTO}")
            id_cnt = vm.issue(f"buffer_load_dword v{V_CNT}, v{V_CNTO}, {srd(R_DBG)}, 0 offen sc1")
    else:
        wait_main(last)
    if st["landed"] > last:
        if tile < 16: consume_k(tile)
        else: consume_v(tile - 16)
        tile += 1
assert st["pos"] == len(main) and id_cnt is not None
stamp(4, 4, 5)
cm("==== T0: wave reduce ====")
swap_reduce(V_ACC, 24)
red24_to_lds(V_ACC, 4, 5, 6, 7)
allgroups("v_add_f32", V_LS, V_T)
e(f"s_lshl_b32 s{S_T0}, s{S_WAVE}, 3")
e(f"v_mov_b32 v4, s{S_T0}")
e(f"v_mov_b32 v6, v{V_MAX}")
e(f"v_mov_b32 v7, v{V_LS}")
e(f"ds_write_b64 v4, v[6:7] offset:{LDS_STAT}")
e("s_waitcnt lgkmcnt(0)")
e("s_barrier")

cm("==== T1: wave 0 combines the 8 waves and publishes ====")
e(f"s_lshl_b32 s{S_T1}, s{S_HEAD}, 3")
e(f"s_add_u32 s{S_T2}, s{S_T1}, s{S_SPLIT}")
e(f"s_cmp_lg_u32 s{S_WAVE}, 0")
e("s_cbranch_scc1 L_t1done")
e("v_mov_b32 v4, 0")
for w in range(4):
    e(f"ds_read_b128 v[{20+4*w}:{23+4*w}], v4 offset:{LDS_STAT+16*w}")
e(f"v_lshlrev_b32 v5, 4, v{V_LANE}")
e(f"v_min_u32 v5, 752, v5")
tws = sorted(slot_of[("tw", i)] for i in range(8))
RB = None
for st in range(0, NS - 15):
    if not any(st <= t < st + 16 for t in tws):
        RB = RING0 + 4 * st; break
assert RB is not None, tws
for w in range(8):
    e(f"ds_read_b128 {vr(RB+8*w,4)}, v5 offset:{LDS_RED+1536*w}")
    e(f"ds_read_b128 {vr(RB+8*w+4,4)}, v5 offset:{LDS_RED+1536*w+768}")
e("s_waitcnt lgkmcnt(15)")
e("s_waitcnt lgkmcnt(0)")
e("v_max3_f32 v6, v20, v22, v24")
e("v_max3_f32 v6, v6, v26, v28")
e("v_max3_f32 v6, v6, v30, v32")
e("v_max_f32 v6, v6, v34")
e(f"v_mul_f32 v7, s{S_L2E}, v6")
for w in range(8):
    e(f"v_fma_f32 v{20+2*w}, v{20+2*w}, s{S_L2E}, -v7")
for w in range(8):
    e(f"v_exp_f32 v{20+2*w}, v{20+2*w}")
e("s_nop 0")
e("v_mul_f32 v7, v20, v21")
for w in range(1, 8):
    e(f"v_fmac_f32 v7, v{20+2*w}, v{21+2*w}")
for w in range(8):
    for i in range(4):
        e(f"v_add_f32 v{RB+8*w+i}, v{RB+8*w+i}, v{RB+8*w+4+i}")
    for i in range(4):
        if w == 0:
            e(f"v_mul_f32 v{8+i}, v20, v{RB+i}")
        else:
            e(f"v_fmac_f32 v{8+i}, v{20+2*w}, v{RB+8*w+i}")
cm("lane48: (M,L,0,0) ; lanes>=49: 0")
e(f"v_cmp_lt_u32 vcc, 47, v{V_LANE}")
e("s_nop 1")
for i in range(4):
    e(f"v_cndmask_b32 v{8+i}, v{8+i}, v4, vcc")
e(f"v_cmp_eq_u32 vcc, 48, v{V_LANE}")
e("s_nop 1")
e("v_cndmask_b32 v8, v8, v6, vcc")
e("v_cndmask_b32 v9, v9, v7, vcc")
canon4(8, 12)
e(f"s_lshl_b32 s{S_T0}, s{S_T2}, 10")
e(f"v_lshlrev_b32 v5, 4, v{V_LANE}")
e(f"v_add_u32 v5, s{S_T0}, v5")
e(f"buffer_store_dwordx4 v[8:11], v5, {srd(R_WS)}, 0 offen sc1")
lab("L_t1done")
stamp(5, 4, 5)
cm("all waves: wave j gathers outbox j of this head")
vm.wait(id_cnt)
e(f"s_add_u32 s{S_T0}, s{S_T1}, s{S_WAVE}")
e(f"s_lshl_b32 s{S_T0}, s{S_T0}, 10")
e(f"v_lshlrev_b32 v5, 4, v{V_LANE}")
e(f"v_add_u32 v6, s{S_T0}, v5")
poll_quads([8], 6, [0], 7)
stamp(6, 4, 12)
e(f"s_lshl_b32 s{S_T0}, s{S_WAVE}, 10")
e(f"v_add_u32 v5, s{S_T0}, v5")
e(f"ds_write_b128 v5, v[8:11] offset:{LDS_GATH}")
e("s_waitcnt lgkmcnt(0)")
e("s_barrier")

cm("==== T3: combine splits, output GEMV slice ====")
e("v_mov_b32 v4, 0")
for j in range(8):
    e(f"ds_read_b64 v[{20+2*j}:{21+2*j}], v4 offset:{LDS_GATH+1024*j+768}")
e(f"v_lshrrev_b32 v5, 4, v{V_LANE}")
e(f"s_lshl_b32 s{S_T0}, s{S_WAVE}, 2")
e(f"v_add_u32 v5, s{S_T0}, v5")
e(f"v_and_b32 v6, 15, v{V_LANE}")
e(f"v_min_u32 v6, 5, v6")
e(f"v_lshl_add_u32 v6, v6, 5, v5")
e(f"v_lshlrev_b32 v6, 2, v6")
for j in range(8):
    e(f"ds_read_b32 v{36+j}, v6 offset:{LDS_GATH+1024*j}")
cm("h: f = rgrp, min(rgrp+32,47)")
e("v_lshlrev_b32 v7, 2, v5")
e(f"ds_read_b32 v44, v7 offset:{LDS_H48}")
e("v_add_u32 v7, 32, v5")
e("v_min_u32 v7, 47, v7")
e("v_lshlrev_b32 v7, 2, v7")
e(f"ds_read_b32 v45, v7 offset:{LDS_H48}")
e("s_waitcnt lgkmcnt(0)")
e("v_max3_f32 v6, v20, v22, v24")
e("v_max3_f32 v6, v6, v26, v28")
e("v_max3_f32 v6, v6, v30, v32")
e("v_max_f32 v6, v6, v34")
e(f"v_mul_f32 v7, s{S_L2E}, v6")
for j in range(8):
    e(f"v_fma_f32 v{20+2*j}, v{20+2*j}, s{S_L2E}, -v7")
for j in range(8):
    e(f"v_exp_f32 v{20+2*j}, v{20+2*j}")
e("s_nop 0")
e("v_mul_f32 v7, v20, v21")
e("v_mul_f32 v8, v20, v36")
for j in range(1, 8):
    e(f"v_fmac_f32 v7, v{20+2*j}, v{21+2*j}")
    e(f"v_fmac_f32 v8, v{20+2*j}, v{36+j}")
e("v_rcp_f32 v7, v7")
e("s_nop 0")
e("v_mul_f32 v8, v8, v7")
bf16_round(8)
e("s_nop 1")
for k in range(6):
    e(f"v_mov_b32_dpp v{46+k}, v8 row_newbcast:{k} row_mask:0xf bank_mask:0xf")
GA = V_ACC
for i in range(16):
    e(f"v_mov_b32 v{GA+i}, 0")
cm("tail weights landed long ago (covered by the vmcnt(0) of the polls)")
for k in range(6):
    fma_tile(sl("tw", k), 46 + k, GA, 4, 5)
for k in range(2):
    fma_tile(sl("tw", 6 + k), 44 + k, GA + 8, 4, 5)
swap_reduce(GA, 16)
cm("RED2[w] + (g>>1)*320 + cc*32 + (g&1)*16, cc<10")
e(f"v_lshrrev_b32 v5, 5, v{V_LANE}")
e(f"v_mul_u32_u24 v5, 320, v5")
e(f"v_bfe_u32 v6, v{V_LANE}, 4, 1")
e(f"v_lshl_add_u32 v5, v6, 4, v5")
e(f"v_and_b32 v6, 15, v{V_LANE}")
e(f"v_lshl_add_u32 v5, v6, 5, v5")
e(f"s_mul_i32 s{S_T0}, s{S_WAVE}, 640")
e(f"v_add_u32 v5, s{S_T0}, v5")
e(f"v_cmp_gt_u32 vcc, 10, v6")
e(f"s_and_saveexec_b64 s[{S_EX}:{S_EX+1}], vcc")
e(f"ds_write_b128 v5, v[{GA}:{GA+3}] offset:{LDS_RED2}")
e(f"s_mov_b64 exec, s[{S_EX}:{S_EX+1}]")
e("s_waitcnt lgkmcnt(0)")
e("s_barrier")

cm("==== T4: wave 0 publishes the slice partial ====")
e(f"s_cmp_lg_u32 s{S_WAVE}, 0")
e("s_cbranch_scc1 L_t4done")
e(f"v_lshlrev_b32 v5, 4, v{V_LANE}")
e(f"v_min_u32 v6, 624, v5")
for w in range(8):
    e(f"ds_read_b128 {vr(RB+4*w,4)}, v6 offset:{LDS_RED2+640*w}")
e("s_waitcnt lgkmcnt(0)")
for st in (1, 2, 4):
    for w in range(0, 8, 2 * st):
        for i in range(4):
            e(f"v_add_f32 v{RB+4*w+i}, v{RB+4*w+i}, v{RB+4*(w+st)+i}")
canon4(RB, 12)
e(f"s_lshl_b32 s{S_T0}, s{S_SPLIT}, 5")
e(f"s_add_u32 s{S_T0}, s{S_T0}, s{S_HEAD}")
e(f"s_mul_i32 s{S_T0}, s{S_T0}, 640")
e(f"s_add_u32 s{S_T0}, s{S_T0}, {WS_OUT2}")
e(f"v_add_u32 v5, s{S_T0}, v5")
e(f"v_mov_b32 v6, {OOB:#x}")
e(f"v_cmp_gt_u32 vcc, 40, v{V_LANE}")
e("s_nop 1")
e(f"v_cndmask_b32 v5, v6, v5, vcc")
e(f"buffer_store_dwordx4 {vr(RB,4)}, v5, {srd(R_WS)}, 0 offen sc1")
lab("L_t4done")

stamp(7, 4, 5)
cm("==== T5: reducer WGs (head == 4*split) ====")
e(f"s_lshl_b32 s{S_T0}, s{S_SPLIT}, 2")
e(f"s_cmp_lg_u32 s{S_T0}, s{S_HEAD}")
e("s_cbranch_scc1 " + ("L_fin" if OPT["stamps"] else "L_end"))
spin_counter(1, 32, V_CNT, V_CNTO)
e(f"s_lshl_b32 s{S_T0}, s{S_SPLIT}, 5")
e(f"s_lshl_b32 s{S_T1}, s{S_WAVE}, 2")
e(f"s_add_u32 s{S_T0}, s{S_T0}, s{S_T1}")
e(f"s_mul_i32 s{S_T0}, s{S_T0}, 640")
e(f"s_add_u32 s{S_T0}, s{S_T0}, {WS_OUT2}")
e(f"v_lshlrev_b32 v5, 4, v{V_LANE}")
e(f"v_add_u32 v7, s{S_T0}, v5")
e(f"v_mov_b32 v6, {OOB:#x}")
e(f"v_cmp_gt_u32 vcc, 40, v{V_LANE}")
e("s_nop 1")
e(f"v_cndmask_b32 v7, v6, v7, vcc")
poll_quads([20, 24, 28, 32], 7, [0, 640, 1280, 1920], 8)
stamp(8, 4, 12)
for i in range(4):
    e(f"v_add_f32 v{20+i}, v{20+i}, v{24+i}")
    e(f"v_add_f32 v{28+i}, v{28+i}, v{32+i}")
for i in range(4):
    e(f"v_add_f32 v{20+i}, v{20+i}, v{28+i}")
e(f"s_mul_i32 s{S_T0}, s{S_WAVE}, 640")
e(f"v_add_u32 v5, s{S_T0}, v5")
e(f"v_cmp_gt_u32 vcc, 40, v{V_LANE}")
e(f"s_and_saveexec_b64 s[{S_EX}:{S_EX+1}], vcc")
e(f"ds_write_b128 v5, v[20:23] offset:{LDS_RED3}")
e(f"s_mov_b64 exec, s[{S_EX}:{S_EX+1}]")
e("s_waitcnt lgkmcnt(0)")
e("s_barrier")
e(f"s_cmp_gt_u32 s{S_WAVE}, 1")
e("s_cbranch_scc1 " + ("L_fin" if OPT["stamps"] else "L_end"))
e(f"v_min_u32 v5, 79, v{V_TID}")
e(f"v_lshlrev_b32 v5, 2, v5")
for w in range(8):
    e(f"ds_read_b32 v{20+w}, v5 offset:{LDS_RED3+640*w}")
    e(f"ds_read_b32 v{28+w}, v5 offset:{LDS_RED3+640*w+320}")
e("v_mov_b32 v4, 0")
e(f"ds_read_b32 v36, v4 offset:{LDS_HG+28}")
e("s_waitcnt lgkmcnt(0)")
for base in (20, 28):
    for a, b in ((0, 1), (2, 3), (4, 5), (6, 7), (0, 2), (4, 6), (0, 4)):
        e(f"v_add_f32 v{base+a}, v{base+a}, v{base+b}")
bf16_round(20)
bf16_round(28)
e("v_mul_f32 v20, v36, v20")
bf16_round(20)
e("v_sub_f32 v21, 1.0, v36")
bf16_round(21)
e("v_mul_f32 v21, v21, v28")
bf16_round(21)
e("v_add_f32 v20, v20, v21")
e("v_cvt_pk_bf16_f32 v20, v20, v20")
e(f"s_mul_i32 s{S_T0}, s{S_SPLIT}, 160")
e(f"v_lshlrev_b32 v5, 1, v{V_TID}")
e(f"v_add_u32 v5, s{S_T0}, v5")
e(f"v_mov_b32 v6, {OOB:#x}")
e(f"v_cmp_gt_u32 vcc, 80, v{V_TID}")
e("s_nop 1")
e(f"v_cndmask_b32 v5, v6, v5, vcc")
e(f"buffer_store_short v20, v5, {srd(R_OUT)}, 0 offen")
e("s_branch " + ("L_fin" if OPT["stamps"] else "L_end"))

L_SAVE = L
cm("================= helper waves (8: H0, 9: H1) =================")
lab("L_helper")
S_H = 31
e(f"s_sub_u32 s{S_H}, s{S_WAVE}, 8")
e(f"v_mov_b32 v63, {OOB:#x}")
e(f"v_lshlrev_b32 v8, 4, v{V_LANE}")
for i in range(24):
    e(f"v_mov_b32 v{V_ACC+i}, 0")
cm("H0: clear own boxes to the sentinel (out1, out2 slot, qbox); zero LDS flag and zero block")
e(f"s_cmp_lg_u32 s{S_H}, 0")
e("s_cbranch_scc1 L_noclear")
e("v_mov_b32 v4, -1"); e("v_mov_b32 v5, -1"); e("v_mov_b32 v6, -1"); e("v_mov_b32 v7, -1")
e(f"s_mul_i32 s{S_T1}, s{S_LW}, {QB}")
e(f"s_add_u32 s{S_T1}, s{S_T1}, {WS_QBOX}")
e(f"v_add_u32 v11, s{S_T1}, v8")
e(f"buffer_store_dwordx4 v[4:7], v11, {srd(R_WS)}, 0 offen sc1")
e(f"v_cmp_gt_u32 vcc, 9, v{V_LANE}")
e("s_nop 1")
e(f"v_cndmask_b32 v11, v63, v11, vcc")
e(f"buffer_store_dwordx4 v[4:7], v11, {srd(R_WS)}, 0 offen offset:1024 sc1")
e(f"s_lshl_b32 s{S_T1}, s{S_LW}, 10")
e(f"v_add_u32 v9, s{S_T1}, v8")
e(f"buffer_store_dwordx4 v[4:7], v9, {srd(R_WS)}, 0 offen sc1")
e(f"s_lshl_b32 s{S_T1}, s{S_SPLIT}, 5")
e(f"s_add_u32 s{S_T1}, s{S_T1}, s{S_HEAD}")
e(f"s_mul_i32 s{S_T1}, s{S_T1}, 640")
e(f"s_add_u32 s{S_T1}, s{S_T1}, {WS_OUT2}")
e(f"v_add_u32 v10, s{S_T1}, v8")
e(f"v_cmp_gt_u32 vcc, 40, v{V_LANE}")
e("s_nop 1")
e(f"v_cndmask_b32 v10, v63, v10, vcc")
e(f"buffer_store_dwordx4 v[4:7], v10, {srd(R_WS)}, 0 offen sc1")
e(f"v_mov_b32 v12, {LDS_ZERO}")
e(f"ds_write_b128 v12, v[{V_ACC}:{V_ACC+3}]")
e(f"v_mov_b32 v12, {LDS_FLAG}")
e(f"ds_write_b32 v12, v{V_ACC}")
lab("L_noclear")
cm("wq rows: row0 = 80*split + 20g + 10h ; pairs T=0..4")
e(f"s_mul_i32 s{S_T0}, s{S_SPLIT}, 80")
e(f"s_mul_i32 s{S_T1}, s{S_H}, 10")
e(f"s_add_u32 s{S_T1}, s{S_T0}, s{S_T1}")
e(f"v_mul_u32_u24 v60, 20, v{Vg}")
e(f"v_add_u32 v60, s{S_T1}, v60")
e(f"v_lshlrev_b32 v61, 1, v60")
e(f"s_mov_b32 s{S_T1}, 12288")
e(f"v_mul_lo_u32 v60, v60, s{S_T1}")
e(f"v_lshl_add_u32 v{V_WQO}, v{Vc}, 4, v60")
e(f"v_add_u32 v{V_WQO+2}, 12416, v{V_WQO}")
e(f"v_add_u32 v62, 256, v{V_WQO}")
e(f"v_add_u32 v60, 12160, v{V_WQO}")
e(f"v_cndmask_b32 v{V_WQO+1}, v60, v62, s[{S_MC8}:{S_MC8+1}]")
hv = VM()
hv.issue(f"buffer_load_dwordx4 {vr(V_XW,4)}, v61, {srd(R_X)}, 0 offen")
hv.issue(f"buffer_load_dword v{V_XW+4}, v61, {srd(R_X)}, 0 offen offset:16")
hid = {}
for T in range(5):
    e(f"s_mov_b32 s{S_OFF}, {T*24576}")
    for j in range(3):
        hid[(T, j)] = hv.issue(f"buffer_load_dwordx4 {vr(RING0+4*(3*T+j),4)}, v{V_WQO+j}, {srd(R_WQ)}, s{S_OFF} offen{WNT}")
e(f"s_cmp_lg_u32 s{S_H}, 0")
e("s_cbranch_scc1 L_h1pre")
cm("H0: clears done -> arrive on the group counter (returning atomic, lane 0)")
e(f"s_lshl_b32 s{S_T1}, s{S_HEAD}, 2")
e(f"v_mov_b32 v10, s{S_T1}")
e(f"v_cmp_eq_u32 vcc, 0, v{V_LANE}")
e("v_mov_b32 v13, 1")
e("s_nop 0")
e(f"v_cndmask_b32 v10, v63, v10, vcc")
e("s_waitcnt lgkmcnt(0)")
e("s_barrier")
e("s_waitcnt vmcnt(17)")
e(f"buffer_atomic_add v13, v10, {srd(R_DBG)}, 0 offen sc0")
e("s_branch L_hq")
lab("L_h1pre")
cm("H1: gate/up partial loads: lane (cq=l&7 <6, r8=l>>3), rows 80*split + 10*r8 + k")
MB = RING0 + 60
e(f"v_lshrrev_b32 v9, 3, v{V_LANE}")
e(f"v_mul_u32_u24 v9, 10, v9")
e(f"v_add_u32 v9, s{S_T0}, v9")
e(f"v_lshlrev_b32 v10, 1, v9")
e(f"v_mul_u32_u24 v9, 3072, v9")
e(f"v_and_b32 v11, 7, v{V_LANE}")
e(f"v_lshl_add_u32 v9, v11, 4, v9")
e(f"v_cmp_gt_u32 vcc, 6, v11")
e("s_nop 1")
e(f"v_cndmask_b32 v57, v63, v9, vcc")
e(f"buffer_load_dwordx4 v[12:15], v10, {srd(R_X)}, 0 offen")
e(f"buffer_load_dword v16, v10, {srd(R_X)}, 0 offen offset:16")
NPRE = 5
for k in range(NPRE):
    e(f"s_mov_b32 s{S_OFF}, {k*3072}")
    e(f"buffer_load_dwordx4 {vr(MB+8*k,4)}, v57, {srd(R_W1)}, s{S_OFF} offen{WNT}")
    e(f"buffer_load_dwordx4 {vr(MB+8*k+4,4)}, v57, {srd(R_W3)}, s{S_OFF} offen{WNT}")
e("s_barrier")
lab("L_hq")
hpX, hpY, hpM, ht0, ht1 = 4, 5, 6, 7, 9
for T in range(5):
    k = hv.n - 1 - hid[(T, 2)]
    lx = newlabel("hw")
    e(f"s_cmp_eq_u32 s{S_H}, 1")
    e(f"s_cbranch_scc1 {lx}a")
    e(f"s_waitcnt vmcnt({k+1})")
    e(f"s_branch {lx}b")
    lab(lx + "a")
    e(f"s_waitcnt vmcnt({k+2+2*NPRE})")
    lab(lx + "b")
    e(f"v_lshlrev_b32 v{hpX}, 16, v{V_XW+T}")
    e(f"v_and_b32 v{hpY}, s{S_HI}, v{V_XW+T}")
    e(f"v_cndmask_b32 v{hpM}, v{hpY}, v{hpX}, s[{S_MC8}:{S_MC8+1}]")
    for j, p in enumerate((hpX, hpM, hpY)):
        fma_tile(RING0 + 4 * (3 * T + j), p, V_ACC + 8 * j, ht0, ht1)
stamp(1, 4, 5)
swap_reduce(V_ACC, 24)
red24_to_lds(V_ACC, 4, 5, 6, 7, sreg=S_H)
e("s_waitcnt lgkmcnt(0)")
e(f"s_cmp_eq_u32 s{S_H}, 1")
e("s_cbranch_scc1 L_h1")
cm("---- H0: last arriver tells the 8 WGs of the head that every box is cleared ----")
e("s_waitcnt vmcnt(0)")
e("v_readfirstlane_b32 s30, v13")
e(f"s_mul_i32 s{S_T0}, s{S_HEAD}, {8*QB}")
e(f"s_add_u32 s{S_T0}, s{S_T0}, {WS_QBOX+1152}")
e("s_cmp_lg_u32 s30, 7")
e("s_cbranch_scc1 L_h0nogo")
e(f"v_mul_u32_u24 v9, {QB}, v{V_LANE}")
e(f"v_add_u32 v9, s{S_T0}, v9")
e(f"v_cmp_gt_u32 vcc, 8, v{V_LANE}")
e("v_mov_b32 v12, 0")
e("s_nop 0")
e(f"v_cndmask_b32 v9, v63, v9, vcc")
e(f"buffer_store_dword v12, v9, {srd(R_WS)}, 0 offen sc1")
lab("L_h0nogo")
e(f"s_mul_i32 s{S_T0}, s{S_LW}, {QB}")
e(f"s_add_u32 s{S_T0}, s{S_T0}, {WS_QBOX+1152}")
e(f"v_mov_b32 v10, s{S_T0}")
e(f"buffer_load_dword v13, v10, {srd(R_WS)}, 0 offen sc1")
cm("---- H0: wait for H1's half, publish the WG partial, gather the 8 partials of the head ----")
e(f"v_mov_b32 v12, {LDS_FLAG}")
e(f"s_mov_b32 s{S_CNT}, {OPT['spin_cap']*8}")
lab("L_h0flag")
e("ds_read_b32 v14, v12")
e("s_waitcnt lgkmcnt(0)")
e("v_readfirstlane_b32 s30, v14")
e(f"s_sub_u32 s{S_CNT}, s{S_CNT}, 1")
e(f"s_cmp_eq_u32 s{S_CNT}, 0")
e("s_cbranch_scc1 L_h0go")
e("s_cmp_eq_u32 s30, 0")
e("s_cbranch_scc1 L_h0flag")
lab("L_h0go")
e(f"v_min_u32 v5, 752, v8")
e(f"ds_read_b128 v[20:23], v5 offset:{LDS_RED}")
e(f"ds_read_b128 v[24:27], v5 offset:{LDS_RED+768}")
e(f"ds_read_b128 v[28:31], v5 offset:{LDS_RED+1536}")
e(f"ds_read_b128 v[32:35], v5 offset:{LDS_RED+1536+768}")
e(f"s_mul_i32 s{S_T0}, s{S_LW}, {QB}")
e(f"s_add_u32 s{S_T0}, s{S_T0}, {WS_QBOX}")
e(f"v_add_u32 v9, s{S_T0}, v8")
e(f"v_cmp_gt_u32 s[{S_MSK}:{S_MSK+1}], 48, v{V_LANE}")
e("s_nop 1")
e(f"v_cndmask_b32 v9, v63, v9, s[{S_MSK}:{S_MSK+1}]")
e("s_waitcnt lgkmcnt(0)")
for i in range(4):
    e(f"v_add_f32 v{20+i}, v{20+i}, v{24+i}")
    e(f"v_add_f32 v{28+i}, v{28+i}, v{32+i}")
for i in range(4):
    e(f"v_add_f32 v{20+i}, v{20+i}, v{28+i}")
canon4(20, 12)
e(f"buffer_store_dwordx4 v[20:23], v9, {srd(R_WS)}, 0 offen sc1")
stamp(2, 4, 5)
e("s_waitcnt vmcnt(1)")
e(f"s_mov_b32 s{S_CNT}, {OPT['spin_cap']}")
lab("L_h0gospin")
e("v_readfirstlane_b32 s30, v13")
e(f"s_sub_u32 s{S_CNT}, s{S_CNT}, 1")
e(f"s_cmp_eq_u32 s{S_CNT}, 0")
e("s_cbranch_scc1 L_h0godone")
e("s_cmp_lg_u32 s30, -1")
e("s_cbranch_scc1 L_h0godone")
e(f"s_sleep {OPT['sleep']}")
e(f"buffer_load_dword v13, v10, {srd(R_WS)}, 0 offen sc1")
e("s_waitcnt vmcnt(0)")
e("s_branch L_h0gospin")
lab("L_h0godone")
stamp(3, 4, 5)
e(f"s_mul_i32 s{S_T0}, s{S_HEAD}, {8*QB}")
e(f"s_add_u32 s{S_T0}, s{S_T0}, {WS_QBOX}")
e(f"v_add_u32 v9, s{S_T0}, v8")
e(f"v_cndmask_b32 v9, v63, v9, s[{S_MSK}:{S_MSK+1}]")
poll_quads([RING0 + 4 * j for j in range(8)], 9, [QB * j for j in range(8)], 7)
for stp in (1, 2, 4):
    for j in range(0, 8, 2 * stp):
        for i in range(4):
            e(f"v_add_f32 v{RING0+4*j+i}, v{RING0+4*j+i}, v{RING0+4*(j+stp)+i}")
e(f"v_cvt_pk_bf16_f32 v20, v{RING0}, v{RING0+1}")
e(f"v_cvt_pk_bf16_f32 v21, v{RING0+2}, v{RING0+3}")
e(f"v_lshlrev_b32 v5, 3, v{V_LANE}")
e(f"s_and_saveexec_b64 s[{S_EX}:{S_EX+1}], s[{S_MSK}:{S_MSK+1}]")
e(f"ds_write_b64 v5, v[20:21] offset:{LDS_QBF}")
e(f"s_mov_b64 exec, s[{S_EX}:{S_EX+1}]")
e("s_waitcnt lgkmcnt(0)")
stamp(4, 4, 5)
e("s_barrier")
e("s_branch " + ("L_fin" if OPT["stamps"] else "L_end"))

lab("L_h1")
e(f"v_mov_b32 v9, {LDS_FLAG}")
e("v_mov_b32 v10, 1")
e("ds_write_b32 v9, v10")
cm("---- H1: gate/up partial over this WG's 80 rows ----")
for k in range(NPRE, 10):
    e(f"s_mov_b32 s{S_OFF}, {k*3072}")
    r = RING0 + 8 * (k - NPRE)
    e(f"buffer_load_dwordx4 {vr(r,4)}, v57, {srd(R_W1)}, s{S_OFF} offen{WNT}")
    e(f"buffer_load_dwordx4 {vr(r+4,4)}, v57, {srd(R_W3)}, s{S_OFF} offen{WNT}")
MA = V_ACC
for i in range(16):
    e(f"v_mov_b32 v{MA+i}, 0")
for k in range(10):
    e(f"s_waitcnt vmcnt({18-2*k})")
    if k % 2 == 0:
        e(f"v_lshlrev_b32 v5, 16, v{12+k//2}")
    else:
        e(f"v_and_b32 v5, s{S_HI}, v{12+k//2}")
    r = MB + 8 * k if k < NPRE else RING0 + 8 * (k - NPRE)
    fma_tile(r, 5, MA, 6, 7)
    fma_tile(r + 4, 5, MA + 8, 6, 7)
swap_reduce(MA, 16)
e("s_nop 1")
for i in range(4):
    e(f"v_add_f32_dpp v{MA+i}, v{MA+i}, v{MA+i} row_ror:8 row_mask:0xf bank_mask:0xf")
canon4(MA, 12)
cm("store at qbox + 768 + (g>>1)*192 + cq*32 + (g&1)*16 for (l&15)<6")
e(f"v_lshrrev_b32 v5, 5, v{V_LANE}")
e(f"v_mul_u32_u24 v5, 192, v5")
e(f"v_bfe_u32 v6, v{V_LANE}, 4, 1")
e(f"v_lshl_add_u32 v5, v6, 4, v5")
e(f"v_and_b32 v6, 15, v{V_LANE}")
e(f"v_lshl_add_u32 v5, v6, 5, v5")
e(f"s_mul_i32 s{S_T0}, s{S_LW}, {QB}")
e(f"s_add_u32 s{S_T0}, s{S_T0}, {WS_QBOX+768}")
e(f"v_add_u32 v5, s{S_T0}, v5")
e(f"v_cmp_gt_u32 vcc, 6, v6")
e("s_nop 1")
e(f"v_cndmask_b32 v5, v63, v5, vcc")
e(f"buffer_store_dwordx4 v[{MA}:{MA+3}], v5, {srd(R_WS)}, 0 offen sc1")
cm("gate logit operands: lane l owns elements 10l..10l+9")
e(f"v_mul_u32_u24 v4, 20, v{V_LANE}")
e(f"buffer_load_dwordx4 v[44:47], v4, {srd(R_X)}, 0 offen")
e(f"buffer_load_dword v48, v4, {srd(R_X)}, 0 offen offset:16")
e(f"buffer_load_dwordx4 v[52:55], v4, {srd(R_GW)}, 0 offen")
e(f"buffer_load_dword v56, v4, {srd(R_GW)}, 0 offen offset:16")
stamp(2, 4, 5)
e("s_waitcnt lgkmcnt(0)")
e("s_barrier")
cm("slice counter: this WG's out2 slot is cleared (H0 drained the clears before barrier #1)")
e(f"s_lshl_b32 s{S_T0}, s{S_SPLIT}, 2")
e(f"s_add_u32 s{S_T0}, s{S_T0}, 128")
e(f"v_mov_b32 v10, s{S_T0}")
e(f"v_cmp_eq_u32 vcc, 0, v{V_LANE}")
e("v_mov_b32 v12, 1")
e("s_nop 0")
e(f"v_cndmask_b32 v10, v63, v10, vcc")
e(f"buffer_atomic_add v12, v10, {srd(R_DBG)}, 0 offen")
cm("gather the 8 gate/up partials: lanes 0..11 gate quads, lanes 16..27 up quads")
e(f"v_and_b32 v5, 15, v{V_LANE}")
e(f"v_lshlrev_b32 v6, 4, v5")
e(f"v_lshrrev_b32 v7, 4, v{V_LANE}")
e(f"v_mul_u32_u24 v9, 192, v7")
e(f"v_add_u32 v6, v6, v9")
e(f"s_mul_i32 s{S_T0}, s{S_HEAD}, {8*QB}")
e(f"s_add_u32 s{S_T0}, s{S_T0}, {WS_QBOX+768}")
e(f"v_add_u32 v6, s{S_T0}, v6")
e(f"v_cmp_gt_u32 vcc, 12, v5")
e(f"v_cmp_gt_u32 s[{S_MSK}:{S_MSK+1}], 32, v{V_LANE}")
e(f"s_and_b64 vcc, vcc, s[{S_MSK}:{S_MSK+1}]")
e("s_nop 1")
e(f"v_cndmask_b32 v6, v63, v6, vcc")
poll_quads([RING0 + 4 * j for j in range(8)], 6, [QB * j for j in range(8)], 7)
for stp in (1, 2, 4):
    for j in range(0, 8, 2 * stp):
        for i in range(4):
            e(f"v_add_f32 v{RING0+4*j+i}, v{RING0+4*j+i}, v{RING0+4*(j+stp)+i}")
G0 = RING0; U0 = RING0 + 4
for i in range(4):
    bf16_round(G0 + i)
for i in range(4):
    e(f"v_mov_b32 v{U0+i}, v{G0+i}")
e("s_nop 1")
for i in range(4):
    e(f"v_permlane16_swap_b32 v{G0+i}, v{U0+i}")
for i in range(4):
    e(f"v_mul_f32 v{20+i}, s{S_L2E}, v{G0+i}")
    e(f"v_sub_f32 v{20+i}, 0, v{20+i}")
    e(f"v_exp_f32 v{20+i}, v{20+i}")
    e("s_nop 0")
    e(f"v_add_f32 v{20+i}, 1.0, v{20+i}")
    e(f"v_rcp_f32 v{20+i}, v{20+i}")
    e("s_nop 0")
    e(f"v_mul_f32 v{20+i}, v{G0+i}, v{20+i}")
    bf16_round(20 + i)
    e(f"v_mul_f32 v{20+i}, v{20+i}, v{U0+i}")
    bf16_round(20 + i)
e(f"v_cmp_gt_u32 vcc, 12, v{V_LANE}")
e(f"s_and_saveexec_b64 s[{S_EX}:{S_EX+1}], vcc")
e(f"ds_write_b128 v8, v[20:23] offset:{LDS_H48}")
e(f"s_mov_b64 exec, s[{S_EX}:{S_EX+1}]")
cm("gate logit")
e("v_mov_b32 v20, 0")
for k in range(10):
    if k % 2 == 0:
        e(f"v_lshlrev_b32 v5, 16, v{44+k//2}")
        e(f"v_lshlrev_b32 v6, 16, v{52+k//2}")
    else:
        e(f"v_and_b32 v5, s{S_HI}, v{44+k//2}")
        e(f"v_and_b32 v6, s{S_HI}, v{52+k//2}")
    e("v_mul_f32 v6, v5, v6")
    bf16_round(6)
    e("v_add_f32 v20, v20, v6")
allgroups("v_add_f32", 20, 21)
for sh in (8, 4, 2, 1):
    e("s_nop 1")
    e(f"v_add_f32_dpp v20, v20, v20 row_ror:{sh} row_mask:0xf bank_mask:0xf")
bf16_round(20)
e(f"v_mul_f32 v22, s{S_L2E}, v20")
e("v_sub_f32 v22, 0, v22")
e("v_exp_f32 v22, v22")
e("s_nop 0")
e("v_add_f32 v22, 1.0, v22")
e("v_rcp_f32 v22, v22")
e("s_nop 0")
bf16_round(22)
e(f"v_mov_b32 v4, {LDS_HG+28}")
e("ds_write_b32 v4, v22")
e("s_waitcnt lgkmcnt(0)")
stamp(3, 4, 5)
e("s_barrier")
e("s_branch " + ("L_fin" if OPT["stamps"] else "L_end"))

if OPT["stamps"]:
    lab("L_fin")
    stamp(9, 4, 5)
    e("s_waitcnt lgkmcnt(0)")
    e(f"v_and_b32 v4, 15, v{V_LANE}")
    e("v_lshlrev_b32 v4, 2, v4")
    e("v_add_u32 v5, s100, v4")
    e(f"ds_read_b32 v6, v5 offset:{LDS_STAMP}")
    e("s_lshl_b32 s98, s2, 10")
    e("s_add_u32 s98, s98, 0x100000")
    e("v_add_u32 v5, s98, v5")
    e("s_waitcnt lgkmcnt(0)")
    e(f"buffer_store_dword v6, v5, {srd(R_WS)}, 0 offen")
lab("L_end")
e("s_endpgm")
L.append('.section .rodata,"a"')
L.append(".p2align 6")
L.append(f".amdhsa_kernel {NAME}_kernel")
L.append(f"  .amdhsa_next_free_vgpr {NVGPR}")
L.append("  .amdhsa_next_free_sgpr 102")
L.append(f"  .amdhsa_accum_offset {NVGPR}")
L.append("  .amdhsa_group_segment_fixed_size 0")
L.append("  .amdhsa_kernarg_size 104")
L.append("  .amdhsa_user_sgpr_count 2")
L.append("  .amdhsa_user_sgpr_kernarg_segment_ptr 1")
L.append("  .amdhsa_system_sgpr_workgroup_id_x 1")
L.append("  .amdhsa_float_denorm_mode_32 3")
L.append(".end_amdhsa_kernel")
out = sys.argv[1] if len(sys.argv) > 1 else f"cdna_kernels/{NAME}.s"
open(out, "w").write("\n".join(L) + "\n")
print("wrote", out, len(L), "lines")
```

```python
import sys

NAME = "gated_mix__mha_block_cached__glu_gated_swiglu__decode"
HEADER = open(f"cdna_kernels/{NAME}.s.ref").read().split("; Override launch geometry")[0]

OPT = dict(
    w_nt=True,
    spin_cap=400000,
    sleep=1,
    stamps=0,
    depth=5,
    kv_nt=1,
)
for a in sys.argv[2:]:
    k, v = a.split("=")
    OPT[k] = type(OPT[k])(int(v))


L = []
def e(s=""):
    L.append("    " + s if s and not s.endswith(":") else s)
def lab(s):
    L.append(s + ":")
def cm(s):
    L.append("    ; " + s)

P_X, P_K, P_V, P_WQ, P_WO, P_BX, P_W1, P_W3, P_W2, P_GW, P_OUT, P_DBG, P_WS = [4 + 2 * i for i in range(13)]
R_K, R_V, R_WQ, R_WO, R_W1, R_W3, R_W2, R_X, R_GW, R_OUT, R_DBG, R_WS = [32 + 4 * i for i in range(12)]
S_HEAD, S_SPLIT, S_WAVE, S_OFF, S_HI, S_L2E, S_SCALE, S_T0, S_T1, S_T2, S_CNT = 80, 81, 82, 83, 84, 85, 86, 87, 92, 93, 94
S_MC8 = 88
S_MSK = 90
S_EX = 96
def srd(r): return f"s[{r}:{r+3}]"

V_TID, V_KOFF, V_VOFF, V_LANE = 0, 1, 2, 3
V_SC = 4
V_ACC = 20
V_QF = 20
V_MACC = 36
V_XW = 44
V_WQO = 54
V_T = 52
RING0 = 64
NVGPR = 168
NS = (NVGPR - RING0) // 4
def vr(a, n): return f"v[{a}:{a+n-1}]"

LDS_RED = 0
LDS_STAT = 12288
LDS_MLPR = 12352
LDS_QBF = 12864
LDS_ZERO = 13248
LDS_HG = 13280
LDS_GATH = 13312
LDS_RED2 = 21504
LDS_RED3 = 26624
LDS_STAMP = 31744
LDS_TOTAL = 31744 + (640 if OPT["stamps"] else 0)

WS_OUT1 = 0
WS_OUT2 = 262144
WS_QBOX = WS_OUT2 + 8 * 32 * 640
QB = 1280
WS_BYTES = WS_QBOX + 256 * QB if not OPT["stamps"] else (2 << 20)
LDS_H48 = LDS_MLPR
LDS_FLAG = LDS_HG + 24
OOB = 0x80000000

class VM:
    def __init__(self): self.n = 0
    def issue(self, s):
        e(s); self.n += 1; return self.n - 1
    def wait(self, idx):
        k = self.n - 1 - idx
        assert k >= 0
        e(f"s_waitcnt vmcnt({min(k, 63)})")
vm = VM()

WNT = " nt" if OPT["w_nt"] else ""
KVNT = {0: "", 1: " nt", 2: " sc1", 3: " sc0 sc1", 4: " sc1 nt", 5: " sc0"}[OPT["kv_nt"]]

def make_srd(r, p, off_s=None, nrec=None, nrec_s=None):
    if off_s is None:
        e(f"s_mov_b32 s{r}, s{p}")
        e(f"s_and_b32 s{r+1}, s{p+1}, 0xffff")
    else:
        e(f"s_add_u32 s{r}, s{p}, s{off_s}")
        e(f"s_addc_u32 s{r+1}, s{p+1}, 0")
        e(f"s_and_b32 s{r+1}, s{r+1}, 0xffff")
    if nrec_s is not None:
        e(f"s_sub_u32 s{r+2}, {nrec}, s{nrec_s}")
    else:
        e(f"s_mov_b32 s{r+2}, {nrec}")
    e(f"s_mov_b32 s{r+3}, 0x00020000")

def fma_tile(src, p, acc, t0, t1):
    for d in range(4):
        e(f"v_lshlrev_b32 v{t0}, 16, v{src+d}")
        e(f"v_and_b32 v{t1}, s{S_HI}, v{src+d}")
        e(f"v_fmac_f32 v{acc+2*d}, v{p}, v{t0}")
        e(f"v_fmac_f32 v{acc+2*d+1}, v{p}, v{t1}")

def swap_reduce(acc, n):
    h = n // 2
    e("s_nop 1")
    for i in range(h):
        e(f"v_permlane32_swap_b32 v{acc+i}, v{acc+i+h}")
    for i in range(h):
        e(f"v_add_f32 v{acc+i}, v{acc+i}, v{acc+i+h}")
    q = h // 2
    e("s_nop 1")
    for i in range(q):
        e(f"v_permlane16_swap_b32 v{acc+i}, v{acc+i+q}")
    for i in range(q):
        e(f"v_add_f32 v{acc+i}, v{acc+i}, v{acc+i+q}")

def allgroups(op, v, t):
    e(f"v_mov_b32 v{t}, v{v}")
    e("s_nop 1")
    e(f"v_permlane32_swap_b32 v{v}, v{t}")
    e(f"{op} v{v}, v{v}, v{t}")
    e(f"v_mov_b32 v{t}, v{v}")
    e("s_nop 1")
    e(f"v_permlane16_swap_b32 v{v}, v{t}")
    e(f"{op} v{v}, v{v}, v{t}")

def red24_to_lds(acc, tA, tB, tC, tD, sreg=None):
    e(f"v_and_b32 v{tD}, 15, v{V_LANE}")
    e(f"v_lshlrev_b32 v{tD}, 5, v{tD}")
    e(f"s_mul_i32 s{S_T0}, s{S_WAVE if sreg is None else sreg}, 1536")
    e(f"v_add_u32 v{tD}, s{S_T0}, v{tD}")
    e(f"v_lshrrev_b32 v{tA}, 4, v{V_LANE}")
    e(f"v_mul_u32_u24 v{tA}, 6, v{tA}")
    for p in range(3):
        e(f"v_add_u32 v{tB}, {2*p}, v{tA}")
        e(f"v_lshrrev_b32 v{tC}, 3, v{tB}")
        e(f"v_lshl_add_u32 v{tC}, v{tC}, 9, v{tD}")
        e(f"v_and_b32 v{tB}, 7, v{tB}")
        e(f"v_lshl_add_u32 v{tC}, v{tB}, 2, v{tC}")
        e(f"ds_write_b64 v{tC}, v[{acc+2*p}:{acc+2*p+1}] offset:{LDS_RED}")

def canon4(r, t):
    e(f"v_mov_b32 v{t}, 0x7fc00000")
    for i in range(4):
        e(f"v_cmp_eq_u32 vcc, -1, v{r+i}")
        e("s_nop 1")
        e(f"v_cndmask_b32 v{r+i}, v{r+i}, v{t}, vcc")

def bf16_round(v, t=None):
    e(f"v_cvt_pk_bf16_f32 v{v}, v{v}, v{v}")
    e(f"v_lshlrev_b32 v{v}, 16, v{v}")

def stamp(k, ta, tb):
    if not OPT["stamps"]:
        return
    e("s_memrealtime s[98:99]")
    e(f"s_lshl_b32 s100, s{S_WAVE}, 6")
    e("s_waitcnt lgkmcnt(0)")
    e(f"v_mov_b32 v{ta}, s98")
    e(f"v_mov_b32 v{tb}, s100")
    e(f"ds_write_b32 v{tb}, v{ta} offset:{LDS_STAMP+4*k}")

_lbl = [0]
def newlabel(p):
    _lbl[0] += 1
    return f"L_{p}_{_lbl[0]}"

def spin_counter(lane_sel, target, vcnt, voff, hi=False):
    lo, done = newlabel("cspin"), newlabel("cdone")
    e(f"s_mov_b32 s{S_CNT}, {OPT['spin_cap']}")
    lab(lo)
    e(f"v_readlane_b32 s{S_T0}, v{vcnt}, {lane_sel}")
    e("s_nop 3")
    if hi:
        e(f"s_lshr_b32 s{S_T0}, s{S_T0}, 16")
    else:
        e(f"s_and_b32 s{S_T0}, s{S_T0}, 0xffff")
    e(f"s_cmp_ge_u32 s{S_T0}, {target}")
    e(f"s_cbranch_scc1 {done}")
    e(f"s_sub_u32 s{S_CNT}, s{S_CNT}, 1")
    e(f"s_cmp_eq_u32 s{S_CNT}, 0")
    e(f"s_cbranch_scc1 {done}")
    e("s_sleep 32")
    e(f"buffer_load_dword v{vcnt}, v{voff}, {srd(R_DBG)}, 0 offen sc1")
    e("s_waitcnt vmcnt(0)")
    e(f"s_branch {lo}")
    lab(done)

def poll_quads(regs, voff, offs, t):
    big = max(offs) > 4095
    lo, done = newlabel("poll"), newlabel("pdone")
    e(f"s_mov_b32 s{S_CNT}, {OPT['spin_cap']}")
    lab(lo)
    for r, o in zip(regs, offs):
        if big:
            e(f"s_mov_b32 s{S_OFF}, {o}")
            e(f"buffer_load_dwordx4 {vr(r,4)}, v{voff}, {srd(R_WS)}, s{S_OFF} offen sc1")
        else:
            e(f"buffer_load_dwordx4 {vr(r,4)}, v{voff}, {srd(R_WS)}, 0 offen offset:{o} sc1")
    e("s_waitcnt vmcnt(0)")
    first = True
    for r in regs:
        if first:
            e(f"v_max_u32 v{t}, v{r}, v{r+1}")
            first = False
        else:
            e(f"v_max3_u32 v{t}, v{t}, v{r}, v{r+1}")
        e(f"v_max3_u32 v{t}, v{t}, v{r+2}, v{r+3}")
    e(f"v_cmp_eq_u32 vcc, -1, v{t}")
    e("s_nop 4")
    e(f"s_cbranch_vccz {done}")
    e(f"s_sub_u32 s{S_CNT}, s{S_CNT}, 1")
    e(f"s_cmp_eq_u32 s{S_CNT}, 0")
    e(f"s_cbranch_scc1 {done}")
    e(f"s_sleep {OPT['sleep']}")
    e(f"s_branch {lo}")
    lab(done)

free_slots = list(range(NS))
slot_of = {}
vmid = {}
V_TWO, V_TWO2 = 60, 61
def sl(kind, i): return RING0 + 4 * slot_of[(kind, i)]
def issue(kind, i):
    free_slots.sort()
    slot_of[(kind, i)] = free_slots.pop(-1 if kind == "tw" else 0)
    r = sl(kind, i)
    n = (kind, i)
    if kind == "k":
        T, j = divmod(i, 3)
        e(f"s_mov_b32 s{S_OFF}, {T*3072}")
        vmid[n] = vm.issue(f"buffer_load_dwordx4 {vr(r,4)}, v{V_KOFF}, {srd(R_K)}, s{S_OFF} offen offset:{256*j}{KVNT}")
    elif kind == "v":
        T, j = divmod(i, 3)
        e(f"s_mov_b32 s{S_OFF}, {T*3072}")
        vmid[n] = vm.issue(f"buffer_load_dwordx4 {vr(r,4)}, v{V_VOFF}, {srd(R_V)}, s{S_OFF} offen offset:{256*j}{KVNT}")
    elif kind == "tw":
        if i < 6:
            e(f"s_mov_b32 s{S_OFF}, {i*40960}")
            vmid[n] = vm.issue(f"buffer_load_dwordx4 {vr(r,4)}, v{V_TWO}, {srd(R_WO)}, s{S_OFF} offen{WNT}")
        else:
            e(f"s_mov_b32 s{S_OFF}, {(i-6)*40960}")
            vo = V_TWO if i == 6 else V_TWO2
            vmid[n] = vm.issue(f"buffer_load_dwordx4 {vr(r,4)}, v{vo}, {srd(R_W2)}, s{S_OFF} offen{WNT}")
def release(kind, idxs):
    for i in idxs:
        free_slots.append(slot_of[(kind, i)])
main = [("k", i) for i in range(48)] + [("v", i) for i in range(36)] + [("tw", i) for i in range(8)] + [("v", i) for i in range(36, 48)]
pos_of = {n: i for i, n in enumerate(main)}
st = dict(pos=0, landed=0)
D = OPT["depth"]
def can_issue():
    return st["pos"] < len(main) and bool(free_slots)
def wait_main(j):
    if st["landed"] <= j:
        vm.wait(vmid[main[j]])
        st["landed"] = j + 1
def paced_issue():
    p = st["pos"]
    if p >= D:
        wait_main(p - D)
    issue(*main[p]); st["pos"] += 1

L.append(HEADER.rstrip("\n"))
L.append(f"; @launch grid=(256,1,1) block=(640,1,1) lds={LDS_TOTAL}")
L.append('.amdgcn_target "amdgcn-amd-amdhsa--gfx950"')
L.append(".text")
L.append(f".globl {NAME}_kernel")
L.append(".p2align 8")
L.append(f".type {NAME}_kernel,@function")
lab(f"{NAME}_kernel")
e("s_cmp_ge_u32 s2, 256")
e("s_cbranch_scc1 L_end")
e("s_load_dwordx16 s[4:19], s[0:1], 0")
e("s_load_dwordx8 s[20:27], s[0:1], 64")
e("s_load_dwordx2 s[28:29], s[0:1], 96")
cm("head = (b&7)*4 + (b>>6) ; split = (b>>3)&7")
e(f"s_and_b32 s{S_T0}, s2, 7")
e(f"s_lshl_b32 s{S_T0}, s{S_T0}, 2")
e(f"s_lshr_b32 s{S_T1}, s2, 6")
e(f"s_add_u32 s{S_HEAD}, s{S_T0}, s{S_T1}")
e(f"s_lshr_b32 s{S_SPLIT}, s2, 3")
e(f"s_and_b32 s{S_SPLIT}, s{S_SPLIT}, 7")
e(f"v_lshrrev_b32 v{V_T}, 6, v{V_TID}")
e(f"v_and_b32 v{V_LANE}, 63, v{V_TID}")
e(f"v_readfirstlane_b32 s{S_WAVE}, v{V_T}")
e(f"s_mov_b32 s{S_HI}, 0xffff0000")
e(f"s_mov_b32 s{S_L2E}, 0x3fb8aa3b")
e(f"s_mov_b32 s{S_SCALE}, 0x3d93cd3a")
Vc, Vg = 58, 59
e(f"v_and_b32 v{Vc}, 15, v{V_LANE}")
e(f"v_lshrrev_b32 v{Vg}, 4, v{V_LANE}")
e(f"v_cmp_gt_u32 s[{S_MC8}:{S_MC8+1}], 8, v{Vc}")
cm("K voffset = w*49152 + m*768 + g*64 + u*16 ; V voffset = w*49152 + g*768 + c*16")
e(f"s_mul_i32 s{S_T0}, s{S_WAVE}, 49152")
e(f"v_bfe_u32 v60, v{V_LANE}, 2, 2")
e(f"v_mul_u32_u24 v60, 768, v60")
e(f"v_lshl_add_u32 v60, v{Vg}, 6, v60")
e(f"v_and_b32 v61, 3, v{V_LANE}")
e(f"v_lshl_add_u32 v60, v61, 4, v60")
e(f"v_add_u32 v{V_KOFF}, s{S_T0}, v60")
e(f"v_mul_u32_u24 v60, 768, v{Vg}")
e(f"v_lshl_add_u32 v60, v{Vc}, 4, v60")
e(f"v_add_u32 v{V_VOFF}, s{S_T0}, v60")
e("s_waitcnt lgkmcnt(0)")
cm("SRDs")
S_LW = 95
e(f"s_lshl_b32 s{S_LW}, s{S_HEAD}, 3")
e(f"s_add_u32 s{S_LW}, s{S_LW}, s{S_SPLIT}")
e(f"s_mul_i32 s{S_T1}, s{S_LW}, 393216")
make_srd(R_K, P_K, S_T1, 393216)
make_srd(R_V, P_V, S_T1, 393216)
make_srd(R_X, P_X, None, 1280)
make_srd(R_GW, P_GW, None, 1280)
e(f"s_mul_i32 s{S_T1}, s{S_HEAD}, 384")
make_srd(R_WQ, P_WQ, S_T1, 640 * 12288, S_T1)
e(f"s_mul_i32 s{S_T1}, s{S_HEAD}, 96")
make_srd(R_W1, P_W1, S_T1, 640 * 3072, S_T1)
make_srd(R_W3, P_W3, S_T1, 640 * 3072, S_T1)
make_srd(R_WS, P_WS, None, WS_BYTES)
make_srd(R_DBG, P_DBG, None, 256)
make_srd(R_OUT, P_OUT, None, 1280)
e(f"s_mul_i32 s{S_T1}, s{S_HEAD}, {192*1280}")
e(f"s_mul_i32 s{S_T2}, s{S_SPLIT}, 160")
e(f"s_add_u32 s{S_T1}, s{S_T1}, s{S_T2}")
make_srd(R_WO, P_WO, S_T1, 6144 * 1280, S_T1)
e(f"s_mul_i32 s{S_T1}, s{S_HEAD}, {48*1280}")
e(f"s_add_u32 s{S_T1}, s{S_T1}, s{S_T2}")
make_srd(R_W2, P_W2, S_T1, 1536 * 1280, S_T1)
stamp(0, 4, 5)
e(f"s_cmp_ge_u32 s{S_WAVE}, 8")
e("s_cbranch_scc1 L_helper")

cm("================= streaming waves =================")
cm("park K tiles until q is ready")
for _ in range(D):
    paced_issue()
e("s_barrier")
while can_issue():
    paced_issue()
cm("tail weight voffsets: rgrp*1280 + cc*16 (cc<10)")
e(f"v_lshrrev_b32 v{V_T}, 4, v{V_LANE}")
e(f"s_lshl_b32 s{S_T0}, s{S_WAVE}, 2")
e(f"v_add_u32 v{V_T}, s{S_T0}, v{V_T}")
e(f"v_mul_u32_u24 v{V_T}, 1280, v{V_T}")
e(f"v_and_b32 v{V_T+1}, 15, v{V_LANE}")
e(f"v_lshl_add_u32 v{V_T}, v{V_T+1}, 4, v{V_T}")
e(f"v_mov_b32 v{V_T+2}, {OOB:#x}")
e(f"v_cmp_gt_u32 vcc, 10, v{V_T+1}")
e("s_nop 1")
e(f"v_cndmask_b32 v{V_TWO}, v{V_T+2}, v{V_T}, vcc")
e(f"s_cmp_lt_u32 s{S_WAVE}, 4")
e(f"s_cselect_b64 vcc, vcc, 0")
e("s_nop 1")
e(f"v_cndmask_b32 v{V_TWO2}, v{V_T+2}, v{V_T}, vcc")
cm("q fragment addresses: g=l>>4,u=l&3 ; qo = g*64+u*16")
e(f"v_lshrrev_b32 v4, 4, v{V_LANE}")
e(f"v_and_b32 v5, 3, v{V_LANE}")
e(f"v_lshlrev_b32 v5, 4, v5")
e(f"v_lshl_add_u32 v5, v4, 6, v5")
e(f"v_add_u32 v5, {LDS_QBF}, v5")
e(f"v_mov_b32 v6, {LDS_ZERO}")
e(f"v_cmp_gt_u32 vcc, 32, v{V_LANE}")
e(f"v_add_u32 v7, 256, v5")
e(f"v_subrev_u32 v8, 128, v5")
e(f"v_cndmask_b32 v7, v6, v7, vcc")
e(f"v_cndmask_b32 v8, v8, v6, vcc")
V_MAX = 63
e(f"v_mov_b32 v{V_MAX}, 0xff800000")
stamp(1, 52, 53)
e("s_barrier")
B0, B1L, B1H, B2 = V_QF, V_QF + 4, V_QF + 8, V_QF + 12
e(f"ds_read_b128 {vr(B0,4)}, v5")
e(f"ds_read_b128 {vr(B1L,4)}, v7")
e(f"ds_read_b128 {vr(B1H,4)}, v8")
e(f"ds_read_b128 {vr(B2,4)}, v5 offset:128")
e("s_waitcnt lgkmcnt(0)")
stamp(2, 52, 53)

def post_scores(T):
    aX = V_MACC + 8 * (T & 1); aY = aX + 4
    tx, ty = V_T, V_T + 1
    e(f"v_mov_b32_dpp v{tx}, v{aX} quad_perm:[0,0,0,0] row_mask:0xf bank_mask:0xf")
    e(f"v_mov_b32_dpp v{ty}, v{aY} quad_perm:[0,0,0,0] row_mask:0xf bank_mask:0xf")
    for r in (1, 2, 3):
        e(f"v_add_f32_dpp v{tx}, v{aX+r}, v{tx} quad_perm:[{r},{r},{r},{r}] row_mask:0xf bank_mask:0xf")
        e(f"v_add_f32_dpp v{ty}, v{aY+r}, v{ty} quad_perm:[{r},{r},{r},{r}] row_mask:0xf bank_mask:0xf")
    e(f"v_cvt_pk_bf16_f32 v{tx}, v{tx}, v{ty}")
    e(f"v_and_b32 v{ty}, s{S_HI}, v{tx}")
    e(f"v_lshlrev_b32 v{tx}, 16, v{tx}")
    e(f"v_mul_f32 v{tx}, s{S_SCALE}, v{tx}")
    e(f"v_mul_f32 v{ty}, s{S_SCALE}, v{ty}")
    e(f"v_cvt_pk_bf16_f32 v{V_SC+T}, v{tx}, v{ty}")
    e(f"v_and_b32 v{ty}, s{S_HI}, v{V_SC+T}")
    e(f"v_lshlrev_b32 v{tx}, 16, v{V_SC+T}")
    e(f"v_max3_f32 v{V_MAX}, v{V_MAX}, v{tx}, v{ty}")
V_ML2 = 62
V_LS = 59
pX, pY, pM, t0, t1 = 52, 53, 54, 55, 56
V_CNT, V_CNTO = 57, 58
def consume_k(T):
    n0 = 3 * T
    aX = V_MACC + 8 * (T & 1); aY = aX + 4
    cm(f"K tile {T}")
    e(f"v_mfma_f32_16x16x32_bf16 {vr(aX,4)}, {vr(sl('k',n0),4)}, {vr(B0,4)}, 0")
    e(f"v_mfma_f32_16x16x32_bf16 {vr(aY,4)}, {vr(sl('k',n0+1),4)}, {vr(B1H,4)}, 0")
    e(f"v_mfma_f32_16x16x32_bf16 {vr(aX,4)}, {vr(sl('k',n0+1),4)}, {vr(B1L,4)}, {vr(aX,4)}")
    e(f"v_mfma_f32_16x16x32_bf16 {vr(aY,4)}, {vr(sl('k',n0+2),4)}, {vr(B2,4)}, {vr(aY,4)}")
    release("k", range(n0, n0 + 3))
    if T > 0:
        post_scores(T - 1)
    else:
        e("s_nop 7")
    if T == 15:
        e("s_nop 1")
        post_scores(15)
        stamp(3, 52, 53)
        cm("wave max")
        allgroups("v_max_f32", V_MAX, V_T)
        e(f"v_mul_f32 v{V_ML2}, s{S_L2E}, v{V_MAX}")
        e(f"v_mov_b32 v{V_LS}, 0")
        for i in range(24):
            e(f"v_mov_b32 v{V_ACC+i}, 0")
def consume_v(T):
    n0 = 3 * T
    cm(f"V tile {T}")
    e(f"v_lshlrev_b32 v{pX}, 16, v{V_SC+T}")
    e(f"v_and_b32 v{pY}, s{S_HI}, v{V_SC+T}")
    e(f"v_fma_f32 v{pX}, v{pX}, s{S_L2E}, -v{V_ML2}")
    e(f"v_fma_f32 v{pY}, v{pY}, s{S_L2E}, -v{V_ML2}")
    e(f"v_exp_f32 v{pX}, v{pX}")
    e(f"v_exp_f32 v{pY}, v{pY}")
    e("s_nop 0")
    e(f"v_cndmask_b32 v{pM}, v{pY}, v{pX}, s[{S_MC8}:{S_MC8+1}]")
    e(f"v_add_f32 v{V_LS}, v{V_LS}, v{pX}")
    e(f"v_add_f32 v{V_LS}, v{V_LS}, v{pY}")
    for j, p in enumerate((pX, pM, pY)):
        fma_tile(sl("v", n0 + j), p, V_ACC + 8 * j, t0, t1)
    release("v", range(n0, n0 + 3))
tile = 0
id_cnt = None
while tile < 32:
    last = pos_of[("k", 3 * tile + 2) if tile < 16 else ("v", 3 * (tile - 16) + 2)]
    if can_issue():
        paced_issue()
        if st["pos"] == len(main) - 6:
            cm("prefetch the clear-counters (lane0: group, lane1: slice)")
            e(f"v_mov_b32 v{V_CNTO}, s{S_HEAD}")
            e(f"v_mov_b32 v{V_CNT}, s{S_SPLIT}")
            e(f"v_add_u32 v{V_CNT}, 32, v{V_CNT}")
            e(f"v_cmp_eq_u32 vcc, 0, v{V_LANE}")
            e("s_nop 1")
            e(f"v_cndmask_b32 v{V_CNTO}, v{V_CNT}, v{V_CNTO}, vcc")
            e(f"v_lshlrev_b32 v{V_CNTO}, 2, v{V_CNTO}")
            id_cnt = vm.issue(f"buffer_load_dword v{V_CNT}, v{V_CNTO}, {srd(R_DBG)}, 0 offen sc1")
    else:
        wait_main(last)
    if st["landed"] > last:
        if tile < 16: consume_k(tile)
        else: consume_v(tile - 16)
        tile += 1
assert st["pos"] == len(main) and id_cnt is not None
stamp(4, 4, 5)
cm("==== T0: wave reduce ====")
swap_reduce(V_ACC, 24)
red24_to_lds(V_ACC, 4, 5, 6, 7)
allgroups("v_add_f32", V_LS, V_T)
e(f"s_lshl_b32 s{S_T0}, s{S_WAVE}, 3")
e(f"v_mov_b32 v4, s{S_T0}")
e(f"v_mov_b32 v6, v{V_MAX}")
e(f"v_mov_b32 v7, v{V_LS}")
e(f"ds_write_b64 v4, v[6:7] offset:{LDS_STAT}")
e("s_waitcnt lgkmcnt(0)")
e("s_barrier")

cm("==== T1: wave 0 combines the 8 waves and publishes ====")
e(f"s_lshl_b32 s{S_T1}, s{S_HEAD}, 3")
e(f"s_add_u32 s{S_T2}, s{S_T1}, s{S_SPLIT}")
e(f"s_cmp_lg_u32 s{S_WAVE}, 0")
e("s_cbranch_scc1 L_t1done")
e("v_mov_b32 v4, 0")
for w in range(4):
    e(f"ds_read_b128 v[{20+4*w}:{23+4*w}], v4 offset:{LDS_STAT+16*w}")
e(f"v_lshlrev_b32 v5, 4, v{V_LANE}")
e(f"v_min_u32 v5, 752, v5")
tws = sorted(slot_of[("tw", i)] for i in range(8))
RB = None
for st in range(0, NS - 15):
    if not any(st <= t < st + 16 for t in tws):
        RB = RING0 + 4 * st; break
assert RB is not None, tws
for w in range(8):
    e(f"ds_read_b128 {vr(RB+8*w,4)}, v5 offset:{LDS_RED+1536*w}")
    e(f"ds_read_b128 {vr(RB+8*w+4,4)}, v5 offset:{LDS_RED+1536*w+768}")
e("s_waitcnt lgkmcnt(15)")
e("s_waitcnt lgkmcnt(0)")
e("v_max3_f32 v6, v20, v22, v24")
e("v_max3_f32 v6, v6, v26, v28")
e("v_max3_f32 v6, v6, v30, v32")
e("v_max_f32 v6, v6, v34")
e(f"v_mul_f32 v7, s{S_L2E}, v6")
for w in range(8):
    e(f"v_fma_f32 v{20+2*w}, v{20+2*w}, s{S_L2E}, -v7")
for w in range(8):
    e(f"v_exp_f32 v{20+2*w}, v{20+2*w}")
e("s_nop 0")
e("v_mul_f32 v7, v20, v21")
for w in range(1, 8):
    e(f"v_fmac_f32 v7, v{20+2*w}, v{21+2*w}")
for w in range(8):
    for i in range(4):
        e(f"v_add_f32 v{RB+8*w+i}, v{RB+8*w+i}, v{RB+8*w+4+i}")
    for i in range(4):
        if w == 0:
            e(f"v_mul_f32 v{8+i}, v20, v{RB+i}")
        else:
            e(f"v_fmac_f32 v{8+i}, v{20+2*w}, v{RB+8*w+i}")
cm("lane48: (M,L,0,0) ; lanes>=49: 0")
e(f"v_cmp_lt_u32 vcc, 47, v{V_LANE}")
e("s_nop 1")
for i in range(4):
    e(f"v_cndmask_b32 v{8+i}, v{8+i}, v4, vcc")
e(f"v_cmp_eq_u32 vcc, 48, v{V_LANE}")
e("s_nop 1")
e("v_cndmask_b32 v8, v8, v6, vcc")
e("v_cndmask_b32 v9, v9, v7, vcc")
canon4(8, 12)
e(f"s_lshl_b32 s{S_T0}, s{S_T2}, 10")
e(f"v_lshlrev_b32 v5, 4, v{V_LANE}")
e(f"v_add_u32 v5, s{S_T0}, v5")
e(f"buffer_store_dwordx4 v[8:11], v5, {srd(R_WS)}, 0 offen sc1")
lab("L_t1done")
stamp(5, 4, 5)
cm("all waves: wave j gathers outbox j of this head")
vm.wait(id_cnt)
e(f"s_add_u32 s{S_T0}, s{S_T1}, s{S_WAVE}")
e(f"s_lshl_b32 s{S_T0}, s{S_T0}, 10")
e(f"v_lshlrev_b32 v5, 4, v{V_LANE}")
e(f"v_add_u32 v6, s{S_T0}, v5")
poll_quads([8], 6, [0], 7)
stamp(6, 4, 12)
e(f"s_lshl_b32 s{S_T0}, s{S_WAVE}, 10")
e(f"v_add_u32 v5, s{S_T0}, v5")
e(f"ds_write_b128 v5, v[8:11] offset:{LDS_GATH}")
e("s_waitcnt lgkmcnt(0)")
e("s_barrier")

cm("==== T3: combine splits, output GEMV slice ====")
e("v_mov_b32 v4, 0")
for j in range(8):
    e(f"ds_read_b64 v[{20+2*j}:{21+2*j}], v4 offset:{LDS_GATH+1024*j+768}")
e(f"v_lshrrev_b32 v5, 4, v{V_LANE}")
e(f"s_lshl_b32 s{S_T0}, s{S_WAVE}, 2")
e(f"v_add_u32 v5, s{S_T0}, v5")
e(f"v_and_b32 v6, 15, v{V_LANE}")
e(f"v_min_u32 v6, 5, v6")
e(f"v_lshl_add_u32 v6, v6, 5, v5")
e(f"v_lshlrev_b32 v6, 2, v6")
for j in range(8):
    e(f"ds_read_b32 v{36+j}, v6 offset:{LDS_GATH+1024*j}")
cm("h: f = rgrp, min(rgrp+32,47)")
e("v_lshlrev_b32 v7, 2, v5")
e(f"ds_read_b32 v44, v7 offset:{LDS_H48}")
e("v_add_u32 v7, 32, v5")
e("v_min_u32 v7, 47, v7")
e("v_lshlrev_b32 v7, 2, v7")
e(f"ds_read_b32 v45, v7 offset:{LDS_H48}")
e("s_waitcnt lgkmcnt(0)")
e("v_max3_f32 v6, v20, v22, v24")
e("v_max3_f32 v6, v6, v26, v28")
e("v_max3_f32 v6, v6, v30, v32")
e("v_max_f32 v6, v6, v34")
e(f"v_mul_f32 v7, s{S_L2E}, v6")
for j in range(8):
    e(f"v_fma_f32 v{20+2*j}, v{20+2*j}, s{S_L2E}, -v7")
for j in range(8):
    e(f"v_exp_f32 v{20+2*j}, v{20+2*j}")
e("s_nop 0")
e("v_mul_f32 v7, v20, v21")
e("v_mul_f32 v8, v20, v36")
for j in range(1, 8):
    e(f"v_fmac_f32 v7, v{20+2*j}, v{21+2*j}")
    e(f"v_fmac_f32 v8, v{20+2*j}, v{36+j}")
e("v_rcp_f32 v7, v7")
e("s_nop 0")
e("v_mul_f32 v8, v8, v7")
bf16_round(8)
e("s_nop 1")
for k in range(6):
    e(f"v_mov_b32_dpp v{46+k}, v8 row_newbcast:{k} row_mask:0xf bank_mask:0xf")
GA = V_ACC
for i in range(16):
    e(f"v_mov_b32 v{GA+i}, 0")
cm("tail weights landed long ago (covered by the vmcnt(0) of the polls)")
for k in range(6):
    fma_tile(sl("tw", k), 46 + k, GA, 4, 5)
for k in range(2):
    fma_tile(sl("tw", 6 + k), 44 + k, GA + 8, 4, 5)
swap_reduce(GA, 16)
cm("RED2[w] + (g>>1)*320 + cc*32 + (g&1)*16, cc<10")
e(f"v_lshrrev_b32 v5, 5, v{V_LANE}")
e(f"v_mul_u32_u24 v5, 320, v5")
e(f"v_bfe_u32 v6, v{V_LANE}, 4, 1")
e(f"v_lshl_add_u32 v5, v6, 4, v5")
e(f"v_and_b32 v6, 15, v{V_LANE}")
e(f"v_lshl_add_u32 v5, v6, 5, v5")
e(f"s_mul_i32 s{S_T0}, s{S_WAVE}, 640")
e(f"v_add_u32 v5, s{S_T0}, v5")
e(f"v_cmp_gt_u32 vcc, 10, v6")
e(f"s_and_saveexec_b64 s[{S_EX}:{S_EX+1}], vcc")
e(f"ds_write_b128 v5, v[{GA}:{GA+3}] offset:{LDS_RED2}")
e(f"s_mov_b64 exec, s[{S_EX}:{S_EX+1}]")
e("s_waitcnt lgkmcnt(0)")
e("s_barrier")

cm("==== T4: wave 0 publishes the slice partial ====")
e(f"s_cmp_lg_u32 s{S_WAVE}, 0")
e("s_cbranch_scc1 L_t4done")
e(f"v_lshlrev_b32 v5, 4, v{V_LANE}")
e(f"v_min_u32 v6, 624, v5")
for w in range(8):
    e(f"ds_read_b128 {vr(RB+4*w,4)}, v6 offset:{LDS_RED2+640*w}")
e("s_waitcnt lgkmcnt(0)")
for st in (1, 2, 4):
    for w in range(0, 8, 2 * st):
        for i in range(4):
            e(f"v_add_f32 v{RB+4*w+i}, v{RB+4*w+i}, v{RB+4*(w+st)+i}")
canon4(RB, 12)
e(f"s_lshl_b32 s{S_T0}, s{S_SPLIT}, 5")
e(f"s_add_u32 s{S_T0}, s{S_T0}, s{S_HEAD}")
e(f"s_mul_i32 s{S_T0}, s{S_T0}, 640")
e(f"s_add_u32 s{S_T0}, s{S_T0}, {WS_OUT2}")
e(f"v_add_u32 v5, s{S_T0}, v5")
e(f"v_mov_b32 v6, {OOB:#x}")
e(f"v_cmp_gt_u32 vcc, 40, v{V_LANE}")
e("s_nop 1")
e(f"v_cndmask_b32 v5, v6, v5, vcc")
e(f"buffer_store_dwordx4 {vr(RB,4)}, v5, {srd(R_WS)}, 0 offen sc1")
lab("L_t4done")

stamp(7, 4, 5)
cm("==== T5: reducer WGs (head == 4*split) ====")
e(f"s_lshl_b32 s{S_T0}, s{S_SPLIT}, 2")
e(f"s_cmp_lg_u32 s{S_T0}, s{S_HEAD}")
e("s_cbranch_scc1 " + ("L_fin" if OPT["stamps"] else "L_end"))
spin_counter(1, 32, V_CNT, V_CNTO)
e(f"s_lshl_b32 s{S_T0}, s{S_SPLIT}, 5")
e(f"s_lshl_b32 s{S_T1}, s{S_WAVE}, 2")
e(f"s_add_u32 s{S_T0}, s{S_T0}, s{S_T1}")
e(f"s_mul_i32 s{S_T0}, s{S_T0}, 640")
e(f"s_add_u32 s{S_T0}, s{S_T0}, {WS_OUT2}")
e(f"v_lshlrev_b32 v5, 4, v{V_LANE}")
e(f"v_add_u32 v7, s{S_T0}, v5")
e(f"v_mov_b32 v6, {OOB:#x}")
e(f"v_cmp_gt_u32 vcc, 40, v{V_LANE}")
e("s_nop 1")
e(f"v_cndmask_b32 v7, v6, v7, vcc")
poll_quads([20, 24, 28, 32], 7, [0, 640, 1280, 1920], 8)
stamp(8, 4, 12)
for i in range(4):
    e(f"v_add_f32 v{20+i}, v{20+i}, v{24+i}")
    e(f"v_add_f32 v{28+i}, v{28+i}, v{32+i}")
for i in range(4):
    e(f"v_add_f32 v{20+i}, v{20+i}, v{28+i}")
e(f"s_mul_i32 s{S_T0}, s{S_WAVE}, 640")
e(f"v_add_u32 v5, s{S_T0}, v5")
e(f"v_cmp_gt_u32 vcc, 40, v{V_LANE}")
e(f"s_and_saveexec_b64 s[{S_EX}:{S_EX+1}], vcc")
e(f"ds_write_b128 v5, v[20:23] offset:{LDS_RED3}")
e(f"s_mov_b64 exec, s[{S_EX}:{S_EX+1}]")
e("s_waitcnt lgkmcnt(0)")
e("s_barrier")
e(f"s_cmp_gt_u32 s{S_WAVE}, 1")
e("s_cbranch_scc1 " + ("L_fin" if OPT["stamps"] else "L_end"))
e(f"v_min_u32 v5, 79, v{V_TID}")
e(f"v_lshlrev_b32 v5, 2, v5")
for w in range(8):
    e(f"ds_read_b32 v{20+w}, v5 offset:{LDS_RED3+640*w}")
    e(f"ds_read_b32 v{28+w}, v5 offset:{LDS_RED3+640*w+320}")
e("v_mov_b32 v4, 0")
e(f"ds_read_b32 v36, v4 offset:{LDS_HG+28}")
e("s_waitcnt lgkmcnt(0)")
for base in (20, 28):
    for a, b in ((0, 1), (2, 3), (4, 5), (6, 7), (0, 2), (4, 6), (0, 4)):
        e(f"v_add_f32 v{base+a}, v{base+a}, v{base+b}")
bf16_round(20)
bf16_round(28)
e("v_mul_f32 v20, v36, v20")
bf16_round(20)
e("v_sub_f32 v21, 1.0, v36")
bf16_round(21)
e("v_mul_f32 v21, v21, v28")
bf16_round(21)
e("v_add_f32 v20, v20, v21")
e("v_cvt_pk_bf16_f32 v20, v20, v20")
e(f"s_mul_i32 s{S_T0}, s{S_SPLIT}, 160")
e(f"v_lshlrev_b32 v5, 1, v{V_TID}")
e(f"v_add_u32 v5, s{S_T0}, v5")
e(f"v_mov_b32 v6, {OOB:#x}")
e(f"v_cmp_gt_u32 vcc, 80, v{V_TID}")
e("s_nop 1")
e(f"v_cndmask_b32 v5, v6, v5, vcc")
e(f"buffer_store_short v20, v5, {srd(R_OUT)}, 0 offen")
e("s_branch " + ("L_fin" if OPT["stamps"] else "L_end"))

L_SAVE = L
cm("================= helper waves (8: H0, 9: H1) =================")
lab("L_helper")
S_H = 31
e(f"s_sub_u32 s{S_H}, s{S_WAVE}, 8")
e(f"v_mov_b32 v63, {OOB:#x}")
e(f"v_lshlrev_b32 v8, 4, v{V_LANE}")
e("v_mov_b32 v57, v63")
for i in range(24):
    e(f"v_mov_b32 v{V_ACC+i}, 0")
cm("H0: clear own boxes to the sentinel (out1, out2 slot, qbox); zero LDS flag and zero block")
e(f"s_cmp_lg_u32 s{S_H}, 0")
e("s_cbranch_scc1 L_noclear")
e("v_mov_b32 v4, -1"); e("v_mov_b32 v5, -1"); e("v_mov_b32 v6, -1"); e("v_mov_b32 v7, -1")
e(f"s_mul_i32 s{S_T1}, s{S_LW}, {QB}")
e(f"s_add_u32 s{S_T1}, s{S_T1}, {WS_QBOX}")
e(f"v_add_u32 v11, s{S_T1}, v8")
e(f"buffer_store_dwordx4 v[4:7], v11, {srd(R_WS)}, 0 offen sc1")
e(f"v_cmp_gt_u32 vcc, 9, v{V_LANE}")
e("s_nop 1")
e(f"v_cndmask_b32 v11, v63, v11, vcc")
e(f"buffer_store_dwordx4 v[4:7], v11, {srd(R_WS)}, 0 offen offset:1024 sc1")
e(f"s_lshl_b32 s{S_T1}, s{S_LW}, 10")
e(f"v_add_u32 v9, s{S_T1}, v8")
e(f"buffer_store_dwordx4 v[4:7], v9, {srd(R_WS)}, 0 offen sc1")
e(f"s_lshl_b32 s{S_T1}, s{S_SPLIT}, 5")
e(f"s_add_u32 s{S_T1}, s{S_T1}, s{S_HEAD}")
e(f"s_mul_i32 s{S_T1}, s{S_T1}, 640")
e(f"s_add_u32 s{S_T1}, s{S_T1}, {WS_OUT2}")
e(f"v_add_u32 v10, s{S_T1}, v8")
e(f"v_cmp_gt_u32 vcc, 40, v{V_LANE}")
e("s_nop 1")
e(f"v_cndmask_b32 v10, v63, v10, vcc")
e(f"buffer_store_dwordx4 v[4:7], v10, {srd(R_WS)}, 0 offen sc1")
e(f"v_mov_b32 v12, {LDS_ZERO}")
e(f"ds_write_b128 v12, v[{V_ACC}:{V_ACC+3}]")
e(f"v_mov_b32 v12, {LDS_FLAG}")
e(f"ds_write_b32 v12, v{V_ACC}")
lab("L_noclear")
cm("wq rows: row0 = 80*split + 20g + 10h ; pairs T=0..4")
e(f"s_mul_i32 s{S_T0}, s{S_SPLIT}, 80")
e(f"s_mul_i32 s{S_T1}, s{S_H}, 10")
e(f"s_add_u32 s{S_T1}, s{S_T0}, s{S_T1}")
e(f"v_mul_u32_u24 v60, 20, v{Vg}")
e(f"v_add_u32 v60, s{S_T1}, v60")
e(f"v_lshlrev_b32 v61, 1, v60")
e(f"s_mov_b32 s{S_T1}, 12288")
e(f"v_mul_lo_u32 v60, v60, s{S_T1}")
e(f"v_lshl_add_u32 v{V_WQO}, v{Vc}, 4, v60")
e(f"v_add_u32 v{V_WQO+2}, 12416, v{V_WQO}")
e(f"v_add_u32 v62, 256, v{V_WQO}")
e(f"v_add_u32 v60, 12160, v{V_WQO}")
e(f"v_cndmask_b32 v{V_WQO+1}, v60, v62, s[{S_MC8}:{S_MC8+1}]")
hv = VM()
hv.issue(f"buffer_load_dwordx4 {vr(V_XW,4)}, v61, {srd(R_X)}, 0 offen")
hv.issue(f"buffer_load_dword v{V_XW+4}, v61, {srd(R_X)}, 0 offen offset:16")
hid = {}
for T in range(5):
    e(f"s_mov_b32 s{S_OFF}, {T*24576}")
    for j in range(3):
        hid[(T, j)] = hv.issue(f"buffer_load_dwordx4 {vr(RING0+4*(3*T+j),4)}, v{V_WQO+j}, {srd(R_WQ)}, s{S_OFF} offen{WNT}")
e(f"s_cmp_lg_u32 s{S_H}, 0")
e("s_cbranch_scc1 L_h1pre")
cm("H0: clears done -> arrive on the group counter (returning atomic, lane 0)")
e(f"s_lshl_b32 s{S_T1}, s{S_HEAD}, 2")
e(f"v_mov_b32 v10, s{S_T1}")
e(f"v_cmp_eq_u32 vcc, 0, v{V_LANE}")
e("v_mov_b32 v13, 1")
e("s_nop 0")
e(f"v_cndmask_b32 v10, v63, v10, vcc")
e("s_waitcnt lgkmcnt(0)")
e("s_barrier")
e("s_waitcnt vmcnt(17)")
e(f"buffer_atomic_add v13, v10, {srd(R_DBG)}, 0 offen sc0")
e("s_branch L_hq")
lab("L_h1pre")
cm("H1: gate/up partial loads: lane (cq=l&7 <6, r8=l>>3), rows 80*split + 10*r8 + k")
MB = RING0 + 60
e(f"v_lshrrev_b32 v9, 3, v{V_LANE}")
e(f"v_mul_u32_u24 v9, 10, v9")
e(f"v_add_u32 v9, s{S_T0}, v9")
e(f"v_lshlrev_b32 v10, 1, v9")
e(f"v_mul_u32_u24 v9, 3072, v9")
e(f"v_and_b32 v11, 7, v{V_LANE}")
e(f"v_lshl_add_u32 v9, v11, 4, v9")
e(f"v_cmp_gt_u32 vcc, 6, v11")
e("s_nop 1")
e(f"v_cndmask_b32 v57, v63, v9, vcc")
e(f"buffer_load_dwordx4 v[12:15], v10, {srd(R_X)}, 0 offen")
e(f"buffer_load_dword v16, v10, {srd(R_X)}, 0 offen offset:16")
NPRE = 5
for k in range(NPRE):
    e(f"s_mov_b32 s{S_OFF}, {k*3072}")
    e(f"buffer_load_dwordx4 {vr(MB+8*k,4)}, v57, {srd(R_W1)}, s{S_OFF} offen{WNT}")
    e(f"buffer_load_dwordx4 {vr(MB+8*k+4,4)}, v57, {srd(R_W3)}, s{S_OFF} offen{WNT}")
e("s_barrier")
lab("L_hq")
hpX, hpY, hpM, ht0, ht1 = 4, 5, 6, 7, 9
for T in range(5):
    k = hv.n - 1 - hid[(T, 2)]
    lx = newlabel("hw")
    e(f"s_cmp_eq_u32 s{S_H}, 1")
    e(f"s_cbranch_scc1 {lx}a")
    e(f"s_waitcnt vmcnt({k+1})")
    e(f"s_branch {lx}b")
    lab(lx + "a")
    e(f"s_waitcnt vmcnt({k+2+2*NPRE})")
    lab(lx + "b")
    e(f"v_lshlrev_b32 v{hpX}, 16, v{V_XW+T}")
    e(f"v_and_b32 v{hpY}, s{S_HI}, v{V_XW+T}")
    e(f"v_cndmask_b32 v{hpM}, v{hpY}, v{hpX}, s[{S_MC8}:{S_MC8+1}]")
    for j, p in enumerate((hpX, hpM, hpY)):
        fma_tile(RING0 + 4 * (3 * T + j), p, V_ACC + 8 * j, ht0, ht1)
stamp(1, 4, 5)
swap_reduce(V_ACC, 24)
red24_to_lds(V_ACC, 4, 5, 6, 7, sreg=S_H)
e("s_waitcnt lgkmcnt(0)")
e(f"s_cmp_eq_u32 s{S_H}, 1")
e("s_cbranch_scc1 L_h1")
cm("---- H0: last arriver tells the 8 WGs of the head that every box is cleared ----")
e("s_waitcnt vmcnt(0)")
e("v_readfirstlane_b32 s30, v13")
e(f"s_mul_i32 s{S_T0}, s{S_HEAD}, {8*QB}")
e(f"s_add_u32 s{S_T0}, s{S_T0}, {WS_QBOX+1152}")
e("s_and_b32 s30, s30, 7")
e("s_cmp_lg_u32 s30, 7")
e("s_cbranch_scc1 L_h0nogo")
e(f"v_mul_u32_u24 v9, {QB}, v{V_LANE}")
e(f"v_add_u32 v9, s{S_T0}, v9")
e(f"v_cmp_gt_u32 vcc, 8, v{V_LANE}")
e("v_mov_b32 v12, 0")
e("s_nop 0")
e(f"v_cndmask_b32 v9, v63, v9, vcc")
e(f"buffer_store_dword v12, v9, {srd(R_WS)}, 0 offen sc1")
lab("L_h0nogo")
e(f"s_mul_i32 s{S_T0}, s{S_LW}, {QB}")
e(f"s_add_u32 s{S_T0}, s{S_T0}, {WS_QBOX+1152}")
e(f"v_mov_b32 v10, s{S_T0}")
e(f"buffer_load_dword v13, v10, {srd(R_WS)}, 0 offen sc1")
cm("---- H0: wait for H1's half, publish the WG partial, gather the 8 partials of the head ----")
e(f"v_mov_b32 v12, {LDS_FLAG}")
e(f"s_mov_b32 s{S_CNT}, {OPT['spin_cap']*8}")
lab("L_h0flag")
e("ds_read_b32 v14, v12")
e("s_waitcnt lgkmcnt(0)")
e("v_readfirstlane_b32 s30, v14")
e(f"s_sub_u32 s{S_CNT}, s{S_CNT}, 1")
e(f"s_cmp_eq_u32 s{S_CNT}, 0")
e("s_cbranch_scc1 L_h0go")
e("s_cmp_eq_u32 s30, 0")
e("s_cbranch_scc1 L_h0flag")
lab("L_h0go")
e(f"v_min_u32 v5, 752, v8")
e(f"ds_read_b128 v[20:23], v5 offset:{LDS_RED}")
e(f"ds_read_b128 v[24:27], v5 offset:{LDS_RED+768}")
e(f"ds_read_b128 v[28:31], v5 offset:{LDS_RED+1536}")
e(f"ds_read_b128 v[32:35], v5 offset:{LDS_RED+1536+768}")
e(f"s_mul_i32 s{S_T0}, s{S_LW}, {QB}")
e(f"s_add_u32 s{S_T0}, s{S_T0}, {WS_QBOX}")
e(f"v_add_u32 v9, s{S_T0}, v8")
e(f"v_cmp_gt_u32 s[{S_MSK}:{S_MSK+1}], 48, v{V_LANE}")
e("s_nop 1")
e(f"v_cndmask_b32 v9, v63, v9, s[{S_MSK}:{S_MSK+1}]")
e("s_waitcnt lgkmcnt(0)")
for i in range(4):
    e(f"v_add_f32 v{20+i}, v{20+i}, v{24+i}")
    e(f"v_add_f32 v{28+i}, v{28+i}, v{32+i}")
for i in range(4):
    e(f"v_add_f32 v{20+i}, v{20+i}, v{28+i}")
canon4(20, 12)
e(f"buffer_store_dwordx4 v[20:23], v9, {srd(R_WS)}, 0 offen sc1")
stamp(2, 4, 5)
e("s_waitcnt vmcnt(1)")
e(f"s_mov_b32 s{S_CNT}, {OPT['spin_cap']}")
lab("L_h0gospin")
e("v_readfirstlane_b32 s30, v13")
e(f"s_sub_u32 s{S_CNT}, s{S_CNT}, 1")
e(f"s_cmp_eq_u32 s{S_CNT}, 0")
e("s_cbranch_scc1 L_h0godone")
e("s_cmp_lg_u32 s30, -1")
e("s_cbranch_scc1 L_h0godone")
e(f"s_sleep {OPT['sleep']}")
e(f"buffer_load_dword v13, v10, {srd(R_WS)}, 0 offen sc1")
e("s_waitcnt vmcnt(0)")
e("s_branch L_h0gospin")
lab("L_h0godone")
stamp(3, 4, 5)
e(f"s_mul_i32 s{S_T0}, s{S_HEAD}, {8*QB}")
e(f"s_add_u32 s{S_T0}, s{S_T0}, {WS_QBOX}")
e(f"v_add_u32 v9, s{S_T0}, v8")
e(f"v_cndmask_b32 v9, v63, v9, s[{S_MSK}:{S_MSK+1}]")
poll_quads([RING0 + 4 * j for j in range(8)], 9, [QB * j for j in range(8)], 7)
for stp in (1, 2, 4):
    for j in range(0, 8, 2 * stp):
        for i in range(4):
            e(f"v_add_f32 v{RING0+4*j+i}, v{RING0+4*j+i}, v{RING0+4*(j+stp)+i}")
e(f"v_cvt_pk_bf16_f32 v20, v{RING0}, v{RING0+1}")
e(f"v_cvt_pk_bf16_f32 v21, v{RING0+2}, v{RING0+3}")
e(f"v_lshlrev_b32 v5, 3, v{V_LANE}")
e(f"s_and_saveexec_b64 s[{S_EX}:{S_EX+1}], s[{S_MSK}:{S_MSK+1}]")
e(f"ds_write_b64 v5, v[20:21] offset:{LDS_QBF}")
e(f"s_mov_b64 exec, s[{S_EX}:{S_EX+1}]")
e("s_waitcnt lgkmcnt(0)")
stamp(4, 4, 5)
e("s_barrier")
e("s_branch " + ("L_fin" if OPT["stamps"] else "L_end"))

lab("L_h1")
e(f"v_mov_b32 v9, {LDS_FLAG}")
e("v_mov_b32 v10, 1")
e("ds_write_b32 v9, v10")
cm("---- H1: gate/up partial over this WG's 80 rows ----")
for k in range(NPRE, 10):
    e(f"s_mov_b32 s{S_OFF}, {k*3072}")
    r = RING0 + 8 * (k - NPRE)
    e(f"buffer_load_dwordx4 {vr(r,4)}, v57, {srd(R_W1)}, s{S_OFF} offen{WNT}")
    e(f"buffer_load_dwordx4 {vr(r+4,4)}, v57, {srd(R_W3)}, s{S_OFF} offen{WNT}")
MA = V_ACC
for i in range(16):
    e(f"v_mov_b32 v{MA+i}, 0")
for k in range(10):
    e(f"s_waitcnt vmcnt({18-2*k})")
    if k % 2 == 0:
        e(f"v_lshlrev_b32 v5, 16, v{12+k//2}")
    else:
        e(f"v_and_b32 v5, s{S_HI}, v{12+k//2}")
    r = MB + 8 * k if k < NPRE else RING0 + 8 * (k - NPRE)
    fma_tile(r, 5, MA, 6, 7)
    fma_tile(r + 4, 5, MA + 8, 6, 7)
swap_reduce(MA, 16)
e("s_nop 1")
for i in range(4):
    e(f"v_add_f32_dpp v{MA+i}, v{MA+i}, v{MA+i} row_ror:8 row_mask:0xf bank_mask:0xf")
canon4(MA, 12)
cm("store at qbox + 768 + (g>>1)*192 + cq*32 + (g&1)*16 for (l&15)<6")
e(f"v_lshrrev_b32 v5, 5, v{V_LANE}")
e(f"v_mul_u32_u24 v5, 192, v5")
e(f"v_bfe_u32 v6, v{V_LANE}, 4, 1")
e(f"v_lshl_add_u32 v5, v6, 4, v5")
e(f"v_and_b32 v6, 15, v{V_LANE}")
e(f"v_lshl_add_u32 v5, v6, 5, v5")
e(f"s_mul_i32 s{S_T0}, s{S_LW}, {QB}")
e(f"s_add_u32 s{S_T0}, s{S_T0}, {WS_QBOX+768}")
e(f"v_add_u32 v5, s{S_T0}, v5")
e(f"v_cmp_gt_u32 vcc, 6, v6")
e("s_nop 1")
e(f"v_cndmask_b32 v5, v63, v5, vcc")
e(f"buffer_store_dwordx4 v[{MA}:{MA+3}], v5, {srd(R_WS)}, 0 offen sc1")
cm("gate logit operands: lane l owns elements 10l..10l+9")
e(f"v_mul_u32_u24 v4, 20, v{V_LANE}")
e(f"buffer_load_dwordx4 v[44:47], v4, {srd(R_X)}, 0 offen")
e(f"buffer_load_dword v48, v4, {srd(R_X)}, 0 offen offset:16")
e(f"buffer_load_dwordx4 v[52:55], v4, {srd(R_GW)}, 0 offen")
e(f"buffer_load_dword v56, v4, {srd(R_GW)}, 0 offen offset:16")
stamp(2, 4, 5)
e("s_waitcnt lgkmcnt(0)")
e("s_barrier")
cm("slice counter: this WG's out2 slot is cleared (H0 drained the clears before barrier #1)")
e(f"s_lshl_b32 s{S_T0}, s{S_SPLIT}, 2")
e(f"s_add_u32 s{S_T0}, s{S_T0}, 128")
e(f"v_mov_b32 v10, s{S_T0}")
e(f"v_cmp_eq_u32 vcc, 0, v{V_LANE}")
e("v_mov_b32 v12, 1")
e("s_nop 0")
e(f"v_cndmask_b32 v10, v63, v10, vcc")
e(f"buffer_atomic_add v12, v10, {srd(R_DBG)}, 0 offen")
cm("gather the 8 gate/up partials: lanes 0..11 gate quads, lanes 16..27 up quads")
e(f"v_and_b32 v5, 15, v{V_LANE}")
e(f"v_lshlrev_b32 v6, 4, v5")
e(f"v_lshrrev_b32 v7, 4, v{V_LANE}")
e(f"v_mul_u32_u24 v9, 192, v7")
e(f"v_add_u32 v6, v6, v9")
e(f"s_mul_i32 s{S_T0}, s{S_HEAD}, {8*QB}")
e(f"s_add_u32 s{S_T0}, s{S_T0}, {WS_QBOX+768}")
e(f"v_add_u32 v6, s{S_T0}, v6")
e(f"v_cmp_gt_u32 vcc, 12, v5")
e(f"v_cmp_gt_u32 s[{S_MSK}:{S_MSK+1}], 32, v{V_LANE}")
e(f"s_and_b64 vcc, vcc, s[{S_MSK}:{S_MSK+1}]")
e("s_nop 1")
e(f"v_cndmask_b32 v6, v63, v6, vcc")
poll_quads([RING0 + 4 * j for j in range(8)], 6, [QB * j for j in range(8)], 7)
for stp in (1, 2, 4):
    for j in range(0, 8, 2 * stp):
        for i in range(4):
            e(f"v_add_f32 v{RING0+4*j+i}, v{RING0+4*j+i}, v{RING0+4*(j+stp)+i}")
G0 = RING0; U0 = RING0 + 4
for i in range(4):
    bf16_round(G0 + i)
for i in range(4):
    e(f"v_mov_b32 v{U0+i}, v{G0+i}")
e("s_nop 1")
for i in range(4):
    e(f"v_permlane16_swap_b32 v{G0+i}, v{U0+i}")
for i in range(4):
    e(f"v_mul_f32 v{20+i}, s{S_L2E}, v{G0+i}")
    e(f"v_sub_f32 v{20+i}, 0, v{20+i}")
    e(f"v_exp_f32 v{20+i}, v{20+i}")
    e("s_nop 0")
    e(f"v_add_f32 v{20+i}, 1.0, v{20+i}")
    e(f"v_rcp_f32 v{20+i}, v{20+i}")
    e("s_nop 0")
    e(f"v_mul_f32 v{20+i}, v{G0+i}, v{20+i}")
    bf16_round(20 + i)
    e(f"v_mul_f32 v{20+i}, v{20+i}, v{U0+i}")
    bf16_round(20 + i)
e(f"v_cmp_gt_u32 vcc, 12, v{V_LANE}")
e(f"s_and_saveexec_b64 s[{S_EX}:{S_EX+1}], vcc")
e(f"ds_write_b128 v8, v[20:23] offset:{LDS_H48}")
e(f"s_mov_b64 exec, s[{S_EX}:{S_EX+1}]")
cm("gate logit")
e("v_mov_b32 v20, 0")
for k in range(10):
    if k % 2 == 0:
        e(f"v_lshlrev_b32 v5, 16, v{44+k//2}")
        e(f"v_lshlrev_b32 v6, 16, v{52+k//2}")
    else:
        e(f"v_and_b32 v5, s{S_HI}, v{44+k//2}")
        e(f"v_and_b32 v6, s{S_HI}, v{52+k//2}")
    e("v_mul_f32 v6, v5, v6")
    bf16_round(6)
    e("v_add_f32 v20, v20, v6")
allgroups("v_add_f32", 20, 21)
for sh in (8, 4, 2, 1):
    e("s_nop 1")
    e(f"v_add_f32_dpp v20, v20, v20 row_ror:{sh} row_mask:0xf bank_mask:0xf")
bf16_round(20)
e(f"v_mul_f32 v22, s{S_L2E}, v20")
e("v_sub_f32 v22, 0, v22")
e("v_exp_f32 v22, v22")
e("s_nop 0")
e("v_add_f32 v22, 1.0, v22")
e("v_rcp_f32 v22, v22")
e("s_nop 0")
bf16_round(22)
e(f"v_mov_b32 v4, {LDS_HG+28}")
e("ds_write_b32 v4, v22")
e("s_waitcnt lgkmcnt(0)")
stamp(3, 4, 5)
e("s_barrier")
e("s_branch " + ("L_fin" if OPT["stamps"] else "L_end"))

if OPT["stamps"]:
    lab("L_fin")
    stamp(9, 4, 5)
    e("s_waitcnt lgkmcnt(0)")
    e(f"v_and_b32 v4, 15, v{V_LANE}")
    e("v_lshlrev_b32 v4, 2, v4")
    e("v_add_u32 v5, s100, v4")
    e(f"ds_read_b32 v6, v5 offset:{LDS_STAMP}")
    e("s_lshl_b32 s98, s2, 10")
    e("s_add_u32 s98, s98, 0x100000")
    e("v_add_u32 v5, s98, v5")
    e("s_waitcnt lgkmcnt(0)")
    e(f"buffer_store_dword v6, v5, {srd(R_WS)}, 0 offen")
lab("L_end")
e("s_endpgm")
L.append('.section .rodata,"a"')
L.append(".p2align 6")
L.append(f".amdhsa_kernel {NAME}_kernel")
L.append(f"  .amdhsa_next_free_vgpr {NVGPR}")
L.append("  .amdhsa_next_free_sgpr 102")
L.append(f"  .amdhsa_accum_offset {NVGPR}")
L.append("  .amdhsa_group_segment_fixed_size 0")
L.append("  .amdhsa_kernarg_size 104")
L.append("  .amdhsa_user_sgpr_count 2")
L.append("  .amdhsa_user_sgpr_kernarg_segment_ptr 1")
L.append("  .amdhsa_system_sgpr_workgroup_id_x 1")
L.append("  .amdhsa_float_denorm_mode_32 3")
L.append(".end_amdhsa_kernel")
out = sys.argv[1] if len(sys.argv) > 1 else f"cdna_kernels/{NAME}.s"
open(out, "w").write("\n".join(L) + "\n")
print("wrote", out, len(L), "lines")
```

```python
import sys

NAME = "gated_mix__mha_block_cached__glu_gated_swiglu__decode"
HEADER = open(f"cdna_kernels/{NAME}.s.ref").read().split("; Override launch geometry")[0]

OPT = dict(
    w_nt=True,
    spin_cap=400000,
    sleep=1,
    stamps=0,
    depth=5,
    depth0=3,
    kv_nt=1,
    v_nt=-1,
    pool_ahead=3,
    F=14,
)
for a in sys.argv[2:]:
    k, v = a.split("=")
    OPT[k] = type(OPT[k])(int(v))


L = []
def e(s=""):
    L.append("    " + s if s and not s.endswith(":") else s)
def lab(s):
    L.append(s + ":")
def cm(s):
    L.append("    ; " + s)

P_X, P_K, P_V, P_WQ, P_WO, P_BX, P_W1, P_W3, P_W2, P_GW, P_OUT, P_DBG, P_WS = [4 + 2 * i for i in range(13)]
R_K, R_V, R_WQ, R_WO, R_W1, R_W3, R_W2, R_X, R_GW, R_OUT, R_DBG, R_WS = [32 + 4 * i for i in range(12)]
S_HEAD, S_SPLIT, S_WAVE, S_OFF, S_HI, S_L2E, S_SCALE, S_T0, S_T1, S_T2, S_CNT = 80, 81, 82, 83, 84, 85, 86, 87, 92, 93, 94
S_MC8 = 88
S_MSK = 90
S_EX = 96
def srd(r): return f"s[{r}:{r+3}]"

V_TID, V_KOFF, V_VOFF, V_LANE = 0, 1, 2, 3
V_SC = 4
V_ACC = 20
V_QF = 44
V_MACC = 60
pX, pY, pM, t0, t1 = 76, 77, 78, 79, 80
V_MAX, V_ML2, V_LS = 81, 82, 83
V_TWO, V_TWO2 = 84, 85
V_CLM, V_CLMO = 86, 87
V_T = 76
SRING0 = 88
NVGPR = 168
V_XW = 44
V_WQO = 54
RING0 = 64
def vr(a, n): return f"v[{a}:{a+n-1}]"
F = OPT["F"]
NPOOL = 1024 - 64 * F
S_FB = 3

LDS_RED = 0
LDS_STAT = 12288
LDS_MLPR = 12352
LDS_QBF = 12864
LDS_ZERO = 13248
LDS_HG = 13280
LDS_GATH = 13312
LDS_RED2 = 21504
LDS_RED3 = 26624
LDS_STAMP = 31744
LDS_TOTAL = 31744 + (640 if OPT["stamps"] else 0)

WS_OUT1 = 0
WS_OUT2 = 262144
WS_QBOX = WS_OUT2 + 8 * 32 * 640
QB = 1280
WS_POOL = WS_QBOX + 256 * QB
WS_BYTES = WS_POOL + 32 * 128 if not OPT["stamps"] else (2 << 20)
LDS_H48 = LDS_MLPR
LDS_FLAG = LDS_HG + 24
OOB = 0x80000000

class VM:
    def __init__(self): self.n = 0
    def issue(self, s):
        e(s); self.n += 1; return self.n - 1
    def wait(self, idx):
        k = self.n - 1 - idx
        assert k >= 0
        e(f"s_waitcnt vmcnt({min(k, 63)})")
vm = VM()

WNT = " nt" if OPT["w_nt"] else ""
_POL = {0: "", 1: " nt", 2: " sc1", 3: " sc0 sc1", 4: " sc1 nt", 5: " sc0"}
KNT = _POL[OPT["kv_nt"]]
VNT = _POL[OPT["v_nt"] if OPT["v_nt"] >= 0 else OPT["kv_nt"]]

def make_srd(r, p, off_s=None, nrec=None, nrec_s=None):
    if off_s is None:
        e(f"s_mov_b32 s{r}, s{p}")
        e(f"s_and_b32 s{r+1}, s{p+1}, 0xffff")
    else:
        e(f"s_add_u32 s{r}, s{p}, s{off_s}")
        e(f"s_addc_u32 s{r+1}, s{p+1}, 0")
        e(f"s_and_b32 s{r+1}, s{r+1}, 0xffff")
    if nrec_s is not None:
        e(f"s_sub_u32 s{r+2}, {nrec}, s{nrec_s}")
    else:
        e(f"s_mov_b32 s{r+2}, {nrec}")
    e(f"s_mov_b32 s{r+3}, 0x00020000")

def fma_tile(src, p, acc, t0, t1):
    for d in range(4):
        e(f"v_lshlrev_b32 v{t0}, 16, v{src+d}")
        e(f"v_and_b32 v{t1}, s{S_HI}, v{src+d}")
        e(f"v_fmac_f32 v{acc+2*d}, v{p}, v{t0}")
        e(f"v_fmac_f32 v{acc+2*d+1}, v{p}, v{t1}")

def swap_reduce(acc, n):
    h = n // 2
    e("s_nop 1")
    for i in range(h):
        e(f"v_permlane32_swap_b32 v{acc+i}, v{acc+i+h}")
    for i in range(h):
        e(f"v_add_f32 v{acc+i}, v{acc+i}, v{acc+i+h}")
    q = h // 2
    e("s_nop 1")
    for i in range(q):
        e(f"v_permlane16_swap_b32 v{acc+i}, v{acc+i+q}")
    for i in range(q):
        e(f"v_add_f32 v{acc+i}, v{acc+i}, v{acc+i+q}")

def allgroups(op, v, t):
    e(f"v_mov_b32 v{t}, v{v}")
    e("s_nop 1")
    e(f"v_permlane32_swap_b32 v{v}, v{t}")
    e(f"{op} v{v}, v{v}, v{t}")
    e(f"v_mov_b32 v{t}, v{v}")
    e("s_nop 1")
    e(f"v_permlane16_swap_b32 v{v}, v{t}")
    e(f"{op} v{v}, v{v}, v{t}")

def red24_to_lds(acc, tA, tB, tC, tD, sreg=None):
    e(f"v_and_b32 v{tD}, 15, v{V_LANE}")
    e(f"v_lshlrev_b32 v{tD}, 5, v{tD}")
    e(f"s_mul_i32 s{S_T0}, s{S_WAVE if sreg is None else sreg}, 1536")
    e(f"v_add_u32 v{tD}, s{S_T0}, v{tD}")
    e(f"v_lshrrev_b32 v{tA}, 4, v{V_LANE}")
    e(f"v_mul_u32_u24 v{tA}, 6, v{tA}")
    for p in range(3):
        e(f"v_add_u32 v{tB}, {2*p}, v{tA}")
        e(f"v_lshrrev_b32 v{tC}, 3, v{tB}")
        e(f"v_lshl_add_u32 v{tC}, v{tC}, 9, v{tD}")
        e(f"v_and_b32 v{tB}, 7, v{tB}")
        e(f"v_lshl_add_u32 v{tC}, v{tB}, 2, v{tC}")
        e(f"ds_write_b64 v{tC}, v[{acc+2*p}:{acc+2*p+1}] offset:{LDS_RED}")

def canon4(r, t):
    e(f"v_mov_b32 v{t}, 0x7fc00000")
    for i in range(4):
        e(f"v_cmp_eq_u32 vcc, -1, v{r+i}")
        e("s_nop 1")
        e(f"v_cndmask_b32 v{r+i}, v{r+i}, v{t}, vcc")

def bf16_round(v, t=None):
    e(f"v_cvt_pk_bf16_f32 v{v}, v{v}, v{v}")
    e(f"v_lshlrev_b32 v{v}, 16, v{v}")

def stamp(k, ta, tb):
    if not OPT["stamps"]:
        return
    e("s_memrealtime s[98:99]")
    e(f"s_lshl_b32 s100, s{S_WAVE}, 6")
    e("s_waitcnt lgkmcnt(0)")
    e(f"v_mov_b32 v{ta}, s98")
    e(f"v_mov_b32 v{tb}, s100")
    e(f"ds_write_b32 v{tb}, v{ta} offset:{LDS_STAMP+4*k}")

_lbl = [0]
def newlabel(p):
    _lbl[0] += 1
    return f"L_{p}_{_lbl[0]}"

def spin_counter(lane_sel, target, vcnt, voff, hi=False):
    lo, done = newlabel("cspin"), newlabel("cdone")
    e(f"s_mov_b32 s{S_CNT}, {OPT['spin_cap']}")
    lab(lo)
    e(f"v_readlane_b32 s{S_T0}, v{vcnt}, {lane_sel}")
    e("s_nop 3")
    if hi:
        e(f"s_lshr_b32 s{S_T0}, s{S_T0}, 16")
    else:
        e(f"s_and_b32 s{S_T0}, s{S_T0}, 0xffff")
    e(f"s_cmp_ge_u32 s{S_T0}, {target}")
    e(f"s_cbranch_scc1 {done}")
    e(f"s_sub_u32 s{S_CNT}, s{S_CNT}, 1")
    e(f"s_cmp_eq_u32 s{S_CNT}, 0")
    e(f"s_cbranch_scc1 {done}")
    e("s_sleep 32")
    e(f"buffer_load_dword v{vcnt}, v{voff}, {srd(R_DBG)}, 0 offen sc1")
    e("s_waitcnt vmcnt(0)")
    e(f"s_branch {lo}")
    lab(done)

def poll_quads(regs, voff, offs, t):
    big = max(offs) > 4095
    lo, done = newlabel("poll"), newlabel("pdone")
    e(f"s_mov_b32 s{S_CNT}, {OPT['spin_cap']}")
    lab(lo)
    for r, o in zip(regs, offs):
        if big:
            e(f"s_mov_b32 s{S_OFF}, {o}")
            e(f"buffer_load_dwordx4 {vr(r,4)}, v{voff}, {srd(R_WS)}, s{S_OFF} offen sc1")
        else:
            e(f"buffer_load_dwordx4 {vr(r,4)}, v{voff}, {srd(R_WS)}, 0 offen offset:{o} sc1")
    e("s_waitcnt vmcnt(0)")
    first = True
    for r in regs:
        if first:
            e(f"v_max_u32 v{t}, v{r}, v{r+1}")
            first = False
        else:
            e(f"v_max3_u32 v{t}, v{t}, v{r}, v{r+1}")
        e(f"v_max3_u32 v{t}, v{t}, v{r+2}, v{r+3}")
    e(f"v_cmp_eq_u32 vcc, -1, v{t}")
    e("s_nop 4")
    e(f"s_cbranch_vccz {done}")
    e(f"s_sub_u32 s{S_CNT}, s{S_CNT}, 1")
    e(f"s_cmp_eq_u32 s{S_CNT}, 0")
    e(f"s_cbranch_scc1 {done}")
    e(f"s_sleep {OPT['sleep']}")
    e(f"s_branch {lo}")
    lab(done)

early_slots = [8, 12, 16, 20, 24, 28, 32, 36, 40]
ring_slots = list(range(SRING0, NVGPR, 4))
free_slots = early_slots + ring_slots
slot_of = {}
vmid = {}
def sl(kind, i): return slot_of[(kind, i)]
def issue(kind, i):
    free_slots.sort()
    slot_of[(kind, i)] = free_slots.pop(-1 if kind == "tw" else 0)
    r = sl(kind, i)
    n = (kind, i)
    if kind in ("k", "v"):
        T, j = divmod(i, 3)
        e(f"s_add_u32 s{S_OFF}, s{S_FB}, {T*3072}")
        vo, rr, pol = (V_KOFF, R_K, KNT) if kind == "k" else (V_VOFF, R_V, VNT)
        vmid[n] = vm.issue(f"buffer_load_dwordx4 {vr(r,4)}, v{vo}, {srd(rr)}, s{S_OFF} offen offset:{256*j}{pol}")
    elif kind == "tw":
        if i < 6:
            e(f"s_mov_b32 s{S_OFF}, {i*40960}")
            vmid[n] = vm.issue(f"buffer_load_dwordx4 {vr(r,4)}, v{V_TWO}, {srd(R_WO)}, s{S_OFF} offen{WNT}")
        else:
            e(f"s_mov_b32 s{S_OFF}, {(i-6)*40960}")
            vo = V_TWO if i == 6 else V_TWO2
            vmid[n] = vm.issue(f"buffer_load_dwordx4 {vr(r,4)}, v{vo}, {srd(R_W2)}, s{S_OFF} offen{WNT}")
def release(kind, idxs):
    for i in idxs:
        if slot_of[(kind, i)] in ring_slots:
            free_slots.append(slot_of[(kind, i)])
main = [("k", i) for i in range(3*F)] + [("v", i) for i in range(3*F-12)] + [("tw", i) for i in range(8)] + [("v", i) for i in range(3*F-12, 3*F)]
pos_of = {n: i for i, n in enumerate(main)}
st = dict(pos=0, landed=0)
D = OPT["depth"]
def can_issue():
    return st["pos"] < len(main) and bool(free_slots)
def wait_main(j):
    if st["landed"] <= j:
        vm.wait(vmid[main[j]])
        st["landed"] = j + 1
def paced_issue(d=None):
    d = D if d is None else d
    p = st["pos"]
    if p >= d:
        wait_main(p - d)
    issue(*main[p]); st["pos"] += 1

L.append(HEADER.rstrip("\n"))
L.append(f"; @launch grid=(256,1,1) block=(640,1,1) lds={LDS_TOTAL}")
L.append('.amdgcn_target "amdgcn-amd-amdhsa--gfx950"')
L.append(".text")
L.append(f".globl {NAME}_kernel")
L.append(".p2align 8")
L.append(f".type {NAME}_kernel,@function")
lab(f"{NAME}_kernel")
e("s_cmp_ge_u32 s2, 256")
e("s_cbranch_scc1 L_end")
e("s_load_dwordx16 s[4:19], s[0:1], 0")
e("s_load_dwordx8 s[20:27], s[0:1], 64")
e("s_load_dwordx2 s[28:29], s[0:1], 96")
cm("head = b>>3 ; split = b&7  (the 8 splits of a head sit on 8 different XCDs)")
e(f"s_lshr_b32 s{S_HEAD}, s2, 3")
e(f"s_and_b32 s{S_SPLIT}, s2, 7")
e(f"v_lshrrev_b32 v{V_T}, 6, v{V_TID}")
e(f"v_and_b32 v{V_LANE}, 63, v{V_TID}")
e(f"v_readfirstlane_b32 s{S_WAVE}, v{V_T}")
e(f"s_mov_b32 s{S_HI}, 0xffff0000")
e(f"s_mov_b32 s{S_L2E}, 0x3fb8aa3b")
e(f"s_mov_b32 s{S_SCALE}, 0x3d93cd3a")
Vc, Vg = 58, 59
e(f"v_and_b32 v{Vc}, 15, v{V_LANE}")
e(f"v_lshrrev_b32 v{Vg}, 4, v{V_LANE}")
e(f"v_cmp_gt_u32 s[{S_MC8}:{S_MC8+1}], 8, v{Vc}")
cm("K voffset = m*768 + g*64 + u*16 ; V voffset = g*768 + c*16 ; fixed part starts at (split*64F + w*8F)*384")
e(f"v_bfe_u32 v60, v{V_LANE}, 2, 2")
e(f"v_mul_u32_u24 v60, 768, v60")
e(f"v_lshl_add_u32 v60, v{Vg}, 6, v60")
e(f"v_and_b32 v61, 3, v{V_LANE}")
e(f"v_lshl_add_u32 v{V_KOFF}, v61, 4, v60")
e(f"v_mul_u32_u24 v60, 768, v{Vg}")
e(f"v_lshl_add_u32 v{V_VOFF}, v{Vc}, 4, v60")
e(f"s_lshl_b32 s{S_FB}, s{S_SPLIT}, 3")
e(f"s_add_u32 s{S_FB}, s{S_FB}, s{S_WAVE}")
e(f"s_mul_i32 s{S_FB}, s{S_FB}, {8*F*384}")
e("s_waitcnt lgkmcnt(0)")
cm("SRDs")
S_LW = 95
e(f"s_lshl_b32 s{S_LW}, s{S_HEAD}, 3")
e(f"s_add_u32 s{S_LW}, s{S_LW}, s{S_SPLIT}")
e(f"s_mul_i32 s{S_T1}, s{S_HEAD}, 3145728")
make_srd(R_K, P_K, S_T1, 3145728)
make_srd(R_V, P_V, S_T1, 3145728)
make_srd(R_X, P_X, None, 1280)
make_srd(R_GW, P_GW, None, 1280)
e(f"s_mul_i32 s{S_T1}, s{S_HEAD}, 384")
make_srd(R_WQ, P_WQ, S_T1, 640 * 12288, S_T1)
e(f"s_mul_i32 s{S_T1}, s{S_HEAD}, 96")
make_srd(R_W1, P_W1, S_T1, 640 * 3072, S_T1)
make_srd(R_W3, P_W3, S_T1, 640 * 3072, S_T1)
make_srd(R_WS, P_WS, None, WS_BYTES)
make_srd(R_DBG, P_DBG, None, 256)
make_srd(R_OUT, P_OUT, None, 1280)
e(f"s_mul_i32 s{S_T1}, s{S_HEAD}, {192*1280}")
e(f"s_mul_i32 s{S_T2}, s{S_SPLIT}, 160")
e(f"s_add_u32 s{S_T1}, s{S_T1}, s{S_T2}")
make_srd(R_WO, P_WO, S_T1, 6144 * 1280, S_T1)
e(f"s_mul_i32 s{S_T1}, s{S_HEAD}, {48*1280}")
e(f"s_add_u32 s{S_T1}, s{S_T1}, s{S_T2}")
make_srd(R_W2, P_W2, S_T1, 1536 * 1280, S_T1)
stamp(0, 4, 5)
e(f"s_cmp_ge_u32 s{S_WAVE}, 8")
e("s_cbranch_scc1 L_helper")

cm("================= streaming waves =================")
cm("park K tiles until q is ready")
D0 = OPT["depth0"]
for _ in range(D0):
    paced_issue(D0)
e("s_barrier")
while can_issue() and st["pos"] < 3 * F:
    paced_issue(D0)
cm("tail weight voffsets: rgrp*1280 + cc*16 (cc<10)")
e(f"v_lshrrev_b32 v{V_T}, 4, v{V_LANE}")
e(f"s_lshl_b32 s{S_T0}, s{S_WAVE}, 2")
e(f"v_add_u32 v{V_T}, s{S_T0}, v{V_T}")
e(f"v_mul_u32_u24 v{V_T}, 1280, v{V_T}")
e(f"v_and_b32 v{V_T+1}, 15, v{V_LANE}")
e(f"v_lshl_add_u32 v{V_T}, v{V_T+1}, 4, v{V_T}")
e(f"v_mov_b32 v{V_T+2}, {OOB:#x}")
e(f"v_cmp_gt_u32 vcc, 10, v{V_T+1}")
e("s_nop 1")
e(f"v_cndmask_b32 v{V_TWO}, v{V_T+2}, v{V_T}, vcc")
e(f"s_cmp_lt_u32 s{S_WAVE}, 4")
e(f"s_cselect_b64 vcc, vcc, 0")
e("s_nop 1")
e(f"v_cndmask_b32 v{V_TWO2}, v{V_T+2}, v{V_T}, vcc")
cm("pool ticket address (lane 0)")
e(f"s_lshl_b32 s{S_T0}, s{S_HEAD}, 7")
e(f"s_add_u32 s{S_T0}, s{S_T0}, {WS_POOL}")
e(f"v_mov_b32 v{V_CLMO}, s{S_T0}")
e(f"v_cmp_eq_u32 vcc, 0, v{V_LANE}")
e(f"v_mov_b32 v{V_CLM}, 1")
e("s_nop 0")
e(f"v_cndmask_b32 v{V_CLMO}, v{V_T+2}, v{V_CLMO}, vcc")
cm("q fragment addresses: g=l>>4,u=l&3 ; qo = g*64+u*16")
e(f"v_lshrrev_b32 v4, 4, v{V_LANE}")
e(f"v_and_b32 v5, 3, v{V_LANE}")
e(f"v_lshlrev_b32 v5, 4, v5")
e(f"v_lshl_add_u32 v5, v4, 6, v5")
e(f"v_add_u32 v5, {LDS_QBF}, v5")
e(f"v_mov_b32 v6, {LDS_ZERO}")
e(f"v_cmp_gt_u32 vcc, 32, v{V_LANE}")
e(f"v_add_u32 v7, 256, v5")
e(f"v_subrev_u32 v4, 128, v5")
e(f"v_cndmask_b32 v7, v6, v7, vcc")
e(f"v_cndmask_b32 v4, v4, v6, vcc")
e(f"v_mov_b32 v{V_MAX}, 0xff800000")
stamp(1, 76, 77)
e("s_barrier")
B0, B1L, B1H, B2 = V_QF, V_QF + 4, V_QF + 8, V_QF + 12
e(f"ds_read_b128 {vr(B0,4)}, v5")
e(f"ds_read_b128 {vr(B1L,4)}, v7")
e(f"ds_read_b128 {vr(B1H,4)}, v4")
e(f"ds_read_b128 {vr(B2,4)}, v5 offset:128")
e("s_waitcnt lgkmcnt(0)")
stamp(2, 76, 77)

def mfma_tile(r0, r1, r2, aX, aY):
    e(f"v_mfma_f32_16x16x32_bf16 {vr(aX,4)}, {vr(r0,4)}, {vr(B0,4)}, 0")
    e(f"v_mfma_f32_16x16x32_bf16 {vr(aY,4)}, {vr(r1,4)}, {vr(B1H,4)}, 0")
    e(f"v_mfma_f32_16x16x32_bf16 {vr(aX,4)}, {vr(r1,4)}, {vr(B1L,4)}, {vr(aX,4)}")
    e(f"v_mfma_f32_16x16x32_bf16 {vr(aY,4)}, {vr(r2,4)}, {vr(B2,4)}, {vr(aY,4)}")
def score_pair(aX, aY, dst, tx, ty):
    e(f"v_mov_b32_dpp v{tx}, v{aX} quad_perm:[0,0,0,0] row_mask:0xf bank_mask:0xf")
    e(f"v_mov_b32_dpp v{ty}, v{aY} quad_perm:[0,0,0,0] row_mask:0xf bank_mask:0xf")
    for r in (1, 2, 3):
        e(f"v_add_f32_dpp v{tx}, v{aX+r}, v{tx} quad_perm:[{r},{r},{r},{r}] row_mask:0xf bank_mask:0xf")
        e(f"v_add_f32_dpp v{ty}, v{aY+r}, v{ty} quad_perm:[{r},{r},{r},{r}] row_mask:0xf bank_mask:0xf")
    e(f"v_cvt_pk_bf16_f32 v{tx}, v{tx}, v{ty}")
    e(f"v_and_b32 v{ty}, s{S_HI}, v{tx}")
    e(f"v_lshlrev_b32 v{tx}, 16, v{tx}")
    e(f"v_mul_f32 v{tx}, s{S_SCALE}, v{tx}")
    e(f"v_mul_f32 v{ty}, s{S_SCALE}, v{ty}")
    e(f"v_cvt_pk_bf16_f32 v{dst}, v{tx}, v{ty}")
    e(f"v_and_b32 v{ty}, s{S_HI}, v{dst}")
    e(f"v_lshlrev_b32 v{tx}, 16, v{dst}")
def post_scores(T):
    aX = V_MACC + 8 * (T & 1)
    score_pair(aX, aX + 4, V_SC + T, t0, t1)
    e(f"v_max3_f32 v{V_MAX}, v{V_MAX}, v{t0}, v{t1}")
def consume_k(T):
    n0 = 3 * T
    aX = V_MACC + 8 * (T & 1)
    cm(f"K tile {T}")
    mfma_tile(sl('k', n0), sl('k', n0 + 1), sl('k', n0 + 2), aX, aX + 4)
    release("k", range(n0, n0 + 3))
    if T > 0:
        post_scores(T - 1)
    else:
        e("s_nop 7")
    if T == F - 1:
        e("s_nop 1")
        post_scores(F - 1)
        stamp(3, 76, 77)
        cm("wave max")
        allgroups("v_max_f32", V_MAX, t0)
        e(f"v_mul_f32 v{V_ML2}, s{S_L2E}, v{V_MAX}")
        e(f"v_mov_b32 v{V_LS}, 0")
        for i in range(24):
            e(f"v_mov_b32 v{V_ACC+i}, 0")
def pv_tile(r0, r1, r2):
    e(f"v_cndmask_b32 v{pM}, v{pY}, v{pX}, s[{S_MC8}:{S_MC8+1}]")
    e(f"v_add_f32 v{V_LS}, v{V_LS}, v{pX}")
    e(f"v_add_f32 v{V_LS}, v{V_LS}, v{pY}")
    for j, (r, p) in enumerate(((r0, pX), (r1, pM), (r2, pY))):
        fma_tile(r, p, V_ACC + 8 * j, t0, t1)
def consume_v(T):
    n0 = 3 * T
    cm(f"V tile {T}")
    e(f"v_lshlrev_b32 v{pX}, 16, v{V_SC+T}")
    e(f"v_and_b32 v{pY}, s{S_HI}, v{V_SC+T}")
    e(f"v_fma_f32 v{pX}, v{pX}, s{S_L2E}, -v{V_ML2}")
    e(f"v_fma_f32 v{pY}, v{pY}, s{S_L2E}, -v{V_ML2}")
    e(f"v_exp_f32 v{pX}, v{pX}")
    e(f"v_exp_f32 v{pY}, v{pY}")
    e("s_nop 0")
    pv_tile(sl("v", n0), sl("v", n0 + 1), sl("v", n0 + 2))
    release("v", range(n0, n0 + 3))
tile = 0
claimed = False
while tile < 2 * F:
    last = pos_of[("k", 3 * tile + 2) if tile < F else ("v", 3 * (tile - F) + 2)]
    if can_issue():
        paced_issue()
        if st["pos"] == len(main) - 3 and NPOOL:
            cm("first pool ticket")
            vm.issue(f"buffer_atomic_add v{V_CLM}, v{V_CLMO}, {srd(R_WS)}, 0 offen sc0")
            claimed = True
    else:
        wait_main(last)
    if st["landed"] > last:
        if tile < F: consume_k(tile)
        else: consume_v(tile - F)
        tile += 1
assert st["pos"] == len(main)
stamp(10, 76, 77)
tws = sorted(slot_of[("tw", i)] for i in range(8))
assert tws == list(range(NVGPR - 32, NVGPR, 4)), tws
if NPOOL:
    assert claimed
    cm("==== pool tiles: claimed one at a time, online softmax per lane group ====")
    BUF = [[SRING0 + 4 * i for i in range(6)], [SRING0 + 24 + 4 * i for i in range(6)]]
    S_C = 30
    def pool_next(buf, lbl_none):
        e(f"v_readfirstlane_b32 s{S_C}, v{V_CLM}")
        e(f"v_mov_b32 v{V_CLM}, 1")
        e("s_nop 2")
        e(f"s_cmp_ge_u32 s{S_C}, {NPOOL}")
        e(f"s_cbranch_scc1 {lbl_none}")
        e(f"s_mul_i32 s{S_OFF}, s{S_C}, 3072")
        e(f"s_add_u32 s{S_OFF}, s{S_OFF}, {512*F*384}")
        e(f"buffer_atomic_add v{V_CLM}, v{V_CLMO}, {srd(R_WS)}, 0 offen sc0")
        for j in range(3):
            e(f"buffer_load_dwordx4 {vr(buf[j],4)}, v{V_KOFF}, {srd(R_K)}, s{S_OFF} offen offset:{256*j}{KNT}")
        for j in range(3):
            e(f"buffer_load_dwordx4 {vr(buf[3+j],4)}, v{V_VOFF}, {srd(R_V)}, s{S_OFF} offen offset:{256*j}{VNT}")
    def pool_front(buf):
        e("s_waitcnt vmcnt(3)")
        mfma_tile(buf[0], buf[1], buf[2], V_MACC, V_MACC + 4)
        e("s_nop 7")
        score_pair(V_MACC, V_MACC + 4, 4, pX, pY)
        e(f"v_max3_f32 v{t0}, v{V_MAX}, v{pX}, v{pY}")
        e(f"v_sub_f32 v{t1}, v{V_MAX}, v{t0}")
        e(f"v_mul_f32 v{t1}, s{S_L2E}, v{t1}")
        e(f"v_exp_f32 v{t1}, v{t1}")
        e(f"v_mov_b32 v{V_MAX}, v{t0}")
        e(f"v_mul_f32 v{V_ML2}, s{S_L2E}, v{t0}")
        e(f"v_fma_f32 v{pX}, v{pX}, s{S_L2E}, -v{V_ML2}")
        e(f"v_fma_f32 v{pY}, v{pY}, s{S_L2E}, -v{V_ML2}")
        e(f"v_exp_f32 v{pX}, v{pX}")
        e(f"v_exp_f32 v{pY}, v{pY}")
        e(f"v_mul_f32 v{V_LS}, v{V_LS}, v{t1}")
        for i in range(24):
            e(f"v_mul_f32 v{V_ACC+i}, v{V_ACC+i}, v{t1}")
        e(f"s_waitcnt vmcnt({OPT['pool_ahead']})")
    e("s_waitcnt vmcnt(0)")
    pool_next(BUF[0], "L_pool_done")
    lab("L_pool_loop")
    pool_front(BUF[0])
    pool_next(BUF[1], "L_pool_lastA")
    if OPT['pool_ahead']: e("s_waitcnt vmcnt(7)")
    pv_tile(*BUF[0][3:])
    pool_front(BUF[1])
    pool_next(BUF[0], "L_pool_lastB")
    if OPT['pool_ahead']: e("s_waitcnt vmcnt(7)")
    pv_tile(*BUF[1][3:])
    e("s_branch L_pool_loop")
    lab("L_pool_lastA")
    e("s_waitcnt vmcnt(0)")
    pv_tile(*BUF[0][3:])
    e("s_branch L_pool_done")
    lab("L_pool_lastB")
    e("s_waitcnt vmcnt(0)")
    pv_tile(*BUF[1][3:])
    lab("L_pool_done")
    cm("bring the 4 lane groups to a common max")
    e(f"v_mov_b32 v{pX}, v{V_MAX}")
    allgroups("v_max_f32", V_MAX, t0)
    e(f"v_sub_f32 v{t1}, v{pX}, v{V_MAX}")
    e(f"v_mul_f32 v{t1}, s{S_L2E}, v{t1}")
    e(f"v_exp_f32 v{t1}, v{t1}")
    e("s_nop 0")
    e(f"v_mul_f32 v{V_LS}, v{V_LS}, v{t1}")
    for i in range(24):
        e(f"v_mul_f32 v{V_ACC+i}, v{V_ACC+i}, v{t1}")
stamp(4, 76, 77)
V_CNT, V_CNTO = 16, 17
cm("slice counter (only the reducers look at it)")
e(f"s_lshl_b32 s{S_T0}, s{S_SPLIT}, 5")
e(f"s_add_u32 s{S_T0}, s{S_T0}, 4")
e(f"v_mov_b32 v{V_CNTO}, s{S_T0}")
e(f"buffer_load_dword v{V_CNT}, v{V_CNTO}, {srd(R_DBG)}, 0 offen sc1")
cm("==== T0: wave reduce ====")
swap_reduce(V_ACC, 24)
red24_to_lds(V_ACC, 4, 5, 6, 7)
allgroups("v_add_f32", V_LS, V_T)
e(f"s_lshl_b32 s{S_T0}, s{S_WAVE}, 3")
e(f"v_mov_b32 v4, s{S_T0}")
e(f"v_mov_b32 v6, v{V_MAX}")
e(f"v_mov_b32 v7, v{V_LS}")
e(f"ds_write_b64 v4, v[6:7] offset:{LDS_STAT}")
e("s_waitcnt lgkmcnt(0)")
e("s_barrier")

cm("==== T1: wave 0 combines the 8 waves and publishes ====")
e(f"s_lshl_b32 s{S_T1}, s{S_HEAD}, 3")
e(f"s_add_u32 s{S_T2}, s{S_T1}, s{S_SPLIT}")
e(f"s_cmp_lg_u32 s{S_WAVE}, 0")
e("s_cbranch_scc1 L_t1done")
e("v_mov_b32 v4, 0")
SB = SRING0
RB = 20
for w in range(4):
    e(f"ds_read_b128 {vr(SB+4*w,4)}, v4 offset:{LDS_STAT+16*w}")
e(f"v_lshlrev_b32 v5, 4, v{V_LANE}")
e(f"v_min_u32 v5, 752, v5")
for w in range(8):
    e(f"ds_read_b128 {vr(RB+8*w,4)}, v5 offset:{LDS_RED+1536*w}")
    e(f"ds_read_b128 {vr(RB+8*w+4,4)}, v5 offset:{LDS_RED+1536*w+768}")
e("s_waitcnt lgkmcnt(15)")
e(f"v_max3_f32 v6, v{SB}, v{SB+2}, v{SB+4}")
e(f"v_max3_f32 v6, v6, v{SB+6}, v{SB+8}")
e(f"v_max3_f32 v6, v6, v{SB+10}, v{SB+12}")
e(f"v_max_f32 v6, v6, v{SB+14}")
e(f"v_mul_f32 v7, s{S_L2E}, v6")
for w in range(8):
    e(f"v_fma_f32 v{SB+2*w}, v{SB+2*w}, s{S_L2E}, -v7")
for w in range(8):
    e(f"v_exp_f32 v{SB+2*w}, v{SB+2*w}")
e("s_nop 0")
e(f"v_mul_f32 v7, v{SB}, v{SB+1}")
for w in range(1, 8):
    e(f"v_fmac_f32 v7, v{SB+2*w}, v{SB+2*w+1}")
e("s_waitcnt lgkmcnt(0)")
for w in range(8):
    for i in range(4):
        e(f"v_add_f32 v{RB+8*w+i}, v{RB+8*w+i}, v{RB+8*w+4+i}")
    for i in range(4):
        if w == 0:
            e(f"v_mul_f32 v{8+i}, v{SB}, v{RB+i}")
        else:
            e(f"v_fmac_f32 v{8+i}, v{SB+2*w}, v{RB+8*w+i}")
cm("lane48: (M,L,0,0) ; lanes>=49: 0")
e(f"v_cmp_lt_u32 vcc, 47, v{V_LANE}")
e("s_nop 1")
for i in range(4):
    e(f"v_cndmask_b32 v{8+i}, v{8+i}, v4, vcc")
e(f"v_cmp_eq_u32 vcc, 48, v{V_LANE}")
e("s_nop 1")
e("v_cndmask_b32 v8, v8, v6, vcc")
e("v_cndmask_b32 v9, v9, v7, vcc")
canon4(8, 12)
e(f"s_lshl_b32 s{S_T0}, s{S_T2}, 10")
e(f"v_lshlrev_b32 v5, 4, v{V_LANE}")
e(f"v_add_u32 v5, s{S_T0}, v5")
e(f"buffer_store_dwordx4 v[8:11], v5, {srd(R_WS)}, 0 offen sc1")
lab("L_t1done")
stamp(5, 4, 5)
cm("all waves: wave j gathers outbox j of this head")
e(f"s_add_u32 s{S_T0}, s{S_T1}, s{S_WAVE}")
e(f"s_lshl_b32 s{S_T0}, s{S_T0}, 10")
e(f"v_lshlrev_b32 v5, 4, v{V_LANE}")
e(f"v_add_u32 v6, s{S_T0}, v5")
poll_quads([8], 6, [0], 7)
stamp(6, 4, 12)
e(f"s_lshl_b32 s{S_T0}, s{S_WAVE}, 10")
e(f"v_add_u32 v5, s{S_T0}, v5")
e(f"ds_write_b128 v5, v[8:11] offset:{LDS_GATH}")
e("s_waitcnt lgkmcnt(0)")
e("s_barrier")

cm("==== T3: combine splits, output GEMV slice ====")
e("v_mov_b32 v4, 0")
for j in range(8):
    e(f"ds_read_b64 v[{20+2*j}:{21+2*j}], v4 offset:{LDS_GATH+1024*j+768}")
e(f"v_lshrrev_b32 v5, 4, v{V_LANE}")
e(f"s_lshl_b32 s{S_T0}, s{S_WAVE}, 2")
e(f"v_add_u32 v5, s{S_T0}, v5")
e(f"v_and_b32 v6, 15, v{V_LANE}")
e(f"v_min_u32 v6, 5, v6")
e(f"v_lshl_add_u32 v6, v6, 5, v5")
e(f"v_lshlrev_b32 v6, 2, v6")
for j in range(8):
    e(f"ds_read_b32 v{36+j}, v6 offset:{LDS_GATH+1024*j}")
cm("h: f = rgrp, min(rgrp+32,47)")
e("v_lshlrev_b32 v7, 2, v5")
e(f"ds_read_b32 v44, v7 offset:{LDS_H48}")
e("v_add_u32 v7, 32, v5")
e("v_min_u32 v7, 47, v7")
e("v_lshlrev_b32 v7, 2, v7")
e(f"ds_read_b32 v45, v7 offset:{LDS_H48}")
e("s_waitcnt lgkmcnt(0)")
e("v_max3_f32 v6, v20, v22, v24")
e("v_max3_f32 v6, v6, v26, v28")
e("v_max3_f32 v6, v6, v30, v32")
e("v_max_f32 v6, v6, v34")
e(f"v_mul_f32 v7, s{S_L2E}, v6")
for j in range(8):
    e(f"v_fma_f32 v{20+2*j}, v{20+2*j}, s{S_L2E}, -v7")
for j in range(8):
    e(f"v_exp_f32 v{20+2*j}, v{20+2*j}")
e("s_nop 0")
e("v_mul_f32 v7, v20, v21")
e("v_mul_f32 v8, v20, v36")
for j in range(1, 8):
    e(f"v_fmac_f32 v7, v{20+2*j}, v{21+2*j}")
    e(f"v_fmac_f32 v8, v{20+2*j}, v{36+j}")
e("v_rcp_f32 v7, v7")
e("s_nop 0")
e("v_mul_f32 v8, v8, v7")
bf16_round(8)
e("s_nop 1")
for k in range(6):
    e(f"v_mov_b32_dpp v{46+k}, v8 row_newbcast:{k} row_mask:0xf bank_mask:0xf")
GA = V_ACC
for i in range(16):
    e(f"v_mov_b32 v{GA+i}, 0")
cm("tail weights landed long ago (covered by the vmcnt(0) of the polls)")
for k in range(6):
    fma_tile(sl("tw", k), 46 + k, GA, 4, 5)
for k in range(2):
    fma_tile(sl("tw", 6 + k), 44 + k, GA + 8, 4, 5)
swap_reduce(GA, 16)
cm("RED2[w] + (g>>1)*320 + cc*32 + (g&1)*16, cc<10")
e(f"v_lshrrev_b32 v5, 5, v{V_LANE}")
e(f"v_mul_u32_u24 v5, 320, v5")
e(f"v_bfe_u32 v6, v{V_LANE}, 4, 1")
e(f"v_lshl_add_u32 v5, v6, 4, v5")
e(f"v_and_b32 v6, 15, v{V_LANE}")
e(f"v_lshl_add_u32 v5, v6, 5, v5")
e(f"s_mul_i32 s{S_T0}, s{S_WAVE}, 640")
e(f"v_add_u32 v5, s{S_T0}, v5")
e(f"v_cmp_gt_u32 vcc, 10, v6")
e(f"s_and_saveexec_b64 s[{S_EX}:{S_EX+1}], vcc")
e(f"ds_write_b128 v5, v[{GA}:{GA+3}] offset:{LDS_RED2}")
e(f"s_mov_b64 exec, s[{S_EX}:{S_EX+1}]")
e("s_waitcnt lgkmcnt(0)")
e("s_barrier")

cm("==== T4: wave 0 publishes the slice partial ====")
e(f"s_cmp_lg_u32 s{S_WAVE}, 0")
e("s_cbranch_scc1 L_t4done")
e(f"v_lshlrev_b32 v5, 4, v{V_LANE}")
e(f"v_min_u32 v6, 624, v5")
for w in range(8):
    e(f"ds_read_b128 {vr(RB+4*w,4)}, v6 offset:{LDS_RED2+640*w}")
e("s_waitcnt lgkmcnt(0)")
for st in (1, 2, 4):
    for w in range(0, 8, 2 * st):
        for i in range(4):
            e(f"v_add_f32 v{RB+4*w+i}, v{RB+4*w+i}, v{RB+4*(w+st)+i}")
canon4(RB, 12)
e(f"s_lshl_b32 s{S_T0}, s{S_SPLIT}, 5")
e(f"s_add_u32 s{S_T0}, s{S_T0}, s{S_HEAD}")
e(f"s_mul_i32 s{S_T0}, s{S_T0}, 640")
e(f"s_add_u32 s{S_T0}, s{S_T0}, {WS_OUT2}")
e(f"v_add_u32 v5, s{S_T0}, v5")
e(f"v_mov_b32 v6, {OOB:#x}")
e(f"v_cmp_gt_u32 vcc, 40, v{V_LANE}")
e("s_nop 1")
e(f"v_cndmask_b32 v5, v6, v5, vcc")
e(f"buffer_store_dwordx4 {vr(RB,4)}, v5, {srd(R_WS)}, 0 offen sc1")
lab("L_t4done")

stamp(7, 4, 5)
cm("==== T5: reducer WGs (head == 4*split) ====")
e(f"s_lshl_b32 s{S_T0}, s{S_SPLIT}, 2")
e(f"s_cmp_lg_u32 s{S_T0}, s{S_HEAD}")
e("s_cbranch_scc1 " + ("L_fin" if OPT["stamps"] else "L_end"))
e("s_waitcnt vmcnt(0)")
spin_counter(0, 32, V_CNT, V_CNTO)
e(f"s_lshl_b32 s{S_T0}, s{S_SPLIT}, 5")
e(f"s_lshl_b32 s{S_T1}, s{S_WAVE}, 2")
e(f"s_add_u32 s{S_T0}, s{S_T0}, s{S_T1}")
e(f"s_mul_i32 s{S_T0}, s{S_T0}, 640")
e(f"s_add_u32 s{S_T0}, s{S_T0}, {WS_OUT2}")
e(f"v_lshlrev_b32 v5, 4, v{V_LANE}")
e(f"v_add_u32 v7, s{S_T0}, v5")
e(f"v_mov_b32 v6, {OOB:#x}")
e(f"v_cmp_gt_u32 vcc, 40, v{V_LANE}")
e("s_nop 1")
e(f"v_cndmask_b32 v7, v6, v7, vcc")
poll_quads([20, 24, 28, 32], 7, [0, 640, 1280, 1920], 8)
stamp(8, 4, 12)
for i in range(4):
    e(f"v_add_f32 v{20+i}, v{20+i}, v{24+i}")
    e(f"v_add_f32 v{28+i}, v{28+i}, v{32+i}")
for i in range(4):
    e(f"v_add_f32 v{20+i}, v{20+i}, v{28+i}")
e(f"s_mul_i32 s{S_T0}, s{S_WAVE}, 640")
e(f"v_add_u32 v5, s{S_T0}, v5")
e(f"v_cmp_gt_u32 vcc, 40, v{V_LANE}")
e(f"s_and_saveexec_b64 s[{S_EX}:{S_EX+1}], vcc")
e(f"ds_write_b128 v5, v[20:23] offset:{LDS_RED3}")
e(f"s_mov_b64 exec, s[{S_EX}:{S_EX+1}]")
e("s_waitcnt lgkmcnt(0)")
e("s_barrier")
e(f"s_cmp_gt_u32 s{S_WAVE}, 1")
e("s_cbranch_scc1 " + ("L_fin" if OPT["stamps"] else "L_end"))
e(f"v_min_u32 v5, 79, v{V_TID}")
e(f"v_lshlrev_b32 v5, 2, v5")
for w in range(8):
    e(f"ds_read_b32 v{20+w}, v5 offset:{LDS_RED3+640*w}")
    e(f"ds_read_b32 v{28+w}, v5 offset:{LDS_RED3+640*w+320}")
e("v_mov_b32 v4, 0")
e(f"ds_read_b32 v36, v4 offset:{LDS_HG+28}")
e("s_waitcnt lgkmcnt(0)")
for base in (20, 28):
    for a, b in ((0, 1), (2, 3), (4, 5), (6, 7), (0, 2), (4, 6), (0, 4)):
        e(f"v_add_f32 v{base+a}, v{base+a}, v{base+b}")
bf16_round(20)
bf16_round(28)
e("v_mul_f32 v20, v36, v20")
bf16_round(20)
e("v_sub_f32 v21, 1.0, v36")
bf16_round(21)
e("v_mul_f32 v21, v21, v28")
bf16_round(21)
e("v_add_f32 v20, v20, v21")
e("v_cvt_pk_bf16_f32 v20, v20, v20")
e(f"s_mul_i32 s{S_T0}, s{S_SPLIT}, 160")
e(f"v_lshlrev_b32 v5, 1, v{V_TID}")
e(f"v_add_u32 v5, s{S_T0}, v5")
e(f"v_mov_b32 v6, {OOB:#x}")
e(f"v_cmp_gt_u32 vcc, 80, v{V_TID}")
e("s_nop 1")
e(f"v_cndmask_b32 v5, v6, v5, vcc")
e(f"buffer_store_short v20, v5, {srd(R_OUT)}, 0 offen")
e("s_branch " + ("L_fin" if OPT["stamps"] else "L_end"))

L_SAVE = L
cm("================= helper waves (8: H0, 9: H1) =================")
lab("L_helper")
S_H = 31
e(f"s_sub_u32 s{S_H}, s{S_WAVE}, 8")
e(f"v_mov_b32 v63, {OOB:#x}")
e(f"v_lshlrev_b32 v8, 4, v{V_LANE}")
e("v_mov_b32 v57, v63")
for i in range(24):
    e(f"v_mov_b32 v{V_ACC+i}, 0")
cm("H0: clear own boxes to the sentinel (out1, out2 slot, qbox); zero LDS flag and zero block")
e(f"s_cmp_lg_u32 s{S_H}, 0")
e("s_cbranch_scc1 L_noclear")
e("v_mov_b32 v4, -1"); e("v_mov_b32 v5, -1"); e("v_mov_b32 v6, -1"); e("v_mov_b32 v7, -1")
e(f"s_mul_i32 s{S_T1}, s{S_LW}, {QB}")
e(f"s_add_u32 s{S_T1}, s{S_T1}, {WS_QBOX}")
e(f"v_add_u32 v11, s{S_T1}, v8")
e(f"buffer_store_dwordx4 v[4:7], v11, {srd(R_WS)}, 0 offen sc1")
e(f"v_cmp_gt_u32 vcc, 9, v{V_LANE}")
e("s_nop 1")
e(f"v_cndmask_b32 v11, v63, v11, vcc")
e(f"buffer_store_dwordx4 v[4:7], v11, {srd(R_WS)}, 0 offen offset:1024 sc1")
e(f"s_lshl_b32 s{S_T1}, s{S_LW}, 10")
e(f"v_add_u32 v9, s{S_T1}, v8")
e(f"buffer_store_dwordx4 v[4:7], v9, {srd(R_WS)}, 0 offen sc1")
e(f"s_lshl_b32 s{S_T1}, s{S_SPLIT}, 5")
e(f"s_add_u32 s{S_T1}, s{S_T1}, s{S_HEAD}")
e(f"s_mul_i32 s{S_T1}, s{S_T1}, 640")
e(f"s_add_u32 s{S_T1}, s{S_T1}, {WS_OUT2}")
e(f"v_add_u32 v10, s{S_T1}, v8")
e(f"v_cmp_gt_u32 vcc, 40, v{V_LANE}")
e("s_nop 1")
e(f"v_cndmask_b32 v10, v63, v10, vcc")
e(f"buffer_store_dwordx4 v[4:7], v10, {srd(R_WS)}, 0 offen sc1")
cm("split 0 zeroes the pool ticket counter of the head")
e(f"s_lshl_b32 s{S_T1}, s{S_HEAD}, 7")
e(f"s_add_u32 s{S_T1}, s{S_T1}, {WS_POOL}")
e(f"s_cmp_eq_u32 s{S_SPLIT}, 0")
e(f"s_cselect_b32 s{S_T1}, s{S_T1}, {OOB:#x}")
e(f"v_mov_b32 v12, s{S_T1}")
e(f"v_cmp_eq_u32 vcc, 0, v{V_LANE}")
e("s_nop 1")
e(f"v_cndmask_b32 v12, v63, v12, vcc")
e(f"buffer_store_dword v{V_ACC}, v12, {srd(R_WS)}, 0 offen sc1")
e(f"v_mov_b32 v12, {LDS_ZERO}")
e(f"ds_write_b128 v12, v[{V_ACC}:{V_ACC+3}]")
e(f"v_mov_b32 v12, {LDS_FLAG}")
e(f"ds_write_b32 v12, v{V_ACC}")
lab("L_noclear")
cm("wq rows: row0 = 80*split + 20g + 10h ; pairs T=0..4")
e(f"s_mul_i32 s{S_T0}, s{S_SPLIT}, 80")
e(f"s_mul_i32 s{S_T1}, s{S_H}, 10")
e(f"s_add_u32 s{S_T1}, s{S_T0}, s{S_T1}")
e(f"v_mul_u32_u24 v60, 20, v{Vg}")
e(f"v_add_u32 v60, s{S_T1}, v60")
e(f"v_lshlrev_b32 v61, 1, v60")
e(f"s_mov_b32 s{S_T1}, 12288")
e(f"v_mul_lo_u32 v60, v60, s{S_T1}")
e(f"v_lshl_add_u32 v{V_WQO}, v{Vc}, 4, v60")
e(f"v_add_u32 v{V_WQO+2}, 12416, v{V_WQO}")
e(f"v_add_u32 v62, 256, v{V_WQO}")
e(f"v_add_u32 v60, 12160, v{V_WQO}")
e(f"v_cndmask_b32 v{V_WQO+1}, v60, v62, s[{S_MC8}:{S_MC8+1}]")
hv = VM()
hv.issue(f"buffer_load_dwordx4 {vr(V_XW,4)}, v61, {srd(R_X)}, 0 offen")
hv.issue(f"buffer_load_dword v{V_XW+4}, v61, {srd(R_X)}, 0 offen offset:16")
hid = {}
for T in range(5):
    e(f"s_mov_b32 s{S_OFF}, {T*24576}")
    for j in range(3):
        hid[(T, j)] = hv.issue(f"buffer_load_dwordx4 {vr(RING0+4*(3*T+j),4)}, v{V_WQO+j}, {srd(R_WQ)}, s{S_OFF} offen{WNT}")
e(f"s_cmp_lg_u32 s{S_H}, 0")
e("s_cbranch_scc1 L_h1pre")
cm("H0: clears done -> arrive on the group counter (returning atomic, lane 0)")
e(f"s_lshl_b32 s{S_T1}, s{S_HEAD}, 3")
e(f"v_mov_b32 v10, s{S_T1}")
e(f"v_cmp_eq_u32 vcc, 0, v{V_LANE}")
e("v_mov_b32 v13, 1")
e("s_nop 0")
e(f"v_cndmask_b32 v10, v63, v10, vcc")
e("s_waitcnt lgkmcnt(0)")
e("s_barrier")
e("s_waitcnt vmcnt(17)")
e(f"buffer_atomic_add v13, v10, {srd(R_DBG)}, 0 offen sc0")
e("s_branch L_hq")
lab("L_h1pre")
cm("H1: gate/up partial loads: lane (cq=l&7 <6, r8=l>>3), rows 80*split + 10*r8 + k")
MB = RING0 + 60
e(f"v_lshrrev_b32 v9, 3, v{V_LANE}")
e(f"v_mul_u32_u24 v9, 10, v9")
e(f"v_add_u32 v9, s{S_T0}, v9")
e(f"v_lshlrev_b32 v10, 1, v9")
e(f"v_mul_u32_u24 v9, 3072, v9")
e(f"v_and_b32 v11, 7, v{V_LANE}")
e(f"v_lshl_add_u32 v9, v11, 4, v9")
e(f"v_cmp_gt_u32 vcc, 6, v11")
e("s_nop 1")
e(f"v_cndmask_b32 v57, v63, v9, vcc")
e(f"buffer_load_dwordx4 v[12:15], v10, {srd(R_X)}, 0 offen")
e(f"buffer_load_dword v16, v10, {srd(R_X)}, 0 offen offset:16")
NPRE = 5
for k in range(NPRE):
    e(f"s_mov_b32 s{S_OFF}, {k*3072}")
    e(f"buffer_load_dwordx4 {vr(MB+8*k,4)}, v57, {srd(R_W1)}, s{S_OFF} offen{WNT}")
    e(f"buffer_load_dwordx4 {vr(MB+8*k+4,4)}, v57, {srd(R_W3)}, s{S_OFF} offen{WNT}")
e("s_barrier")
lab("L_hq")
hpX, hpY, hpM, ht0, ht1 = 4, 5, 6, 7, 9
for T in range(5):
    k = hv.n - 1 - hid[(T, 2)]
    lx = newlabel("hw")
    e(f"s_cmp_eq_u32 s{S_H}, 1")
    e(f"s_cbranch_scc1 {lx}a")
    e(f"s_waitcnt vmcnt({k+1})")
    e(f"s_branch {lx}b")
    lab(lx + "a")
    e(f"s_waitcnt vmcnt({k+2+2*NPRE})")
    lab(lx + "b")
    e(f"v_lshlrev_b32 v{hpX}, 16, v{V_XW+T}")
    e(f"v_and_b32 v{hpY}, s{S_HI}, v{V_XW+T}")
    e(f"v_cndmask_b32 v{hpM}, v{hpY}, v{hpX}, s[{S_MC8}:{S_MC8+1}]")
    for j, p in enumerate((hpX, hpM, hpY)):
        fma_tile(RING0 + 4 * (3 * T + j), p, V_ACC + 8 * j, ht0, ht1)
stamp(1, 4, 5)
swap_reduce(V_ACC, 24)
red24_to_lds(V_ACC, 4, 5, 6, 7, sreg=S_H)
e("s_waitcnt lgkmcnt(0)")
e(f"s_cmp_eq_u32 s{S_H}, 1")
e("s_cbranch_scc1 L_h1")
cm("---- H0: wait for H1's half, publish the WG partial, gather the 8 partials of the head ----")
e(f"v_mov_b32 v12, {LDS_FLAG}")
e(f"s_mov_b32 s{S_CNT}, {OPT['spin_cap']*8}")
lab("L_h0flag")
e("ds_read_b32 v14, v12")
e("s_waitcnt lgkmcnt(0)")
e("v_readfirstlane_b32 s30, v14")
e(f"s_sub_u32 s{S_CNT}, s{S_CNT}, 1")
e(f"s_cmp_eq_u32 s{S_CNT}, 0")
e("s_cbranch_scc1 L_h0go")
e("s_cmp_eq_u32 s30, 0")
e("s_cbranch_scc1 L_h0flag")
lab("L_h0go")
e(f"v_min_u32 v5, 752, v8")
e(f"ds_read_b128 v[20:23], v5 offset:{LDS_RED}")
e(f"ds_read_b128 v[24:27], v5 offset:{LDS_RED+768}")
e(f"ds_read_b128 v[28:31], v5 offset:{LDS_RED+1536}")
e(f"ds_read_b128 v[32:35], v5 offset:{LDS_RED+1536+768}")
e(f"s_mul_i32 s{S_T0}, s{S_LW}, {QB}")
e(f"s_add_u32 s{S_T0}, s{S_T0}, {WS_QBOX}")
e(f"v_add_u32 v9, s{S_T0}, v8")
e(f"v_cmp_gt_u32 s[{S_MSK}:{S_MSK+1}], 48, v{V_LANE}")
e("s_nop 1")
e(f"v_cndmask_b32 v9, v63, v9, s[{S_MSK}:{S_MSK+1}]")
e("s_waitcnt lgkmcnt(0)")
for i in range(4):
    e(f"v_add_f32 v{20+i}, v{20+i}, v{24+i}")
    e(f"v_add_f32 v{28+i}, v{28+i}, v{32+i}")
for i in range(4):
    e(f"v_add_f32 v{20+i}, v{20+i}, v{28+i}")
canon4(20, 12)
e(f"buffer_store_dwordx4 v[20:23], v9, {srd(R_WS)}, 0 offen sc1")
cm("---- H0: last arriver tells the 8 WGs of the head that every box is cleared ----")
e("s_waitcnt vmcnt(1)")
e("v_readfirstlane_b32 s30, v13")
e(f"s_mul_i32 s{S_T0}, s{S_HEAD}, {8*QB}")
e(f"s_add_u32 s{S_T0}, s{S_T0}, {WS_QBOX+1152}")
e("s_and_b32 s30, s30, 7")
e("s_cmp_lg_u32 s30, 7")
e("s_cbranch_scc1 L_h0nogo")
e(f"v_mul_u32_u24 v9, {QB}, v{V_LANE}")
e(f"v_add_u32 v9, s{S_T0}, v9")
e(f"v_cmp_gt_u32 vcc, 8, v{V_LANE}")
e("v_mov_b32 v12, 0")
e("s_nop 0")
e(f"v_cndmask_b32 v9, v63, v9, vcc")
e(f"buffer_store_dword v12, v9, {srd(R_WS)}, 0 offen sc1")
lab("L_h0nogo")
e(f"s_mul_i32 s{S_T0}, s{S_LW}, {QB}")
e(f"s_add_u32 s{S_T0}, s{S_T0}, {WS_QBOX+1152}")
e(f"v_mov_b32 v10, s{S_T0}")
e(f"buffer_load_dword v13, v10, {srd(R_WS)}, 0 offen sc1")
stamp(2, 4, 5)
e("s_waitcnt vmcnt(0)")
e(f"s_mov_b32 s{S_CNT}, {OPT['spin_cap']}")
lab("L_h0gospin")
e("v_readfirstlane_b32 s30, v13")
e(f"s_sub_u32 s{S_CNT}, s{S_CNT}, 1")
e(f"s_cmp_eq_u32 s{S_CNT}, 0")
e("s_cbranch_scc1 L_h0godone")
e("s_cmp_lg_u32 s30, -1")
e("s_cbranch_scc1 L_h0godone")
e(f"s_sleep {OPT['sleep']}")
e(f"buffer_load_dword v13, v10, {srd(R_WS)}, 0 offen sc1")
e("s_waitcnt vmcnt(0)")
e("s_branch L_h0gospin")
lab("L_h0godone")
stamp(3, 4, 5)
e(f"s_mul_i32 s{S_T0}, s{S_HEAD}, {8*QB}")
e(f"s_add_u32 s{S_T0}, s{S_T0}, {WS_QBOX}")
e(f"v_add_u32 v9, s{S_T0}, v8")
e(f"v_cndmask_b32 v9, v63, v9, s[{S_MSK}:{S_MSK+1}]")
poll_quads([RING0 + 4 * j for j in range(8)], 9, [QB * j for j in range(8)], 7)
for stp in (1, 2, 4):
    for j in range(0, 8, 2 * stp):
        for i in range(4):
            e(f"v_add_f32 v{RING0+4*j+i}, v{RING0+4*j+i}, v{RING0+4*(j+stp)+i}")
e(f"v_cvt_pk_bf16_f32 v20, v{RING0}, v{RING0+1}")
e(f"v_cvt_pk_bf16_f32 v21, v{RING0+2}, v{RING0+3}")
e(f"v_lshlrev_b32 v5, 3, v{V_LANE}")
e(f"s_and_saveexec_b64 s[{S_EX}:{S_EX+1}], s[{S_MSK}:{S_MSK+1}]")
e(f"ds_write_b64 v5, v[20:21] offset:{LDS_QBF}")
e(f"s_mov_b64 exec, s[{S_EX}:{S_EX+1}]")
e("s_waitcnt lgkmcnt(0)")
stamp(4, 4, 5)
e("s_barrier")
e("s_branch " + ("L_fin" if OPT["stamps"] else "L_end"))

lab("L_h1")
e(f"v_mov_b32 v9, {LDS_FLAG}")
e("v_mov_b32 v10, 1")
e("ds_write_b32 v9, v10")
cm("---- H1: gate/up partial over this WG's 80 rows ----")
for k in range(NPRE, 10):
    e(f"s_mov_b32 s{S_OFF}, {k*3072}")
    r = RING0 + 8 * (k - NPRE)
    e(f"buffer_load_dwordx4 {vr(r,4)}, v57, {srd(R_W1)}, s{S_OFF} offen{WNT}")
    e(f"buffer_load_dwordx4 {vr(r+4,4)}, v57, {srd(R_W3)}, s{S_OFF} offen{WNT}")
MA = V_ACC
for i in range(16):
    e(f"v_mov_b32 v{MA+i}, 0")
for k in range(10):
    e(f"s_waitcnt vmcnt({18-2*k})")
    if k % 2 == 0:
        e(f"v_lshlrev_b32 v5, 16, v{12+k//2}")
    else:
        e(f"v_and_b32 v5, s{S_HI}, v{12+k//2}")
    r = MB + 8 * k if k < NPRE else RING0 + 8 * (k - NPRE)
    fma_tile(r, 5, MA, 6, 7)
    fma_tile(r + 4, 5, MA + 8, 6, 7)
swap_reduce(MA, 16)
e("s_nop 1")
for i in range(4):
    e(f"v_add_f32_dpp v{MA+i}, v{MA+i}, v{MA+i} row_ror:8 row_mask:0xf bank_mask:0xf")
canon4(MA, 12)
cm("store at qbox + 768 + (g>>1)*192 + cq*32 + (g&1)*16 for (l&15)<6")
e(f"v_lshrrev_b32 v5, 5, v{V_LANE}")
e(f"v_mul_u32_u24 v5, 192, v5")
e(f"v_bfe_u32 v6, v{V_LANE}, 4, 1")
e(f"v_lshl_add_u32 v5, v6, 4, v5")
e(f"v_and_b32 v6, 15, v{V_LANE}")
e(f"v_lshl_add_u32 v5, v6, 5, v5")
e(f"s_mul_i32 s{S_T0}, s{S_LW}, {QB}")
e(f"s_add_u32 s{S_T0}, s{S_T0}, {WS_QBOX+768}")
e(f"v_add_u32 v5, s{S_T0}, v5")
e(f"v_cmp_gt_u32 vcc, 6, v6")
e("s_nop 1")
e(f"v_cndmask_b32 v5, v63, v5, vcc")
e(f"buffer_store_dwordx4 v[{MA}:{MA+3}], v5, {srd(R_WS)}, 0 offen sc1")
cm("gate logit operands: lane l owns elements 10l..10l+9")
e(f"v_mul_u32_u24 v4, 20, v{V_LANE}")
e(f"buffer_load_dwordx4 v[44:47], v4, {srd(R_X)}, 0 offen")
e(f"buffer_load_dword v48, v4, {srd(R_X)}, 0 offen offset:16")
e(f"buffer_load_dwordx4 v[52:55], v4, {srd(R_GW)}, 0 offen")
e(f"buffer_load_dword v56, v4, {srd(R_GW)}, 0 offen offset:16")
stamp(2, 4, 5)
e("s_waitcnt lgkmcnt(0)")
e("s_barrier")
cm("slice counter: this WG's out2 slot is cleared (H0 drained the clears before barrier #1)")
e(f"s_lshl_b32 s{S_T0}, s{S_SPLIT}, 5")
e(f"s_add_u32 s{S_T0}, s{S_T0}, 4")
e(f"v_mov_b32 v10, s{S_T0}")
e(f"v_cmp_eq_u32 vcc, 0, v{V_LANE}")
e("v_mov_b32 v12, 1")
e("s_nop 0")
e(f"v_cndmask_b32 v10, v63, v10, vcc")
e(f"buffer_atomic_add v12, v10, {srd(R_DBG)}, 0 offen")
cm("gather the 8 gate/up partials: lanes 0..11 gate quads, lanes 16..27 up quads")
e(f"v_and_b32 v5, 15, v{V_LANE}")
e(f"v_lshlrev_b32 v6, 4, v5")
e(f"v_lshrrev_b32 v7, 4, v{V_LANE}")
e(f"v_mul_u32_u24 v9, 192, v7")
e(f"v_add_u32 v6, v6, v9")
e(f"s_mul_i32 s{S_T0}, s{S_HEAD}, {8*QB}")
e(f"s_add_u32 s{S_T0}, s{S_T0}, {WS_QBOX+768}")
e(f"v_add_u32 v6, s{S_T0}, v6")
e(f"v_cmp_gt_u32 vcc, 12, v5")
e(f"v_cmp_gt_u32 s[{S_MSK}:{S_MSK+1}], 32, v{V_LANE}")
e(f"s_and_b64 vcc, vcc, s[{S_MSK}:{S_MSK+1}]")
e("s_nop 1")
e(f"v_cndmask_b32 v6, v63, v6, vcc")
poll_quads([RING0 + 4 * j for j in range(8)], 6, [QB * j for j in range(8)], 7)
for stp in (1, 2, 4):
    for j in range(0, 8, 2 * stp):
        for i in range(4):
            e(f"v_add_f32 v{RING0+4*j+i}, v{RING0+4*j+i}, v{RING0+4*(j+stp)+i}")
G0 = RING0; U0 = RING0 + 4
for i in range(4):
    bf16_round(G0 + i)
for i in range(4):
    e(f"v_mov_b32 v{U0+i}, v{G0+i}")
e("s_nop 1")
for i in range(4):
    e(f"v_permlane16_swap_b32 v{G0+i}, v{U0+i}")
for i in range(4):
    e(f"v_mul_f32 v{20+i}, s{S_L2E}, v{G0+i}")
    e(f"v_sub_f32 v{20+i}, 0, v{20+i}")
    e(f"v_exp_f32 v{20+i}, v{20+i}")
    e("s_nop 0")
    e(f"v_add_f32 v{20+i}, 1.0, v{20+i}")
    e(f"v_rcp_f32 v{20+i}, v{20+i}")
    e("s_nop 0")
    e(f"v_mul_f32 v{20+i}, v{G0+i}, v{20+i}")
    bf16_round(20 + i)
    e(f"v_mul_f32 v{20+i}, v{20+i}, v{U0+i}")
    bf16_round(20 + i)
e(f"v_cmp_gt_u32 vcc, 12, v{V_LANE}")
e(f"s_and_saveexec_b64 s[{S_EX}:{S_EX+1}], vcc")
e(f"ds_write_b128 v8, v[20:23] offset:{LDS_H48}")
e(f"s_mov_b64 exec, s[{S_EX}:{S_EX+1}]")
cm("gate logit")
e("v_mov_b32 v20, 0")
for k in range(10):
    if k % 2 == 0:
        e(f"v_lshlrev_b32 v5, 16, v{44+k//2}")
        e(f"v_lshlrev_b32 v6, 16, v{52+k//2}")
    else:
        e(f"v_and_b32 v5, s{S_HI}, v{44+k//2}")
        e(f"v_and_b32 v6, s{S_HI}, v{52+k//2}")
    e("v_mul_f32 v6, v5, v6")
    bf16_round(6)
    e("v_add_f32 v20, v20, v6")
allgroups("v_add_f32", 20, 21)
for sh in (8, 4, 2, 1):
    e("s_nop 1")
    e(f"v_add_f32_dpp v20, v20, v20 row_ror:{sh} row_mask:0xf bank_mask:0xf")
bf16_round(20)
e(f"v_mul_f32 v22, s{S_L2E}, v20")
e("v_sub_f32 v22, 0, v22")
e("v_exp_f32 v22, v22")
e("s_nop 0")
e("v_add_f32 v22, 1.0, v22")
e("v_rcp_f32 v22, v22")
e("s_nop 0")
bf16_round(22)
e(f"v_mov_b32 v4, {LDS_HG+28}")
e("ds_write_b32 v4, v22")
e("s_waitcnt lgkmcnt(0)")
stamp(3, 4, 5)
e("s_barrier")
e("s_branch " + ("L_fin" if OPT["stamps"] else "L_end"))

if OPT["stamps"]:
    lab("L_fin")
    stamp(9, 4, 5)
    e("s_getreg_b32 s98, hwreg(HW_REG_XCC_ID)")
    e("v_mov_b32 v4, s98")
    e(f"ds_write_b32 v5, v4 offset:{LDS_STAMP+4*15}")
    e("s_waitcnt lgkmcnt(0)")
    e(f"v_and_b32 v4, 15, v{V_LANE}")
    e("v_lshlrev_b32 v4, 2, v4")
    e("v_add_u32 v5, s100, v4")
    e(f"ds_read_b32 v6, v5 offset:{LDS_STAMP}")
    e("s_lshl_b32 s98, s2, 10")
    e("s_add_u32 s98, s98, 0x100000")
    e("v_add_u32 v5, s98, v5")
    e("s_waitcnt lgkmcnt(0)")
    e(f"buffer_store_dword v6, v5, {srd(R_WS)}, 0 offen")
lab("L_end")
e("s_endpgm")
L.append('.section .rodata,"a"')
L.append(".p2align 6")
L.append(f".amdhsa_kernel {NAME}_kernel")
L.append(f"  .amdhsa_next_free_vgpr {NVGPR}")
L.append("  .amdhsa_next_free_sgpr 102")
L.append(f"  .amdhsa_accum_offset {NVGPR}")
L.append("  .amdhsa_group_segment_fixed_size 0")
L.append("  .amdhsa_kernarg_size 104")
L.append("  .amdhsa_user_sgpr_count 2")
L.append("  .amdhsa_user_sgpr_kernarg_segment_ptr 1")
L.append("  .amdhsa_system_sgpr_workgroup_id_x 1")
L.append("  .amdhsa_float_denorm_mode_32 3")
L.append(".end_amdhsa_kernel")
out = sys.argv[1] if len(sys.argv) > 1 else f"cdna_kernels/{NAME}.s"
open(out, "w").write("\n".join(L) + "\n")
print("wrote", out, len(L), "lines")
```

```python
import sys

NAME = "gated_mix__mha_block_cached__glu_gated_swiglu__decode"
HEADER = open(f"cdna_kernels/{NAME}.s.ref").read().split("; Override launch geometry")[0]

OPT = dict(
    w_nt=True,
    spin_cap=400000,
    sleep=1,
    stamps=0,
    depth=4,
    depth0=3,
    kv_nt=1,
    v_nt=-1,
    dot2=1,
    pool_ahead=3,
    F=14,
)
for a in sys.argv[2:]:
    k, v = a.split("=")
    OPT[k] = type(OPT[k])(int(v))


L = []
def e(s=""):
    L.append("    " + s if s and not s.endswith(":") else s)
def lab(s):
    L.append(s + ":")
def cm(s):
    L.append("    ; " + s)

P_X, P_K, P_V, P_WQ, P_WO, P_BX, P_W1, P_W3, P_W2, P_GW, P_OUT, P_DBG, P_WS = [4 + 2 * i for i in range(13)]
R_K, R_V, R_WQ, R_WO, R_W1, R_W3, R_W2, R_X, R_GW, R_OUT, R_DBG, R_WS = [32 + 4 * i for i in range(12)]
S_HEAD, S_SPLIT, S_WAVE, S_OFF, S_HI, S_L2E, S_SCALE, S_T0, S_T1, S_T2, S_CNT = 80, 81, 82, 83, 84, 85, 86, 87, 92, 93, 94
S_MC8 = 88
S_MSK = 90
S_EX = 96
def srd(r): return f"s[{r}:{r+3}]"

V_TID, V_KOFF, V_VOFF, V_LANE = 0, 1, 2, 3
V_SC = 4
V_ACC = 20
V_QF = 44
V_MACC = 60
pX, pY, pM, t0, t1 = 76, 77, 78, 79, 80
V_MAX, V_ML2, V_LS = 81, 82, 83
V_TWO, V_TWO2 = 84, 85
V_CLM, V_CLMO = 86, 87
V_T = 76
SRING0 = 88
NVGPR = 168
V_XW = 44
V_WQO = 54
RING0 = 64
def vr(a, n): return f"v[{a}:{a+n-1}]"
F = OPT["F"]
NPOOL = 1024 - 64 * F
S_FB = 3

LDS_RED = 0
LDS_STAT = 12288
LDS_MLPR = 12352
LDS_QBF = 12864
LDS_ZERO = 13248
LDS_HG = 13280
LDS_GATH = 13312
LDS_RED2 = 21504
LDS_RED3 = 26624
LDS_STAMP = 31744
LDS_TOTAL = 31744 + (640 if OPT["stamps"] else 0)

WS_OUT1 = 0
WS_OUT2 = 262144
WS_QBOX = WS_OUT2 + 8 * 32 * 640
QB = 1280
WS_POOL = WS_QBOX + 256 * QB
WS_BYTES = WS_POOL + 32 * 128 if not OPT["stamps"] else (2 << 20)
LDS_H48 = LDS_MLPR
LDS_FLAG2 = LDS_HG + 20
LDS_FLAG = LDS_HG + 24
OOB = 0x80000000

class VM:
    def __init__(self): self.n = 0
    def issue(self, s):
        e(s); self.n += 1; return self.n - 1
    def wait(self, idx):
        k = self.n - 1 - idx
        assert k >= 0
        e(f"s_waitcnt vmcnt({min(k, 63)})")
vm = VM()

WNT = " nt" if OPT["w_nt"] else ""
_POL = {0: "", 1: " nt", 2: " sc1", 3: " sc0 sc1", 4: " sc1 nt", 5: " sc0"}
KNT = _POL[OPT["kv_nt"]]
VNT = _POL[OPT["v_nt"] if OPT["v_nt"] >= 0 else OPT["kv_nt"]]

def make_srd(r, p, off_s=None, nrec=None, nrec_s=None):
    if off_s is None:
        e(f"s_mov_b32 s{r}, s{p}")
        e(f"s_and_b32 s{r+1}, s{p+1}, 0xffff")
    else:
        e(f"s_add_u32 s{r}, s{p}, s{off_s}")
        e(f"s_addc_u32 s{r+1}, s{p+1}, 0")
        e(f"s_and_b32 s{r+1}, s{r+1}, 0xffff")
    if nrec_s is not None:
        e(f"s_sub_u32 s{r+2}, {nrec}, s{nrec_s}")
    else:
        e(f"s_mov_b32 s{r+2}, {nrec}")
    e(f"s_mov_b32 s{r+3}, 0x00020000")

def fma_tile(src, p, acc, t0, t1):
    for d in range(4):
        e(f"v_lshlrev_b32 v{t0}, 16, v{src+d}")
        e(f"v_and_b32 v{t1}, s{S_HI}, v{src+d}")
        e(f"v_fmac_f32 v{acc+2*d}, v{p}, v{t0}")
        e(f"v_fmac_f32 v{acc+2*d+1}, v{p}, v{t1}")

def dot_tile(src, phi, plo, acc, first):
    for d in range(4):
        if first:
            e(f"v_dot2_f32_bf16 v{acc+2*d}, v{src+d}, v{plo}, 0")
            e(f"v_dot2_f32_bf16 v{acc+2*d+1}, v{src+d}, v{phi}, 0")
        else:
            e(f"v_dot2c_f32_bf16 v{acc+2*d}, v{src+d}, v{plo}")
            e(f"v_dot2c_f32_bf16 v{acc+2*d+1}, v{src+d}, v{phi}")

def swap_reduce(acc, n):
    h = n // 2
    e("s_nop 1")
    for i in range(h):
        e(f"v_permlane32_swap_b32 v{acc+i}, v{acc+i+h}")
    for i in range(h):
        e(f"v_add_f32 v{acc+i}, v{acc+i}, v{acc+i+h}")
    q = h // 2
    e("s_nop 1")
    for i in range(q):
        e(f"v_permlane16_swap_b32 v{acc+i}, v{acc+i+q}")
    for i in range(q):
        e(f"v_add_f32 v{acc+i}, v{acc+i}, v{acc+i+q}")

def allgroups(op, v, t):
    e(f"v_mov_b32 v{t}, v{v}")
    e("s_nop 1")
    e(f"v_permlane32_swap_b32 v{v}, v{t}")
    e(f"{op} v{v}, v{v}, v{t}")
    e(f"v_mov_b32 v{t}, v{v}")
    e("s_nop 1")
    e(f"v_permlane16_swap_b32 v{v}, v{t}")
    e(f"{op} v{v}, v{v}, v{t}")

def red24_to_lds(acc, tA, tB, tC, tD, sreg=None):
    e(f"v_and_b32 v{tD}, 15, v{V_LANE}")
    e(f"v_lshlrev_b32 v{tD}, 5, v{tD}")
    e(f"s_mul_i32 s{S_T0}, s{S_WAVE if sreg is None else sreg}, 1536")
    e(f"v_add_u32 v{tD}, s{S_T0}, v{tD}")
    e(f"v_lshrrev_b32 v{tA}, 4, v{V_LANE}")
    e(f"v_mul_u32_u24 v{tA}, 6, v{tA}")
    for p in range(3):
        e(f"v_add_u32 v{tB}, {2*p}, v{tA}")
        e(f"v_lshrrev_b32 v{tC}, 3, v{tB}")
        e(f"v_lshl_add_u32 v{tC}, v{tC}, 9, v{tD}")
        e(f"v_and_b32 v{tB}, 7, v{tB}")
        e(f"v_lshl_add_u32 v{tC}, v{tB}, 2, v{tC}")
        e(f"ds_write_b64 v{tC}, v[{acc+2*p}:{acc+2*p+1}] offset:{LDS_RED}")

def canon4(r, t):
    e(f"v_mov_b32 v{t}, 0x7fc00000")
    for i in range(4):
        e(f"v_cmp_eq_u32 vcc, -1, v{r+i}")
        e("s_nop 1")
        e(f"v_cndmask_b32 v{r+i}, v{r+i}, v{t}, vcc")

def bf16_round(v, t=None):
    e(f"v_cvt_pk_bf16_f32 v{v}, v{v}, v{v}")
    e(f"v_lshlrev_b32 v{v}, 16, v{v}")

def stamp(k, ta, tb):
    if not OPT["stamps"]:
        return
    e("s_memrealtime s[98:99]")
    e(f"s_lshl_b32 s100, s{S_WAVE}, 6")
    e("s_waitcnt lgkmcnt(0)")
    e(f"v_mov_b32 v{ta}, s98")
    e(f"v_mov_b32 v{tb}, s100")
    e(f"ds_write_b32 v{tb}, v{ta} offset:{LDS_STAMP+4*k}")

_lbl = [0]
def newlabel(p):
    _lbl[0] += 1
    return f"L_{p}_{_lbl[0]}"

def spin_counter(lane_sel, target, vcnt, voff, hi=False):
    lo, done = newlabel("cspin"), newlabel("cdone")
    e(f"s_mov_b32 s{S_CNT}, {OPT['spin_cap']}")
    lab(lo)
    e(f"v_readlane_b32 s{S_T0}, v{vcnt}, {lane_sel}")
    e("s_nop 3")
    if hi:
        e(f"s_lshr_b32 s{S_T0}, s{S_T0}, 16")
    else:
        e(f"s_and_b32 s{S_T0}, s{S_T0}, 0xffff")
    e(f"s_cmp_ge_u32 s{S_T0}, {target}")
    e(f"s_cbranch_scc1 {done}")
    e(f"s_sub_u32 s{S_CNT}, s{S_CNT}, 1")
    e(f"s_cmp_eq_u32 s{S_CNT}, 0")
    e(f"s_cbranch_scc1 {done}")
    e("s_sleep 32")
    e(f"buffer_load_dword v{vcnt}, v{voff}, {srd(R_DBG)}, 0 offen sc1")
    e("s_waitcnt vmcnt(0)")
    e(f"s_branch {lo}")
    lab(done)

def poll_quads(regs, voff, offs, t):
    big = max(offs) > 4095
    lo, done = newlabel("poll"), newlabel("pdone")
    e(f"s_mov_b32 s{S_CNT}, {OPT['spin_cap']}")
    lab(lo)
    for r, o in zip(regs, offs):
        if big:
            e(f"s_mov_b32 s{S_OFF}, {o}")
            e(f"buffer_load_dwordx4 {vr(r,4)}, v{voff}, {srd(R_WS)}, s{S_OFF} offen sc1")
        else:
            e(f"buffer_load_dwordx4 {vr(r,4)}, v{voff}, {srd(R_WS)}, 0 offen offset:{o} sc1")
    e("s_waitcnt vmcnt(0)")
    first = True
    for r in regs:
        if first:
            e(f"v_max_u32 v{t}, v{r}, v{r+1}")
            first = False
        else:
            e(f"v_max3_u32 v{t}, v{t}, v{r}, v{r+1}")
        e(f"v_max3_u32 v{t}, v{t}, v{r+2}, v{r+3}")
    e(f"v_cmp_eq_u32 vcc, -1, v{t}")
    e("s_nop 4")
    e(f"s_cbranch_vccz {done}")
    e(f"s_sub_u32 s{S_CNT}, s{S_CNT}, 1")
    e(f"s_cmp_eq_u32 s{S_CNT}, 0")
    e(f"s_cbranch_scc1 {done}")
    e(f"s_sleep {OPT['sleep']}")
    e(f"s_branch {lo}")
    lab(done)

early_slots = [8, 12, 16, 20, 24, 28, 32, 36, 40]
ring_slots = list(range(SRING0, NVGPR, 4))
free_slots = early_slots + ring_slots
slot_of = {}
vmid = {}
def sl(kind, i): return slot_of[(kind, i)]
def issue(kind, i):
    free_slots.sort()
    slot_of[(kind, i)] = free_slots.pop(-1 if kind == "tw" else 0)
    r = sl(kind, i)
    n = (kind, i)
    if kind in ("k", "v"):
        T, j = divmod(i, 3)
        e(f"s_add_u32 s{S_OFF}, s{S_FB}, {T*3072}")
        vo, rr, pol = (V_KOFF, R_K, KNT) if kind == "k" else (V_VOFF, R_V, VNT)
        vmid[n] = vm.issue(f"buffer_load_dwordx4 {vr(r,4)}, v{vo}, {srd(rr)}, s{S_OFF} offen offset:{256*j}{pol}")
    elif kind == "tw":
        if i < 6:
            e(f"s_mov_b32 s{S_OFF}, {i*40960}")
            vmid[n] = vm.issue(f"buffer_load_dwordx4 {vr(r,4)}, v{V_TWO}, {srd(R_WO)}, s{S_OFF} offen{WNT}")
        else:
            e(f"s_mov_b32 s{S_OFF}, {(i-6)*40960}")
            vo = V_TWO if i == 6 else V_TWO2
            vmid[n] = vm.issue(f"buffer_load_dwordx4 {vr(r,4)}, v{vo}, {srd(R_W2)}, s{S_OFF} offen{WNT}")
def release(kind, idxs):
    for i in idxs:
        if slot_of[(kind, i)] in ring_slots:
            free_slots.append(slot_of[(kind, i)])
main = [("k", i) for i in range(3*F)] + [("v", i) for i in range(3*F-12)] + [("tw", i) for i in range(8)] + [("v", i) for i in range(3*F-12, 3*F)]
pos_of = {n: i for i, n in enumerate(main)}
st = dict(pos=0, landed=0)
D = OPT["depth"]
def can_issue():
    return st["pos"] < len(main) and bool(free_slots)
def wait_main(j):
    if st["landed"] <= j:
        vm.wait(vmid[main[j]])
        st["landed"] = j + 1
def paced_issue(d=None):
    d = D if d is None else d
    p = st["pos"]
    if p >= d:
        wait_main(p - d)
    issue(*main[p]); st["pos"] += 1

L.append(HEADER.rstrip("\n"))
L.append(f"; @launch grid=(256,1,1) block=(640,1,1) lds={LDS_TOTAL}")
L.append('.amdgcn_target "amdgcn-amd-amdhsa--gfx950"')
L.append(".text")
L.append(f".globl {NAME}_kernel")
L.append(".p2align 8")
L.append(f".type {NAME}_kernel,@function")
lab(f"{NAME}_kernel")
e("s_cmp_ge_u32 s2, 256")
e("s_cbranch_scc1 L_end")
e("s_load_dwordx16 s[4:19], s[0:1], 0")
e("s_load_dwordx8 s[20:27], s[0:1], 64")
e("s_load_dwordx2 s[28:29], s[0:1], 96")
cm("head = b>>3 ; split = b&7  (the 8 splits of a head sit on 8 different XCDs)")
e(f"s_lshr_b32 s{S_HEAD}, s2, 3")
e(f"s_and_b32 s{S_SPLIT}, s2, 7")
e(f"v_lshrrev_b32 v{V_T}, 6, v{V_TID}")
e(f"v_and_b32 v{V_LANE}, 63, v{V_TID}")
e(f"v_readfirstlane_b32 s{S_WAVE}, v{V_T}")
e(f"s_mov_b32 s{S_HI}, 0xffff0000")
e(f"s_mov_b32 s{S_L2E}, 0x3fb8aa3b")
e(f"s_mov_b32 s{S_SCALE}, 0x3d93cd3a")
Vc, Vg = 58, 59
e(f"v_and_b32 v{Vc}, 15, v{V_LANE}")
e(f"v_lshrrev_b32 v{Vg}, 4, v{V_LANE}")
e(f"v_cmp_gt_u32 s[{S_MC8}:{S_MC8+1}], 8, v{Vc}")
cm("K voffset = m*768 + g*64 + u*16 ; V voffset = g*768 + c*16 ; fixed part starts at (split*64F + w*8F)*384")
e(f"v_bfe_u32 v60, v{V_LANE}, 2, 2")
e(f"v_mul_u32_u24 v60, 768, v60")
e(f"v_lshl_add_u32 v60, v{Vg}, 6, v60")
e(f"v_and_b32 v61, 3, v{V_LANE}")
e(f"v_lshl_add_u32 v{V_KOFF}, v61, 4, v60")
e(f"v_mul_u32_u24 v60, 768, v{Vg}")
e(f"v_lshl_add_u32 v{V_VOFF}, v{Vc}, 4, v60")
e(f"s_lshl_b32 s{S_FB}, s{S_SPLIT}, 3")
e(f"s_add_u32 s{S_FB}, s{S_FB}, s{S_WAVE}")
e(f"s_mul_i32 s{S_FB}, s{S_FB}, {8*F*384}")
e("s_waitcnt lgkmcnt(0)")
cm("SRDs")
S_LW = 95
e(f"s_lshl_b32 s{S_LW}, s{S_HEAD}, 3")
e(f"s_add_u32 s{S_LW}, s{S_LW}, s{S_SPLIT}")
e(f"s_mul_i32 s{S_T1}, s{S_HEAD}, 3145728")
make_srd(R_K, P_K, S_T1, 3145728)
make_srd(R_V, P_V, S_T1, 3145728)
make_srd(R_X, P_X, None, 1280)
make_srd(R_GW, P_GW, None, 1280)
e(f"s_mul_i32 s{S_T1}, s{S_HEAD}, 384")
make_srd(R_WQ, P_WQ, S_T1, 640 * 12288, S_T1)
e(f"s_mul_i32 s{S_T1}, s{S_HEAD}, 96")
make_srd(R_W1, P_W1, S_T1, 640 * 3072, S_T1)
make_srd(R_W3, P_W3, S_T1, 640 * 3072, S_T1)
make_srd(R_WS, P_WS, None, WS_BYTES)
make_srd(R_DBG, P_DBG, None, 256)
make_srd(R_OUT, P_OUT, None, 1280)
e(f"s_mul_i32 s{S_T1}, s{S_HEAD}, {192*1280}")
e(f"s_mul_i32 s{S_T2}, s{S_SPLIT}, 160")
e(f"s_add_u32 s{S_T1}, s{S_T1}, s{S_T2}")
make_srd(R_WO, P_WO, S_T1, 6144 * 1280, S_T1)
e(f"s_mul_i32 s{S_T1}, s{S_HEAD}, {48*1280}")
e(f"s_add_u32 s{S_T1}, s{S_T1}, s{S_T2}")
make_srd(R_W2, P_W2, S_T1, 1536 * 1280, S_T1)
stamp(0, 4, 5)
e(f"s_cmp_ge_u32 s{S_WAVE}, 8")
e("s_cbranch_scc1 L_helper")

cm("================= streaming waves =================")
cm("park K tiles until q is ready")
D0 = OPT["depth0"]
for _ in range(D0):
    paced_issue(D0)
e("s_barrier")
while can_issue() and st["pos"] < 3 * F:
    paced_issue(D0)
cm("tail weight voffsets: rgrp*1280 + cc*16 (cc<10)")
e(f"v_lshrrev_b32 v{V_T}, 4, v{V_LANE}")
e(f"s_lshl_b32 s{S_T0}, s{S_WAVE}, 2")
e(f"v_add_u32 v{V_T}, s{S_T0}, v{V_T}")
e(f"v_mul_u32_u24 v{V_T}, 1280, v{V_T}")
e(f"v_and_b32 v{V_T+1}, 15, v{V_LANE}")
e(f"v_lshl_add_u32 v{V_T}, v{V_T+1}, 4, v{V_T}")
e(f"v_mov_b32 v{V_T+2}, {OOB:#x}")
e(f"v_cmp_gt_u32 vcc, 10, v{V_T+1}")
e("s_nop 1")
e(f"v_cndmask_b32 v{V_TWO}, v{V_T+2}, v{V_T}, vcc")
e(f"s_cmp_lt_u32 s{S_WAVE}, 4")
e(f"s_cselect_b64 vcc, vcc, 0")
e("s_nop 1")
e(f"v_cndmask_b32 v{V_TWO2}, v{V_T+2}, v{V_T}, vcc")
cm("pool ticket address (lane 0)")
e(f"s_lshl_b32 s{S_T0}, s{S_HEAD}, 7")
e(f"s_add_u32 s{S_T0}, s{S_T0}, {WS_POOL}")
e(f"v_mov_b32 v{V_CLMO}, s{S_T0}")
e(f"v_cmp_eq_u32 vcc, 0, v{V_LANE}")
e(f"v_mov_b32 v{V_CLM}, 1")
e("s_nop 0")
e(f"v_cndmask_b32 v{V_CLMO}, v{V_T+2}, v{V_CLMO}, vcc")
cm("q fragment addresses: g=l>>4,u=l&3 ; qo = g*64+u*16")
e(f"v_lshrrev_b32 v4, 4, v{V_LANE}")
e(f"v_and_b32 v5, 3, v{V_LANE}")
e(f"v_lshlrev_b32 v5, 4, v5")
e(f"v_lshl_add_u32 v5, v4, 6, v5")
e(f"v_add_u32 v5, {LDS_QBF}, v5")
e(f"v_mov_b32 v6, {LDS_ZERO}")
e(f"v_cmp_gt_u32 vcc, 32, v{V_LANE}")
e(f"v_add_u32 v7, 256, v5")
e(f"v_subrev_u32 v4, 128, v5")
e(f"v_cndmask_b32 v7, v6, v7, vcc")
e(f"v_cndmask_b32 v4, v4, v6, vcc")
e(f"v_mov_b32 v{V_MAX}, 0xff800000")
stamp(1, 76, 77)
e("s_barrier")
B0, B1L, B1H, B2 = V_QF, V_QF + 4, V_QF + 8, V_QF + 12
e(f"ds_read_b128 {vr(B0,4)}, v5")
e(f"ds_read_b128 {vr(B1L,4)}, v7")
e(f"ds_read_b128 {vr(B1H,4)}, v4")
e(f"ds_read_b128 {vr(B2,4)}, v5 offset:128")
e("s_waitcnt lgkmcnt(0)")
stamp(2, 76, 77)

def mfma_tile(r0, r1, r2, aX, aY):
    e(f"v_mfma_f32_16x16x32_bf16 {vr(aX,4)}, {vr(r0,4)}, {vr(B0,4)}, 0")
    e(f"v_mfma_f32_16x16x32_bf16 {vr(aY,4)}, {vr(r1,4)}, {vr(B1H,4)}, 0")
    e(f"v_mfma_f32_16x16x32_bf16 {vr(aX,4)}, {vr(r1,4)}, {vr(B1L,4)}, {vr(aX,4)}")
    e(f"v_mfma_f32_16x16x32_bf16 {vr(aY,4)}, {vr(r2,4)}, {vr(B2,4)}, {vr(aY,4)}")
def score_pair(aX, aY, dst, tx, ty):
    e(f"v_mov_b32_dpp v{tx}, v{aX} quad_perm:[0,0,0,0] row_mask:0xf bank_mask:0xf")
    e(f"v_mov_b32_dpp v{ty}, v{aY} quad_perm:[0,0,0,0] row_mask:0xf bank_mask:0xf")
    for r in (1, 2, 3):
        e(f"v_add_f32_dpp v{tx}, v{aX+r}, v{tx} quad_perm:[{r},{r},{r},{r}] row_mask:0xf bank_mask:0xf")
        e(f"v_add_f32_dpp v{ty}, v{aY+r}, v{ty} quad_perm:[{r},{r},{r},{r}] row_mask:0xf bank_mask:0xf")
    e(f"v_cvt_pk_bf16_f32 v{tx}, v{tx}, v{ty}")
    e(f"v_and_b32 v{ty}, s{S_HI}, v{tx}")
    e(f"v_lshlrev_b32 v{tx}, 16, v{tx}")
    e(f"v_mul_f32 v{tx}, s{S_SCALE}, v{tx}")
    e(f"v_mul_f32 v{ty}, s{S_SCALE}, v{ty}")
    e(f"v_cvt_pk_bf16_f32 v{dst}, v{tx}, v{ty}")
    e(f"v_and_b32 v{ty}, s{S_HI}, v{dst}")
    e(f"v_lshlrev_b32 v{tx}, 16, v{dst}")
def post_scores(T):
    aX = V_MACC + 8 * (T & 1)
    score_pair(aX, aX + 4, V_SC + T, t0, t1)
    e(f"v_max3_f32 v{V_MAX}, v{V_MAX}, v{t0}, v{t1}")
def consume_k(T):
    n0 = 3 * T
    aX = V_MACC + 8 * (T & 1)
    cm(f"K tile {T}")
    mfma_tile(sl('k', n0), sl('k', n0 + 1), sl('k', n0 + 2), aX, aX + 4)
    release("k", range(n0, n0 + 3))
    if T > 0:
        post_scores(T - 1)
    else:
        e("s_nop 7")
    if T == F - 1:
        e("s_nop 1")
        post_scores(F - 1)
        stamp(3, 76, 77)
        cm("wave max")
        allgroups("v_max_f32", V_MAX, t0)
        e(f"v_mul_f32 v{V_ML2}, s{S_L2E}, v{V_MAX}")
        e(f"v_mov_b32 v{V_LS}, 0")
        for i in range(24):
            e(f"v_mov_b32 v{V_ACC+i}, 0")
def pv_tile(r0, r1, r2):
    e(f"v_cndmask_b32 v{pM}, v{pY}, v{pX}, s[{S_MC8}:{S_MC8+1}]")
    e(f"v_add_f32 v{V_LS}, v{V_LS}, v{pX}")
    e(f"v_add_f32 v{V_LS}, v{V_LS}, v{pY}")
    for j, (r, p) in enumerate(((r0, pX), (r1, pM), (r2, pY))):
        fma_tile(r, p, V_ACC + 8 * j, t0, t1)
def consume_v(T):
    n0 = 3 * T
    cm(f"V tile {T}")
    e(f"v_lshlrev_b32 v{pX}, 16, v{V_SC+T}")
    e(f"v_and_b32 v{pY}, s{S_HI}, v{V_SC+T}")
    e(f"v_fma_f32 v{pX}, v{pX}, s{S_L2E}, -v{V_ML2}")
    e(f"v_fma_f32 v{pY}, v{pY}, s{S_L2E}, -v{V_ML2}")
    e(f"v_exp_f32 v{pX}, v{pX}")
    e(f"v_exp_f32 v{pY}, v{pY}")
    e("s_nop 0")
    pv_tile(sl("v", n0), sl("v", n0 + 1), sl("v", n0 + 2))
    release("v", range(n0, n0 + 3))
tile = 0
claimed = False
while tile < 2 * F:
    last = pos_of[("k", 3 * tile + 2) if tile < F else ("v", 3 * (tile - F) + 2)]
    if can_issue():
        paced_issue()
        if st["pos"] == len(main) - 3 and NPOOL:
            cm("first pool ticket")
            vm.issue(f"buffer_atomic_add v{V_CLM}, v{V_CLMO}, {srd(R_WS)}, 0 offen sc0")
            claimed = True
    else:
        wait_main(last)
    if st["landed"] > last:
        if tile < F: consume_k(tile)
        else: consume_v(tile - F)
        tile += 1
assert st["pos"] == len(main)
stamp(10, 76, 77)
tws = sorted(slot_of[("tw", i)] for i in range(8))
assert tws == list(range(NVGPR - 32, NVGPR, 4)), tws
if NPOOL:
    assert claimed
    cm("==== pool tiles: claimed one at a time, online softmax per lane group ====")
    BUF = [[SRING0 + 4 * i for i in range(6)], [SRING0 + 24 + 4 * i for i in range(6)]]
    S_C = 30
    def pool_next(buf, lbl_none):
        e(f"v_readfirstlane_b32 s{S_C}, v{V_CLM}")
        e(f"v_mov_b32 v{V_CLM}, 1")
        e("s_nop 2")
        e(f"s_cmp_ge_u32 s{S_C}, {NPOOL}")
        e(f"s_cbranch_scc1 {lbl_none}")
        e(f"s_mul_i32 s{S_OFF}, s{S_C}, 3072")
        e(f"s_add_u32 s{S_OFF}, s{S_OFF}, {512*F*384}")
        e(f"buffer_atomic_add v{V_CLM}, v{V_CLMO}, {srd(R_WS)}, 0 offen sc0")
        for j in range(3):
            e(f"buffer_load_dwordx4 {vr(buf[j],4)}, v{V_KOFF}, {srd(R_K)}, s{S_OFF} offen offset:{256*j}{KNT}")
        for j in range(3):
            e(f"buffer_load_dwordx4 {vr(buf[3+j],4)}, v{V_VOFF}, {srd(R_V)}, s{S_OFF} offen offset:{256*j}{VNT}")
    def pool_front(buf):
        e("s_waitcnt vmcnt(3)")
        mfma_tile(buf[0], buf[1], buf[2], V_MACC, V_MACC + 4)
        e("s_nop 7")
        score_pair(V_MACC, V_MACC + 4, 4, pX, pY)
        e(f"v_max3_f32 v{t0}, v{V_MAX}, v{pX}, v{pY}")
        e(f"v_sub_f32 v{t1}, v{V_MAX}, v{t0}")
        e(f"v_mul_f32 v{t1}, s{S_L2E}, v{t1}")
        e(f"v_exp_f32 v{t1}, v{t1}")
        e(f"v_mov_b32 v{V_MAX}, v{t0}")
        e(f"v_mul_f32 v{V_ML2}, s{S_L2E}, v{t0}")
        e(f"v_fma_f32 v{pX}, v{pX}, s{S_L2E}, -v{V_ML2}")
        e(f"v_fma_f32 v{pY}, v{pY}, s{S_L2E}, -v{V_ML2}")
        e(f"v_exp_f32 v{pX}, v{pX}")
        e(f"v_exp_f32 v{pY}, v{pY}")
        e(f"v_mul_f32 v{V_LS}, v{V_LS}, v{t1}")
        for i in range(24):
            e(f"v_mul_f32 v{V_ACC+i}, v{V_ACC+i}, v{t1}")
        e(f"s_waitcnt vmcnt({OPT['pool_ahead']})")
    e("s_waitcnt vmcnt(0)")
    pool_next(BUF[0], "L_pool_done")
    lab("L_pool_loop")
    pool_front(BUF[0])
    pool_next(BUF[1], "L_pool_lastA")
    if OPT['pool_ahead']: e("s_waitcnt vmcnt(7)")
    pv_tile(*BUF[0][3:])
    pool_front(BUF[1])
    pool_next(BUF[0], "L_pool_lastB")
    if OPT['pool_ahead']: e("s_waitcnt vmcnt(7)")
    pv_tile(*BUF[1][3:])
    e("s_branch L_pool_loop")
    lab("L_pool_lastA")
    e("s_waitcnt vmcnt(0)")
    pv_tile(*BUF[0][3:])
    e("s_branch L_pool_done")
    lab("L_pool_lastB")
    e("s_waitcnt vmcnt(0)")
    pv_tile(*BUF[1][3:])
    lab("L_pool_done")
    cm("bring the 4 lane groups to a common max")
    e(f"v_mov_b32 v{pX}, v{V_MAX}")
    allgroups("v_max_f32", V_MAX, t0)
    e(f"v_sub_f32 v{t1}, v{pX}, v{V_MAX}")
    e(f"v_mul_f32 v{t1}, s{S_L2E}, v{t1}")
    e(f"v_exp_f32 v{t1}, v{t1}")
    e("s_nop 0")
    e(f"v_mul_f32 v{V_LS}, v{V_LS}, v{t1}")
    for i in range(24):
        e(f"v_mul_f32 v{V_ACC+i}, v{V_ACC+i}, v{t1}")
stamp(4, 76, 77)
V_CNT, V_CNTO = 16, 17
cm("slice counter (only the reducers look at it)")
e(f"s_lshl_b32 s{S_T0}, s{S_SPLIT}, 5")
e(f"s_add_u32 s{S_T0}, s{S_T0}, 4")
e(f"v_mov_b32 v{V_CNTO}, s{S_T0}")
e(f"buffer_load_dword v{V_CNT}, v{V_CNTO}, {srd(R_DBG)}, 0 offen sc1")
cm("==== T0: wave reduce ====")
swap_reduce(V_ACC, 24)
red24_to_lds(V_ACC, 4, 5, 6, 7)
allgroups("v_add_f32", V_LS, V_T)
e(f"s_lshl_b32 s{S_T0}, s{S_WAVE}, 3")
e(f"v_mov_b32 v4, s{S_T0}")
e(f"v_mov_b32 v6, v{V_MAX}")
e(f"v_mov_b32 v7, v{V_LS}")
e(f"ds_write_b64 v4, v[6:7] offset:{LDS_STAT}")
e("s_waitcnt lgkmcnt(0)")
e("s_barrier")

cm("==== T1: wave 0 combines the 8 waves and publishes ====")
e(f"s_lshl_b32 s{S_T1}, s{S_HEAD}, 3")
e(f"s_add_u32 s{S_T2}, s{S_T1}, s{S_SPLIT}")
e(f"s_cmp_lg_u32 s{S_WAVE}, 0")
e("s_cbranch_scc1 L_t1done")
e("v_mov_b32 v4, 0")
SB = SRING0
RB = 20
for w in range(4):
    e(f"ds_read_b128 {vr(SB+4*w,4)}, v4 offset:{LDS_STAT+16*w}")
e(f"v_lshlrev_b32 v5, 4, v{V_LANE}")
e(f"v_min_u32 v5, 752, v5")
for w in range(8):
    e(f"ds_read_b128 {vr(RB+8*w,4)}, v5 offset:{LDS_RED+1536*w}")
    e(f"ds_read_b128 {vr(RB+8*w+4,4)}, v5 offset:{LDS_RED+1536*w+768}")
e("s_waitcnt lgkmcnt(15)")
e(f"v_max3_f32 v6, v{SB}, v{SB+2}, v{SB+4}")
e(f"v_max3_f32 v6, v6, v{SB+6}, v{SB+8}")
e(f"v_max3_f32 v6, v6, v{SB+10}, v{SB+12}")
e(f"v_max_f32 v6, v6, v{SB+14}")
e(f"v_mul_f32 v7, s{S_L2E}, v6")
for w in range(8):
    e(f"v_fma_f32 v{SB+2*w}, v{SB+2*w}, s{S_L2E}, -v7")
for w in range(8):
    e(f"v_exp_f32 v{SB+2*w}, v{SB+2*w}")
e("s_nop 0")
e(f"v_mul_f32 v7, v{SB}, v{SB+1}")
for w in range(1, 8):
    e(f"v_fmac_f32 v7, v{SB+2*w}, v{SB+2*w+1}")
e("s_waitcnt lgkmcnt(0)")
for w in range(8):
    for i in range(4):
        e(f"v_add_f32 v{RB+8*w+i}, v{RB+8*w+i}, v{RB+8*w+4+i}")
    for i in range(4):
        if w == 0:
            e(f"v_mul_f32 v{8+i}, v{SB}, v{RB+i}")
        else:
            e(f"v_fmac_f32 v{8+i}, v{SB+2*w}, v{RB+8*w+i}")
cm("lane48: (M,L,0,0) ; lanes>=49: 0")
e(f"v_cmp_lt_u32 vcc, 47, v{V_LANE}")
e("s_nop 1")
for i in range(4):
    e(f"v_cndmask_b32 v{8+i}, v{8+i}, v4, vcc")
e(f"v_cmp_eq_u32 vcc, 48, v{V_LANE}")
e("s_nop 1")
e("v_cndmask_b32 v8, v8, v6, vcc")
e("v_cndmask_b32 v9, v9, v7, vcc")
canon4(8, 12)
e(f"s_lshl_b32 s{S_T0}, s{S_T2}, 10")
e(f"v_lshlrev_b32 v5, 4, v{V_LANE}")
e(f"v_add_u32 v5, s{S_T0}, v5")
e(f"buffer_store_dwordx4 v[8:11], v5, {srd(R_WS)}, 0 offen sc1")
lab("L_t1done")
stamp(5, 4, 5)
cm("all waves: wave j gathers outbox j of this head")
e(f"s_add_u32 s{S_T0}, s{S_T1}, s{S_WAVE}")
e(f"s_lshl_b32 s{S_T0}, s{S_T0}, 10")
e(f"v_lshlrev_b32 v5, 4, v{V_LANE}")
e(f"v_add_u32 v6, s{S_T0}, v5")
cm("(addresses for T3 while waiting)")
e(f"s_lshl_b32 s{S_T0}, s{S_WAVE}, 10")
e(f"v_add_u32 v13, s{S_T0}, v5")
e(f"v_lshrrev_b32 v5, 4, v{V_LANE}")
e(f"s_lshl_b32 s{S_T0}, s{S_WAVE}, 2")
e(f"v_add_u32 v5, s{S_T0}, v5")
e(f"v_and_b32 v14, 15, v{V_LANE}")
e(f"v_min_u32 v14, 5, v14")
e(f"v_lshl_add_u32 v14, v14, 5, v5")
e(f"v_lshlrev_b32 v14, 2, v14")
e("v_lshlrev_b32 v7, 2, v5")
e(f"ds_read_b32 v44, v7 offset:{LDS_H48}")
e("v_add_u32 v7, 32, v5")
e("v_min_u32 v7, 47, v7")
e("v_lshlrev_b32 v7, 2, v7")
e(f"ds_read_b32 v45, v7 offset:{LDS_H48}")
e("v_mov_b32 v4, 0")
GA = 52
cm("b part of the GEMV slice (h @ w2) does not depend on the gather")
e("s_waitcnt lgkmcnt(0)")
e("v_lshrrev_b32 v74, 16, v44")
e("v_lshrrev_b32 v75, 16, v45")
if OPT["dot2"]:
    dot_tile(sl("tw", 6), 44, 74, GA + 8, True)
    dot_tile(sl("tw", 7), 45, 75, GA + 8, False)
else:
    for i in range(8):
        e(f"v_mov_b32 v{GA+8+i}, 0")
    for k in range(2):
        fma_tile(sl("tw", 6 + k), 44 + k, GA + 8, 74, 75)
poll_quads([8], 6, [0], 7)
stamp(6, 15, 12)
e(f"ds_write_b128 v13, v[8:11] offset:{LDS_GATH}")
e("s_waitcnt lgkmcnt(0)")
e("s_barrier")

cm("==== T3: combine splits, output GEMV slice ====")
for j in range(8):
    e(f"ds_read_b64 v[{20+2*j}:{21+2*j}], v4 offset:{LDS_GATH+1024*j+768}")
for j in range(8):
    e(f"ds_read_b32 v{36+j}, v14 offset:{LDS_GATH+1024*j}")
e("s_waitcnt lgkmcnt(8)")
e("v_max3_f32 v6, v20, v22, v24")
e("v_max3_f32 v6, v6, v26, v28")
e("v_max3_f32 v6, v6, v30, v32")
e("v_max_f32 v6, v6, v34")
e(f"v_mul_f32 v7, s{S_L2E}, v6")
for j in range(8):
    e(f"v_fma_f32 v{20+2*j}, v{20+2*j}, s{S_L2E}, -v7")
for j in range(8):
    e(f"v_exp_f32 v{20+2*j}, v{20+2*j}")
e("s_waitcnt lgkmcnt(0)")
e("v_mul_f32 v7, v20, v21")
e("v_mul_f32 v8, v20, v36")
for j in range(1, 8):
    e(f"v_fmac_f32 v7, v{20+2*j}, v{21+2*j}")
    e(f"v_fmac_f32 v8, v{20+2*j}, v{36+j}")
e("v_rcp_f32 v7, v7")
e("s_nop 0")
e("v_mul_f32 v8, v8, v7")
bf16_round(8)
e("v_lshrrev_b32 v9, 16, v8")
e("s_nop 0")
for k in range(6):
    e(f"v_mov_b32_dpp v{46+k}, v8 row_newbcast:{k} row_mask:0xf bank_mask:0xf")
if OPT["dot2"]:
    for k in range(6):
        e(f"v_mov_b32_dpp v{68+k}, v9 row_newbcast:{k} row_mask:0xf bank_mask:0xf")
    for k in range(6):
        dot_tile(sl("tw", k), 46 + k, 68 + k, GA, k == 0)
    e("s_nop 1")
else:
    for i in range(8):
        e(f"v_mov_b32 v{GA+i}, 0")
    for k in range(6):
        fma_tile(sl("tw", k), 46 + k, GA, 4, 5)
swap_reduce(GA, 16)
cm("RED2[w] + (g>>1)*320 + cc*32 + (g&1)*16, cc<10")
e(f"v_lshrrev_b32 v5, 5, v{V_LANE}")
e(f"v_mul_u32_u24 v5, 320, v5")
e(f"v_bfe_u32 v6, v{V_LANE}, 4, 1")
e(f"v_lshl_add_u32 v5, v6, 4, v5")
e(f"v_and_b32 v6, 15, v{V_LANE}")
e(f"v_lshl_add_u32 v5, v6, 5, v5")
e(f"s_mul_i32 s{S_T0}, s{S_WAVE}, 640")
e(f"v_add_u32 v5, s{S_T0}, v5")
e(f"v_cmp_gt_u32 vcc, 10, v6")
e(f"s_and_saveexec_b64 s[{S_EX}:{S_EX+1}], vcc")
e(f"ds_write_b128 v5, v[{GA}:{GA+3}] offset:{LDS_RED2}")
e(f"s_mov_b64 exec, s[{S_EX}:{S_EX+1}]")
e("s_waitcnt lgkmcnt(0)")
e("s_barrier")

cm("==== T4: wave 0 publishes the slice partial ====")
e(f"s_cmp_lg_u32 s{S_WAVE}, 0")
e("s_cbranch_scc1 L_t4done")
e(f"v_lshlrev_b32 v5, 4, v{V_LANE}")
e(f"v_min_u32 v6, 624, v5")
for w in range(8):
    e(f"ds_read_b128 {vr(RB+4*w,4)}, v6 offset:{LDS_RED2+640*w}")
e("s_waitcnt lgkmcnt(0)")
for st in (1, 2, 4):
    for w in range(0, 8, 2 * st):
        for i in range(4):
            e(f"v_add_f32 v{RB+4*w+i}, v{RB+4*w+i}, v{RB+4*(w+st)+i}")
canon4(RB, 12)
e(f"s_lshl_b32 s{S_T0}, s{S_SPLIT}, 5")
e(f"s_add_u32 s{S_T0}, s{S_T0}, s{S_HEAD}")
e(f"s_mul_i32 s{S_T0}, s{S_T0}, 640")
e(f"s_add_u32 s{S_T0}, s{S_T0}, {WS_OUT2}")
e(f"v_add_u32 v5, s{S_T0}, v5")
e(f"v_mov_b32 v6, {OOB:#x}")
e(f"v_cmp_gt_u32 vcc, 40, v{V_LANE}")
e("s_nop 1")
e(f"v_cndmask_b32 v5, v6, v5, vcc")
e(f"buffer_store_dwordx4 {vr(RB,4)}, v5, {srd(R_WS)}, 0 offen sc1")
lab("L_t4done")

stamp(7, 4, 5)
cm("==== T5: reducer WGs (head == 4*split) ====")
e(f"s_lshl_b32 s{S_T0}, s{S_SPLIT}, 2")
e(f"s_cmp_lg_u32 s{S_T0}, s{S_HEAD}")
e("s_cbranch_scc1 " + ("L_fin" if OPT["stamps"] else "L_end"))
e("s_waitcnt vmcnt(0)")
spin_counter(0, 32, V_CNT, V_CNTO)
e(f"s_lshl_b32 s{S_T0}, s{S_SPLIT}, 5")
e(f"s_lshl_b32 s{S_T1}, s{S_WAVE}, 2")
e(f"s_add_u32 s{S_T0}, s{S_T0}, s{S_T1}")
e(f"s_mul_i32 s{S_T0}, s{S_T0}, 640")
e(f"s_add_u32 s{S_T0}, s{S_T0}, {WS_OUT2}")
e(f"v_lshlrev_b32 v5, 4, v{V_LANE}")
e(f"v_add_u32 v7, s{S_T0}, v5")
e(f"v_mov_b32 v6, {OOB:#x}")
e(f"v_cmp_gt_u32 vcc, 40, v{V_LANE}")
e("s_nop 1")
e(f"v_cndmask_b32 v7, v6, v7, vcc")
poll_quads([20, 24, 28, 32], 7, [0, 640, 1280, 1920], 8)
stamp(8, 4, 12)
for i in range(4):
    e(f"v_add_f32 v{20+i}, v{20+i}, v{24+i}")
    e(f"v_add_f32 v{28+i}, v{28+i}, v{32+i}")
for i in range(4):
    e(f"v_add_f32 v{20+i}, v{20+i}, v{28+i}")
e(f"s_mul_i32 s{S_T0}, s{S_WAVE}, 640")
e(f"v_add_u32 v5, s{S_T0}, v5")
e(f"v_cmp_gt_u32 vcc, 40, v{V_LANE}")
e(f"s_and_saveexec_b64 s[{S_EX}:{S_EX+1}], vcc")
e(f"ds_write_b128 v5, v[20:23] offset:{LDS_RED3}")
e(f"s_mov_b64 exec, s[{S_EX}:{S_EX+1}]")
e("s_waitcnt lgkmcnt(0)")
e("s_barrier")
e(f"s_cmp_gt_u32 s{S_WAVE}, 1")
e("s_cbranch_scc1 " + ("L_fin" if OPT["stamps"] else "L_end"))
e(f"v_min_u32 v5, 79, v{V_TID}")
e(f"v_lshlrev_b32 v5, 2, v5")
for w in range(8):
    e(f"ds_read_b32 v{20+w}, v5 offset:{LDS_RED3+640*w}")
    e(f"ds_read_b32 v{28+w}, v5 offset:{LDS_RED3+640*w+320}")
e("v_mov_b32 v4, 0")
e(f"ds_read_b32 v36, v4 offset:{LDS_HG+28}")
e("s_waitcnt lgkmcnt(0)")
for base in (20, 28):
    for a, b in ((0, 1), (2, 3), (4, 5), (6, 7), (0, 2), (4, 6), (0, 4)):
        e(f"v_add_f32 v{base+a}, v{base+a}, v{base+b}")
bf16_round(20)
bf16_round(28)
e("v_mul_f32 v20, v36, v20")
bf16_round(20)
e("v_sub_f32 v21, 1.0, v36")
bf16_round(21)
e("v_mul_f32 v21, v21, v28")
bf16_round(21)
e("v_add_f32 v20, v20, v21")
e("v_cvt_pk_bf16_f32 v20, v20, v20")
e(f"s_mul_i32 s{S_T0}, s{S_SPLIT}, 160")
e(f"v_lshlrev_b32 v5, 1, v{V_TID}")
e(f"v_add_u32 v5, s{S_T0}, v5")
e(f"v_mov_b32 v6, {OOB:#x}")
e(f"v_cmp_gt_u32 vcc, 80, v{V_TID}")
e("s_nop 1")
e(f"v_cndmask_b32 v5, v6, v5, vcc")
e(f"buffer_store_short v20, v5, {srd(R_OUT)}, 0 offen")
e("s_branch " + ("L_fin" if OPT["stamps"] else "L_end"))

L_SAVE = L
cm("================= helper waves (8: H0, 9: H1) =================")
lab("L_helper")
S_H = 31
e(f"s_sub_u32 s{S_H}, s{S_WAVE}, 8")
e(f"v_mov_b32 v63, {OOB:#x}")
e(f"v_lshlrev_b32 v8, 4, v{V_LANE}")
e("v_mov_b32 v57, v63")
for i in range(24):
    e(f"v_mov_b32 v{V_ACC+i}, 0")
cm("H0: clear own boxes to the sentinel (out1, out2 slot, qbox); zero LDS flag and zero block")
e(f"s_cmp_lg_u32 s{S_H}, 0")
e("s_cbranch_scc1 L_noclear")
e("v_mov_b32 v4, -1"); e("v_mov_b32 v5, -1"); e("v_mov_b32 v6, -1"); e("v_mov_b32 v7, -1")
e(f"s_mul_i32 s{S_T1}, s{S_LW}, {QB}")
e(f"s_add_u32 s{S_T1}, s{S_T1}, {WS_QBOX}")
e(f"v_add_u32 v11, s{S_T1}, v8")
e(f"buffer_store_dwordx4 v[4:7], v11, {srd(R_WS)}, 0 offen sc1")
e(f"v_cmp_gt_u32 vcc, 9, v{V_LANE}")
e("s_nop 1")
e(f"v_cndmask_b32 v11, v63, v11, vcc")
e(f"buffer_store_dwordx4 v[4:7], v11, {srd(R_WS)}, 0 offen offset:1024 sc1")
e(f"s_lshl_b32 s{S_T1}, s{S_LW}, 10")
e(f"v_add_u32 v9, s{S_T1}, v8")
e(f"buffer_store_dwordx4 v[4:7], v9, {srd(R_WS)}, 0 offen sc1")
e(f"s_lshl_b32 s{S_T1}, s{S_SPLIT}, 5")
e(f"s_add_u32 s{S_T1}, s{S_T1}, s{S_HEAD}")
e(f"s_mul_i32 s{S_T1}, s{S_T1}, 640")
e(f"s_add_u32 s{S_T1}, s{S_T1}, {WS_OUT2}")
e(f"v_add_u32 v10, s{S_T1}, v8")
e(f"v_cmp_gt_u32 vcc, 40, v{V_LANE}")
e("s_nop 1")
e(f"v_cndmask_b32 v10, v63, v10, vcc")
e(f"buffer_store_dwordx4 v[4:7], v10, {srd(R_WS)}, 0 offen sc1")
cm("split 0 zeroes the pool ticket counter of the head")
e(f"s_lshl_b32 s{S_T1}, s{S_HEAD}, 7")
e(f"s_add_u32 s{S_T1}, s{S_T1}, {WS_POOL}")
e(f"s_cmp_eq_u32 s{S_SPLIT}, 0")
e(f"s_cselect_b32 s{S_T1}, s{S_T1}, {OOB:#x}")
e(f"v_mov_b32 v12, s{S_T1}")
e(f"v_cmp_eq_u32 vcc, 0, v{V_LANE}")
e("s_nop 1")
e(f"v_cndmask_b32 v12, v63, v12, vcc")
e(f"buffer_store_dword v{V_ACC}, v12, {srd(R_WS)}, 0 offen sc1")
e(f"v_mov_b32 v12, {LDS_ZERO}")
e(f"ds_write_b128 v12, v[{V_ACC}:{V_ACC+3}]")
e(f"v_mov_b32 v12, {LDS_FLAG2}")
e(f"ds_write_b32 v12, v{V_ACC}")
e(f"ds_write_b32 v12, v{V_ACC} offset:4")
lab("L_noclear")
cm("wq rows: row0 = 80*split + 20g + 10h ; pairs T=0..4")
e(f"s_mul_i32 s{S_T0}, s{S_SPLIT}, 80")
e(f"s_mul_i32 s{S_T1}, s{S_H}, 10")
e(f"s_add_u32 s{S_T1}, s{S_T0}, s{S_T1}")
e(f"v_mul_u32_u24 v60, 20, v{Vg}")
e(f"v_add_u32 v60, s{S_T1}, v60")
e(f"v_lshlrev_b32 v61, 1, v60")
e(f"s_mov_b32 s{S_T1}, 12288")
e(f"v_mul_lo_u32 v60, v60, s{S_T1}")
e(f"v_lshl_add_u32 v{V_WQO}, v{Vc}, 4, v60")
e(f"v_add_u32 v{V_WQO+2}, 12416, v{V_WQO}")
e(f"v_add_u32 v62, 256, v{V_WQO}")
e(f"v_add_u32 v60, 12160, v{V_WQO}")
e(f"v_cndmask_b32 v{V_WQO+1}, v60, v62, s[{S_MC8}:{S_MC8+1}]")
hv = VM()
hv.issue(f"buffer_load_dwordx4 {vr(V_XW,4)}, v61, {srd(R_X)}, 0 offen")
hv.issue(f"buffer_load_dword v{V_XW+4}, v61, {srd(R_X)}, 0 offen offset:16")
hid = {}
for T in range(5):
    e(f"s_mov_b32 s{S_OFF}, {T*24576}")
    for j in range(3):
        hid[(T, j)] = hv.issue(f"buffer_load_dwordx4 {vr(RING0+4*(3*T+j),4)}, v{V_WQO+j}, {srd(R_WQ)}, s{S_OFF} offen{WNT}")
e(f"s_cmp_lg_u32 s{S_H}, 0")
e("s_cbranch_scc1 L_h1pre")
cm("H0: clears done -> arrive on the group counter (returning atomic, lane 0)")
e(f"s_lshl_b32 s{S_T1}, s{S_HEAD}, 3")
e(f"v_mov_b32 v10, s{S_T1}")
e(f"v_cmp_eq_u32 vcc, 0, v{V_LANE}")
e("v_mov_b32 v13, 1")
e("s_nop 0")
e(f"v_cndmask_b32 v10, v63, v10, vcc")
e("s_waitcnt lgkmcnt(0)")
e("s_barrier")
e("s_waitcnt vmcnt(17)")
e(f"buffer_atomic_add v13, v10, {srd(R_DBG)}, 0 offen sc0")
e(f"v_mov_b32 v12, {LDS_FLAG2}")
e("v_mov_b32 v14, 1")
e("ds_write_b32 v12, v14")
e("s_branch L_hq")
lab("L_h1pre")
cm("H1: gate/up partial loads: lane (cq=l&7 <6, r8=l>>3), rows 80*split + 10*r8 + k")
MB = RING0 + 60
e(f"v_lshrrev_b32 v9, 3, v{V_LANE}")
e(f"v_mul_u32_u24 v9, 10, v9")
e(f"v_add_u32 v9, s{S_T0}, v9")
e(f"v_lshlrev_b32 v10, 1, v9")
e(f"v_mul_u32_u24 v9, 3072, v9")
e(f"v_and_b32 v11, 7, v{V_LANE}")
e(f"v_lshl_add_u32 v9, v11, 4, v9")
e(f"v_cmp_gt_u32 vcc, 6, v11")
e("s_nop 1")
e(f"v_cndmask_b32 v57, v63, v9, vcc")
e(f"buffer_load_dwordx4 v[12:15], v10, {srd(R_X)}, 0 offen")
e(f"buffer_load_dword v16, v10, {srd(R_X)}, 0 offen offset:16")
NPRE = 5
for k in range(NPRE):
    e(f"s_mov_b32 s{S_OFF}, {k*3072}")
    e(f"buffer_load_dwordx4 {vr(MB+8*k,4)}, v57, {srd(R_W1)}, s{S_OFF} offen{WNT}")
    e(f"buffer_load_dwordx4 {vr(MB+8*k+4,4)}, v57, {srd(R_W3)}, s{S_OFF} offen{WNT}")
e("s_barrier")
lab("L_hq")
hpX, hpY, hpM, ht0, ht1 = 4, 5, 6, 7, 9
for T in range(5):
    k = hv.n - 1 - hid[(T, 2)]
    lx = newlabel("hw")
    e(f"s_cmp_eq_u32 s{S_H}, 1")
    e(f"s_cbranch_scc1 {lx}a")
    e(f"s_waitcnt vmcnt({k+1})")
    e(f"s_branch {lx}b")
    lab(lx + "a")
    e(f"s_waitcnt vmcnt({k+2+2*NPRE})")
    lab(lx + "b")
    e(f"v_lshlrev_b32 v{hpX}, 16, v{V_XW+T}")
    e(f"v_and_b32 v{hpY}, s{S_HI}, v{V_XW+T}")
    e(f"v_cndmask_b32 v{hpM}, v{hpY}, v{hpX}, s[{S_MC8}:{S_MC8+1}]")
    for j, p in enumerate((hpX, hpM, hpY)):
        fma_tile(RING0 + 4 * (3 * T + j), p, V_ACC + 8 * j, ht0, ht1)
stamp(1, 4, 5)
swap_reduce(V_ACC, 24)
red24_to_lds(V_ACC, 4, 5, 6, 7, sreg=S_H)
e("s_waitcnt lgkmcnt(0)")
e(f"s_cmp_eq_u32 s{S_H}, 1")
e("s_cbranch_scc1 L_h1")
cm("---- H0: wait for H1's half, publish the WG partial, gather the 8 partials of the head ----")
e(f"v_mov_b32 v12, {LDS_FLAG}")
e(f"s_mov_b32 s{S_CNT}, {OPT['spin_cap']*8}")
lab("L_h0flag")
e("ds_read_b32 v14, v12")
e("s_waitcnt lgkmcnt(0)")
e("v_readfirstlane_b32 s30, v14")
e(f"s_sub_u32 s{S_CNT}, s{S_CNT}, 1")
e(f"s_cmp_eq_u32 s{S_CNT}, 0")
e("s_cbranch_scc1 L_h0go")
e("s_cmp_eq_u32 s30, 0")
e("s_cbranch_scc1 L_h0flag")
lab("L_h0go")
e(f"v_min_u32 v5, 752, v8")
e(f"ds_read_b128 v[20:23], v5 offset:{LDS_RED}")
e(f"ds_read_b128 v[24:27], v5 offset:{LDS_RED+768}")
e(f"ds_read_b128 v[28:31], v5 offset:{LDS_RED+1536}")
e(f"ds_read_b128 v[32:35], v5 offset:{LDS_RED+1536+768}")
e(f"s_mul_i32 s{S_T0}, s{S_LW}, {QB}")
e(f"s_add_u32 s{S_T0}, s{S_T0}, {WS_QBOX}")
e(f"v_add_u32 v9, s{S_T0}, v8")
e(f"v_cmp_gt_u32 s[{S_MSK}:{S_MSK+1}], 48, v{V_LANE}")
e("s_nop 1")
e(f"v_cndmask_b32 v9, v63, v9, s[{S_MSK}:{S_MSK+1}]")
e("s_waitcnt lgkmcnt(0)")
for i in range(4):
    e(f"v_add_f32 v{20+i}, v{20+i}, v{24+i}")
    e(f"v_add_f32 v{28+i}, v{28+i}, v{32+i}")
for i in range(4):
    e(f"v_add_f32 v{20+i}, v{20+i}, v{28+i}")
canon4(20, 12)
e(f"buffer_store_dwordx4 v[20:23], v9, {srd(R_WS)}, 0 offen sc1")
cm("---- H0: last arriver tells the 8 WGs of the head that every box is cleared ----")
e("s_waitcnt vmcnt(1)")
e("v_readfirstlane_b32 s30, v13")
e(f"s_mul_i32 s{S_T0}, s{S_HEAD}, {8*QB}")
e(f"s_add_u32 s{S_T0}, s{S_T0}, {WS_QBOX+1152}")
e("s_and_b32 s30, s30, 7")
e("s_cmp_lg_u32 s30, 7")
e("s_cbranch_scc1 L_h0nogo")
e(f"v_mul_u32_u24 v9, {QB}, v{V_LANE}")
e(f"v_add_u32 v9, s{S_T0}, v9")
e(f"v_cmp_gt_u32 vcc, 8, v{V_LANE}")
e("v_mov_b32 v12, 0")
e("s_nop 0")
e(f"v_cndmask_b32 v9, v63, v9, vcc")
e(f"buffer_store_dword v12, v9, {srd(R_WS)}, 0 offen sc1")
lab("L_h0nogo")
e(f"s_mul_i32 s{S_T0}, s{S_LW}, {QB}")
e(f"s_add_u32 s{S_T0}, s{S_T0}, {WS_QBOX+1152}")
e(f"v_mov_b32 v10, s{S_T0}")
e(f"buffer_load_dword v13, v10, {srd(R_WS)}, 0 offen sc1")
stamp(2, 4, 5)
e("s_waitcnt vmcnt(0)")
e(f"s_mov_b32 s{S_CNT}, {OPT['spin_cap']}")
lab("L_h0gospin")
e("v_readfirstlane_b32 s30, v13")
e(f"s_sub_u32 s{S_CNT}, s{S_CNT}, 1")
e(f"s_cmp_eq_u32 s{S_CNT}, 0")
e("s_cbranch_scc1 L_h0godone")
e("s_cmp_lg_u32 s30, -1")
e("s_cbranch_scc1 L_h0godone")
e(f"s_sleep {OPT['sleep']}")
e(f"buffer_load_dword v13, v10, {srd(R_WS)}, 0 offen sc1")
e("s_waitcnt vmcnt(0)")
e("s_branch L_h0gospin")
lab("L_h0godone")
stamp(3, 4, 5)
e(f"s_mul_i32 s{S_T0}, s{S_HEAD}, {8*QB}")
e(f"s_add_u32 s{S_T0}, s{S_T0}, {WS_QBOX}")
e(f"v_add_u32 v9, s{S_T0}, v8")
e(f"v_cndmask_b32 v9, v63, v9, s[{S_MSK}:{S_MSK+1}]")
poll_quads([RING0 + 4 * j for j in range(8)], 9, [QB * j for j in range(8)], 7)
for stp in (1, 2, 4):
    for j in range(0, 8, 2 * stp):
        for i in range(4):
            e(f"v_add_f32 v{RING0+4*j+i}, v{RING0+4*j+i}, v{RING0+4*(j+stp)+i}")
e(f"v_cvt_pk_bf16_f32 v20, v{RING0}, v{RING0+1}")
e(f"v_cvt_pk_bf16_f32 v21, v{RING0+2}, v{RING0+3}")
e(f"v_lshlrev_b32 v5, 3, v{V_LANE}")
e(f"s_and_saveexec_b64 s[{S_EX}:{S_EX+1}], s[{S_MSK}:{S_MSK+1}]")
e(f"ds_write_b64 v5, v[20:21] offset:{LDS_QBF}")
e(f"s_mov_b64 exec, s[{S_EX}:{S_EX+1}]")
e("s_waitcnt lgkmcnt(0)")
stamp(4, 4, 5)
e("s_barrier")
e("s_branch " + ("L_fin" if OPT["stamps"] else "L_end"))

lab("L_h1")
e(f"v_mov_b32 v9, {LDS_FLAG}")
e("v_mov_b32 v10, 1")
e("ds_write_b32 v9, v10")
cm("---- H1: gate/up partial over this WG's 80 rows ----")
for k in range(NPRE, 10):
    e(f"s_mov_b32 s{S_OFF}, {k*3072}")
    r = RING0 + 8 * (k - NPRE)
    e(f"buffer_load_dwordx4 {vr(r,4)}, v57, {srd(R_W1)}, s{S_OFF} offen{WNT}")
    e(f"buffer_load_dwordx4 {vr(r+4,4)}, v57, {srd(R_W3)}, s{S_OFF} offen{WNT}")
MA = V_ACC
for i in range(16):
    e(f"v_mov_b32 v{MA+i}, 0")
for k in range(10):
    e(f"s_waitcnt vmcnt({18-2*k})")
    if k % 2 == 0:
        e(f"v_lshlrev_b32 v5, 16, v{12+k//2}")
    else:
        e(f"v_and_b32 v5, s{S_HI}, v{12+k//2}")
    r = MB + 8 * k if k < NPRE else RING0 + 8 * (k - NPRE)
    fma_tile(r, 5, MA, 6, 7)
    fma_tile(r + 4, 5, MA + 8, 6, 7)
swap_reduce(MA, 16)
e("s_nop 1")
for i in range(4):
    e(f"v_add_f32_dpp v{MA+i}, v{MA+i}, v{MA+i} row_ror:8 row_mask:0xf bank_mask:0xf")
canon4(MA, 12)
cm("store at qbox + 768 + (g>>1)*192 + cq*32 + (g&1)*16 for (l&15)<6")
e(f"v_lshrrev_b32 v5, 5, v{V_LANE}")
e(f"v_mul_u32_u24 v5, 192, v5")
e(f"v_bfe_u32 v6, v{V_LANE}, 4, 1")
e(f"v_lshl_add_u32 v5, v6, 4, v5")
e(f"v_and_b32 v6, 15, v{V_LANE}")
e(f"v_lshl_add_u32 v5, v6, 5, v5")
e(f"s_mul_i32 s{S_T0}, s{S_LW}, {QB}")
e(f"s_add_u32 s{S_T0}, s{S_T0}, {WS_QBOX+768}")
e(f"v_add_u32 v5, s{S_T0}, v5")
e(f"v_cmp_gt_u32 vcc, 6, v6")
e("s_nop 1")
e(f"v_cndmask_b32 v5, v63, v5, vcc")
cm("H0's clear of this box must have completed")
e(f"v_mov_b32 v6, {LDS_FLAG2}")
e(f"s_mov_b32 s{S_CNT}, {OPT['spin_cap']*8}")
lab("L_h1flag")
e("ds_read_b32 v7, v6")
e("s_waitcnt lgkmcnt(0)")
e("v_readfirstlane_b32 s30, v7")
e(f"s_sub_u32 s{S_CNT}, s{S_CNT}, 1")
e(f"s_cmp_eq_u32 s{S_CNT}, 0")
e("s_cbranch_scc1 L_h1st")
e("s_cmp_eq_u32 s30, 0")
e("s_cbranch_scc1 L_h1flag")
lab("L_h1st")
e(f"buffer_store_dwordx4 v[{MA}:{MA+3}], v5, {srd(R_WS)}, 0 offen sc1")
cm("gate logit operands: lane l owns elements 10l..10l+9")
e(f"v_mul_u32_u24 v4, 20, v{V_LANE}")
e(f"buffer_load_dwordx4 v[44:47], v4, {srd(R_X)}, 0 offen")
e(f"buffer_load_dword v48, v4, {srd(R_X)}, 0 offen offset:16")
e(f"buffer_load_dwordx4 v[52:55], v4, {srd(R_GW)}, 0 offen")
e(f"buffer_load_dword v56, v4, {srd(R_GW)}, 0 offen offset:16")
stamp(2, 4, 5)
e("s_waitcnt lgkmcnt(0)")
e("s_barrier")
cm("slice counter: this WG's out2 slot is cleared (H0 drained the clears before barrier #1)")
e(f"s_lshl_b32 s{S_T0}, s{S_SPLIT}, 5")
e(f"s_add_u32 s{S_T0}, s{S_T0}, 4")
e(f"v_mov_b32 v10, s{S_T0}")
e(f"v_cmp_eq_u32 vcc, 0, v{V_LANE}")
e("v_mov_b32 v12, 1")
e("s_nop 0")
e(f"v_cndmask_b32 v10, v63, v10, vcc")
e(f"buffer_atomic_add v12, v10, {srd(R_DBG)}, 0 offen")
cm("gather the 8 gate/up partials: lanes 0..11 gate quads, lanes 16..27 up quads")
e(f"v_and_b32 v5, 15, v{V_LANE}")
e(f"v_lshlrev_b32 v6, 4, v5")
e(f"v_lshrrev_b32 v7, 4, v{V_LANE}")
e(f"v_mul_u32_u24 v9, 192, v7")
e(f"v_add_u32 v6, v6, v9")
e(f"s_mul_i32 s{S_T0}, s{S_HEAD}, {8*QB}")
e(f"s_add_u32 s{S_T0}, s{S_T0}, {WS_QBOX+768}")
e(f"v_add_u32 v6, s{S_T0}, v6")
e(f"v_cmp_gt_u32 vcc, 12, v5")
e(f"v_cmp_gt_u32 s[{S_MSK}:{S_MSK+1}], 32, v{V_LANE}")
e(f"s_and_b64 vcc, vcc, s[{S_MSK}:{S_MSK+1}]")
e("s_nop 1")
e(f"v_cndmask_b32 v6, v63, v6, vcc")
poll_quads([RING0 + 4 * j for j in range(8)], 6, [QB * j for j in range(8)], 7)
for stp in (1, 2, 4):
    for j in range(0, 8, 2 * stp):
        for i in range(4):
            e(f"v_add_f32 v{RING0+4*j+i}, v{RING0+4*j+i}, v{RING0+4*(j+stp)+i}")
G0 = RING0; U0 = RING0 + 4
for i in range(4):
    bf16_round(G0 + i)
for i in range(4):
    e(f"v_mov_b32 v{U0+i}, v{G0+i}")
e("s_nop 1")
for i in range(4):
    e(f"v_permlane16_swap_b32 v{G0+i}, v{U0+i}")
for i in range(4):
    e(f"v_mul_f32 v{20+i}, s{S_L2E}, v{G0+i}")
    e(f"v_sub_f32 v{20+i}, 0, v{20+i}")
    e(f"v_exp_f32 v{20+i}, v{20+i}")
    e("s_nop 0")
    e(f"v_add_f32 v{20+i}, 1.0, v{20+i}")
    e(f"v_rcp_f32 v{20+i}, v{20+i}")
    e("s_nop 0")
    e(f"v_mul_f32 v{20+i}, v{G0+i}, v{20+i}")
    bf16_round(20 + i)
    e(f"v_mul_f32 v{20+i}, v{20+i}, v{U0+i}")
    bf16_round(20 + i)
e(f"v_cmp_gt_u32 vcc, 12, v{V_LANE}")
e(f"s_and_saveexec_b64 s[{S_EX}:{S_EX+1}], vcc")
e(f"ds_write_b128 v8, v[20:23] offset:{LDS_H48}")
e(f"s_mov_b64 exec, s[{S_EX}:{S_EX+1}]")
cm("gate logit")
e("v_mov_b32 v20, 0")
for k in range(10):
    if k % 2 == 0:
        e(f"v_lshlrev_b32 v5, 16, v{44+k//2}")
        e(f"v_lshlrev_b32 v6, 16, v{52+k//2}")
    else:
        e(f"v_and_b32 v5, s{S_HI}, v{44+k//2}")
        e(f"v_and_b32 v6, s{S_HI}, v{52+k//2}")
    e("v_mul_f32 v6, v5, v6")
    bf16_round(6)
    e("v_add_f32 v20, v20, v6")
allgroups("v_add_f32", 20, 21)
for sh in (8, 4, 2, 1):
    e("s_nop 1")
    e(f"v_add_f32_dpp v20, v20, v20 row_ror:{sh} row_mask:0xf bank_mask:0xf")
bf16_round(20)
e(f"v_mul_f32 v22, s{S_L2E}, v20")
e("v_sub_f32 v22, 0, v22")
e("v_exp_f32 v22, v22")
e("s_nop 0")
e("v_add_f32 v22, 1.0, v22")
e("v_rcp_f32 v22, v22")
e("s_nop 0")
bf16_round(22)
e(f"v_mov_b32 v4, {LDS_HG+28}")
e("ds_write_b32 v4, v22")
e("s_waitcnt lgkmcnt(0)")
stamp(3, 4, 5)
e("s_barrier")
e("s_branch " + ("L_fin" if OPT["stamps"] else "L_end"))

if OPT["stamps"]:
    lab("L_fin")
    stamp(9, 4, 5)
    e("s_getreg_b32 s98, hwreg(HW_REG_XCC_ID)")
    e("v_mov_b32 v4, s98")
    e(f"ds_write_b32 v5, v4 offset:{LDS_STAMP+4*15}")
    e("s_waitcnt lgkmcnt(0)")
    e(f"v_and_b32 v4, 15, v{V_LANE}")
    e("v_lshlrev_b32 v4, 2, v4")
    e("v_add_u32 v5, s100, v4")
    e(f"ds_read_b32 v6, v5 offset:{LDS_STAMP}")
    e("s_lshl_b32 s98, s2, 10")
    e("s_add_u32 s98, s98, 0x100000")
    e("v_add_u32 v5, s98, v5")
    e("s_waitcnt lgkmcnt(0)")
    e(f"buffer_store_dword v6, v5, {srd(R_WS)}, 0 offen")
lab("L_end")
e("s_endpgm")
L.append('.section .rodata,"a"')
L.append(".p2align 6")
L.append(f".amdhsa_kernel {NAME}_kernel")
L.append(f"  .amdhsa_next_free_vgpr {NVGPR}")
L.append("  .amdhsa_next_free_sgpr 102")
L.append(f"  .amdhsa_accum_offset {NVGPR}")
L.append("  .amdhsa_group_segment_fixed_size 0")
L.append("  .amdhsa_kernarg_size 104")
L.append("  .amdhsa_user_sgpr_count 2")
L.append("  .amdhsa_user_sgpr_kernarg_segment_ptr 1")
L.append("  .amdhsa_system_sgpr_workgroup_id_x 1")
L.append("  .amdhsa_float_denorm_mode_32 3")
L.append(".end_amdhsa_kernel")
out = sys.argv[1] if len(sys.argv) > 1 else f"cdna_kernels/{NAME}.s"
open(out, "w").write("\n".join(L) + "\n")
print("wrote", out, len(L), "lines")
```

```python
import sys

NAME = "gated_mix__mha_block_cached__glu_gated_swiglu__decode"
HEADER = open(f"cdna_kernels/{NAME}.s.ref").read().split("; Override launch geometry")[0]

OPT = dict(
    w_nt=True,
    spin_cap=400000,
    sleep=1,
    stamps=0,
    depth=4,
    depth0=3,
    kv_nt=1,
    v_nt=-1,
    dot2=1,
    pool_ahead=3,
    F=14,
)
for a in sys.argv[2:]:
    k, v = a.split("=")
    OPT[k] = type(OPT[k])(int(v))


L = []
def e(s=""):
    L.append("    " + s if s and not s.endswith(":") else s)
def lab(s):
    L.append(s + ":")
def cm(s):
    L.append("    ; " + s)

P_X, P_K, P_V, P_WQ, P_WO, P_BX, P_W1, P_W3, P_W2, P_GW, P_OUT, P_DBG, P_WS = [4 + 2 * i for i in range(13)]
R_K, R_V, R_WQ, R_WO, R_W1, R_W3, R_W2, R_X, R_GW, R_OUT, R_DBG, R_WS = [32 + 4 * i for i in range(12)]
S_HEAD, S_SPLIT, S_WAVE, S_OFF, S_HI, S_L2E, S_SCALE, S_T0, S_T1, S_T2, S_CNT = 80, 81, 82, 83, 84, 85, 86, 87, 92, 93, 94
S_MC8 = 88
S_MSK = 90
S_EX = 96
S_COL, S_NCC = 100, 101
def srd(r): return f"s[{r}:{r+3}]"

V_TID, V_KOFF, V_VOFF, V_LANE = 0, 1, 2, 3
V_SC = 4
V_ACC = 20
V_QF = 44
V_MACC = 60
pX, pY, pM, t0, t1 = 76, 77, 78, 79, 80
V_MAX, V_ML2, V_LS = 81, 82, 83
V_TWO, V_TWO2 = 84, 85
V_CLM, V_CLMO = 86, 87
V_T = 76
SRING0 = 88
NVGPR = 168
V_XW = 44
V_WQO = 54
RING0 = 64
def vr(a, n): return f"v[{a}:{a+n-1}]"
F = OPT["F"]
NPOOL = 1024 - 64 * F
S_FB = 3

LDS_RED = 0
LDS_STAT = 12288
LDS_MLPR = 12352
LDS_QBF = 12864
LDS_ZERO = 13248
LDS_HG = 13280
LDS_GATH = 13312
LDS_RED2 = 21504
LDS_RED3 = 27648
LDS_STAMP = 33792
LDS_TOTAL = 33792 + (640 if OPT["stamps"] else 0)

WS_OUT1 = 0
WS_OUT2 = 262144
WS_QBOX = WS_OUT2 + 8 * 32 * 768
QB = 1280
WS_POOL = WS_QBOX + 256 * QB
WS_BYTES = WS_POOL + 32 * 128 if not OPT["stamps"] else (2 << 20)
LDS_H48 = LDS_MLPR
LDS_FLAG2 = LDS_HG + 20
LDS_FLAG = LDS_HG + 24
OOB = 0x80000000

class VM:
    def __init__(self): self.n = 0
    def issue(self, s):
        e(s); self.n += 1; return self.n - 1
    def wait(self, idx):
        k = self.n - 1 - idx
        assert k >= 0
        e(f"s_waitcnt vmcnt({min(k, 63)})")
vm = VM()

WNT = " nt" if OPT["w_nt"] else ""
_POL = {0: "", 1: " nt", 2: " sc1", 3: " sc0 sc1", 4: " sc1 nt", 5: " sc0"}
KNT = _POL[OPT["kv_nt"]]
VNT = _POL[OPT["v_nt"] if OPT["v_nt"] >= 0 else OPT["kv_nt"]]

def make_srd(r, p, off_s=None, nrec=None, nrec_s=None):
    if off_s is None:
        e(f"s_mov_b32 s{r}, s{p}")
        e(f"s_and_b32 s{r+1}, s{p+1}, 0xffff")
    else:
        e(f"s_add_u32 s{r}, s{p}, s{off_s}")
        e(f"s_addc_u32 s{r+1}, s{p+1}, 0")
        e(f"s_and_b32 s{r+1}, s{r+1}, 0xffff")
    if nrec_s is not None:
        e(f"s_sub_u32 s{r+2}, {nrec}, s{nrec_s}")
    else:
        e(f"s_mov_b32 s{r+2}, {nrec}")
    e(f"s_mov_b32 s{r+3}, 0x00020000")

def fma_tile(src, p, acc, t0, t1):
    for d in range(4):
        e(f"v_lshlrev_b32 v{t0}, 16, v{src+d}")
        e(f"v_and_b32 v{t1}, s{S_HI}, v{src+d}")
        e(f"v_fmac_f32 v{acc+2*d}, v{p}, v{t0}")
        e(f"v_fmac_f32 v{acc+2*d+1}, v{p}, v{t1}")

def dot_tile(src, phi, plo, acc, first):
    for d in range(4):
        if first:
            e(f"v_dot2_f32_bf16 v{acc+2*d}, v{src+d}, v{plo}, 0")
            e(f"v_dot2_f32_bf16 v{acc+2*d+1}, v{src+d}, v{phi}, 0")
        else:
            e(f"v_dot2c_f32_bf16 v{acc+2*d}, v{src+d}, v{plo}")
            e(f"v_dot2c_f32_bf16 v{acc+2*d+1}, v{src+d}, v{phi}")

def swap_reduce(acc, n):
    h = n // 2
    e("s_nop 1")
    for i in range(h):
        e(f"v_permlane32_swap_b32 v{acc+i}, v{acc+i+h}")
    for i in range(h):
        e(f"v_add_f32 v{acc+i}, v{acc+i}, v{acc+i+h}")
    q = h // 2
    e("s_nop 1")
    for i in range(q):
        e(f"v_permlane16_swap_b32 v{acc+i}, v{acc+i+q}")
    for i in range(q):
        e(f"v_add_f32 v{acc+i}, v{acc+i}, v{acc+i+q}")

def allgroups(op, v, t):
    e(f"v_mov_b32 v{t}, v{v}")
    e("s_nop 1")
    e(f"v_permlane32_swap_b32 v{v}, v{t}")
    e(f"{op} v{v}, v{v}, v{t}")
    e(f"v_mov_b32 v{t}, v{v}")
    e("s_nop 1")
    e(f"v_permlane16_swap_b32 v{v}, v{t}")
    e(f"{op} v{v}, v{v}, v{t}")

def red24_to_lds(acc, tA, tB, tC, tD, sreg=None):
    e(f"v_and_b32 v{tD}, 15, v{V_LANE}")
    e(f"v_lshlrev_b32 v{tD}, 5, v{tD}")
    e(f"s_mul_i32 s{S_T0}, s{S_WAVE if sreg is None else sreg}, 1536")
    e(f"v_add_u32 v{tD}, s{S_T0}, v{tD}")
    e(f"v_lshrrev_b32 v{tA}, 4, v{V_LANE}")
    e(f"v_mul_u32_u24 v{tA}, 6, v{tA}")
    for p in range(3):
        e(f"v_add_u32 v{tB}, {2*p}, v{tA}")
        e(f"v_lshrrev_b32 v{tC}, 3, v{tB}")
        e(f"v_lshl_add_u32 v{tC}, v{tC}, 9, v{tD}")
        e(f"v_and_b32 v{tB}, 7, v{tB}")
        e(f"v_lshl_add_u32 v{tC}, v{tB}, 2, v{tC}")
        e(f"ds_write_b64 v{tC}, v[{acc+2*p}:{acc+2*p+1}] offset:{LDS_RED}")

def canon4(r, t):
    e(f"v_mov_b32 v{t}, 0x7fc00000")
    for i in range(4):
        e(f"v_cmp_eq_u32 vcc, -1, v{r+i}")
        e("s_nop 1")
        e(f"v_cndmask_b32 v{r+i}, v{r+i}, v{t}, vcc")

def bf16_round(v, t=None):
    e(f"v_cvt_pk_bf16_f32 v{v}, v{v}, v{v}")
    e(f"v_lshlrev_b32 v{v}, 16, v{v}")

def stamp(k, ta, tb):
    if not OPT["stamps"]:
        return
    e("s_memrealtime s[98:99]")
    e("s_waitcnt lgkmcnt(0)")
    e(f"s_lshl_b32 s99, s{S_WAVE}, 6")
    e(f"v_mov_b32 v{ta}, s98")
    e(f"v_mov_b32 v{tb}, s99")
    e(f"ds_write_b32 v{tb}, v{ta} offset:{LDS_STAMP+4*k}")

_lbl = [0]
def newlabel(p):
    _lbl[0] += 1
    return f"L_{p}_{_lbl[0]}"

def spin_counter(lane_sel, target, vcnt, voff, hi=False):
    lo, done = newlabel("cspin"), newlabel("cdone")
    e(f"s_mov_b32 s{S_CNT}, {OPT['spin_cap']}")
    lab(lo)
    e(f"v_readlane_b32 s{S_T0}, v{vcnt}, {lane_sel}")
    e("s_nop 3")
    if hi:
        e(f"s_lshr_b32 s{S_T0}, s{S_T0}, 16")
    else:
        e(f"s_and_b32 s{S_T0}, s{S_T0}, 0xffff")
    e(f"s_cmp_ge_u32 s{S_T0}, {target}")
    e(f"s_cbranch_scc1 {done}")
    e(f"s_sub_u32 s{S_CNT}, s{S_CNT}, 1")
    e(f"s_cmp_eq_u32 s{S_CNT}, 0")
    e(f"s_cbranch_scc1 {done}")
    e("s_sleep 32")
    e(f"buffer_load_dword v{vcnt}, v{voff}, {srd(R_DBG)}, 0 offen sc1")
    e("s_waitcnt vmcnt(0)")
    e(f"s_branch {lo}")
    lab(done)

def poll_quads(regs, voff, offs, t):
    big = max(offs) > 4095
    lo, done = newlabel("poll"), newlabel("pdone")
    e(f"s_mov_b32 s{S_CNT}, {OPT['spin_cap']}")
    lab(lo)
    for r, o in zip(regs, offs):
        if big:
            e(f"s_mov_b32 s{S_OFF}, {o}")
            e(f"buffer_load_dwordx4 {vr(r,4)}, v{voff}, {srd(R_WS)}, s{S_OFF} offen sc1")
        else:
            e(f"buffer_load_dwordx4 {vr(r,4)}, v{voff}, {srd(R_WS)}, 0 offen offset:{o} sc1")
    e("s_waitcnt vmcnt(0)")
    first = True
    for r in regs:
        if first:
            e(f"v_max_u32 v{t}, v{r}, v{r+1}")
            first = False
        else:
            e(f"v_max3_u32 v{t}, v{t}, v{r}, v{r+1}")
        e(f"v_max3_u32 v{t}, v{t}, v{r+2}, v{r+3}")
    e(f"v_cmp_eq_u32 vcc, -1, v{t}")
    e("s_nop 4")
    e(f"s_cbranch_vccz {done}")
    e(f"s_sub_u32 s{S_CNT}, s{S_CNT}, 1")
    e(f"s_cmp_eq_u32 s{S_CNT}, 0")
    e(f"s_cbranch_scc1 {done}")
    e(f"s_sleep {OPT['sleep']}")
    e(f"s_branch {lo}")
    lab(done)

early_slots = [8, 12, 16, 20, 24, 28, 32, 36, 40]
ring_slots = list(range(SRING0, NVGPR, 4))
free_slots = early_slots + ring_slots
slot_of = {}
vmid = {}
def sl(kind, i): return slot_of[(kind, i)]
def issue(kind, i):
    free_slots.sort()
    slot_of[(kind, i)] = free_slots.pop(-1 if kind == "tw" else 0)
    r = sl(kind, i)
    n = (kind, i)
    if kind in ("k", "v"):
        T, j = divmod(i, 3)
        e(f"s_add_u32 s{S_OFF}, s{S_FB}, {T*3072}")
        vo, rr, pol = (V_KOFF, R_K, KNT) if kind == "k" else (V_VOFF, R_V, VNT)
        vmid[n] = vm.issue(f"buffer_load_dwordx4 {vr(r,4)}, v{vo}, {srd(rr)}, s{S_OFF} offen offset:{256*j}{pol}")
    elif kind == "tw":
        if i < 6:
            e(f"s_mov_b32 s{S_OFF}, {i*40960}")
            vmid[n] = vm.issue(f"buffer_load_dwordx4 {vr(r,4)}, v{V_TWO}, {srd(R_WO)}, s{S_OFF} offen{WNT}")
        else:
            e(f"s_mov_b32 s{S_OFF}, {(i-6)*40960}")
            vo = V_TWO if i == 6 else V_TWO2
            vmid[n] = vm.issue(f"buffer_load_dwordx4 {vr(r,4)}, v{vo}, {srd(R_W2)}, s{S_OFF} offen{WNT}")
def release(kind, idxs):
    for i in idxs:
        if slot_of[(kind, i)] in ring_slots:
            free_slots.append(slot_of[(kind, i)])
main = [("k", i) for i in range(3*F)] + [("v", i) for i in range(3*F-12)] + [("tw", i) for i in range(8)] + [("v", i) for i in range(3*F-12, 3*F)]
pos_of = {n: i for i, n in enumerate(main)}
st = dict(pos=0, landed=0)
D = OPT["depth"]
def can_issue():
    return st["pos"] < len(main) and bool(free_slots)
def wait_main(j):
    if st["landed"] <= j:
        vm.wait(vmid[main[j]])
        st["landed"] = j + 1
def paced_issue(d=None):
    d = D if d is None else d
    p = st["pos"]
    if p >= d:
        wait_main(p - d)
    issue(*main[p]); st["pos"] += 1

L.append(HEADER.rstrip("\n"))
L.append(f"; @launch grid=(256,1,1) block=(640,1,1) lds={LDS_TOTAL}")
L.append('.amdgcn_target "amdgcn-amd-amdhsa--gfx950"')
L.append(".text")
L.append(f".globl {NAME}_kernel")
L.append(".p2align 8")
L.append(f".type {NAME}_kernel,@function")
lab(f"{NAME}_kernel")
e("s_cmp_ge_u32 s2, 256")
e("s_cbranch_scc1 L_end")
e("s_load_dwordx16 s[4:19], s[0:1], 0")
e("s_load_dwordx8 s[20:27], s[0:1], 64")
e("s_load_dwordx2 s[28:29], s[0:1], 96")
cm("head = b>>3 ; split = b&7  (the 8 splits of a head sit on 8 different XCDs)")
e(f"s_lshr_b32 s{S_HEAD}, s2, 3")
e(f"s_and_b32 s{S_SPLIT}, s2, 7")
e(f"v_lshrrev_b32 v{V_T}, 6, v{V_TID}")
e(f"v_and_b32 v{V_LANE}, 63, v{V_TID}")
e(f"v_readfirstlane_b32 s{S_WAVE}, v{V_T}")
e(f"s_mov_b32 s{S_HI}, 0xffff0000")
e(f"s_mov_b32 s{S_L2E}, 0x3fb8aa3b")
e(f"s_mov_b32 s{S_SCALE}, 0x3d93cd3a")
Vc, Vg = 58, 59
e(f"v_and_b32 v{Vc}, 15, v{V_LANE}")
e(f"v_lshrrev_b32 v{Vg}, 4, v{V_LANE}")
e(f"v_cmp_gt_u32 s[{S_MC8}:{S_MC8+1}], 8, v{Vc}")
cm("K voffset = m*768 + g*64 + u*16 ; V voffset = g*768 + c*16 ; fixed part starts at (split*64F + w*8F)*384")
e(f"v_bfe_u32 v60, v{V_LANE}, 2, 2")
e(f"v_mul_u32_u24 v60, 768, v60")
e(f"v_lshl_add_u32 v60, v{Vg}, 6, v60")
e(f"v_and_b32 v61, 3, v{V_LANE}")
e(f"v_lshl_add_u32 v{V_KOFF}, v61, 4, v60")
e(f"v_mul_u32_u24 v60, 768, v{Vg}")
e(f"v_lshl_add_u32 v{V_VOFF}, v{Vc}, 4, v60")
e(f"s_lshl_b32 s{S_FB}, s{S_SPLIT}, 3")
e(f"s_add_u32 s{S_FB}, s{S_FB}, s{S_WAVE}")
e(f"s_mul_i32 s{S_FB}, s{S_FB}, {8*F*384}")
e("s_waitcnt lgkmcnt(0)")
cm("SRDs")
S_LW = 95
e(f"s_lshl_b32 s{S_LW}, s{S_HEAD}, 3")
e(f"s_add_u32 s{S_LW}, s{S_LW}, s{S_SPLIT}")
e(f"s_mul_i32 s{S_T1}, s{S_HEAD}, 3145728")
make_srd(R_K, P_K, S_T1, 3145728)
make_srd(R_V, P_V, S_T1, 3145728)
make_srd(R_X, P_X, None, 1280)
make_srd(R_GW, P_GW, None, 1280)
e(f"s_mul_i32 s{S_T1}, s{S_HEAD}, 384")
make_srd(R_WQ, P_WQ, S_T1, 640 * 12288, S_T1)
e(f"s_mul_i32 s{S_T1}, s{S_HEAD}, 96")
make_srd(R_W1, P_W1, S_T1, 640 * 3072, S_T1)
make_srd(R_W3, P_W3, S_T1, 640 * 3072, S_T1)
make_srd(R_WS, P_WS, None, WS_BYTES)
make_srd(R_DBG, P_DBG, None, 256)
make_srd(R_OUT, P_OUT, None, 1280)
e(f"s_mul_i32 s{S_T1}, s{S_HEAD}, {192*1280}")
cm("output column slice (64-B aligned): even splits 96 columns, odd splits 64")
e(f"s_lshr_b32 s{S_COL}, s{S_SPLIT}, 1")
e(f"s_mul_i32 s{S_COL}, s{S_COL}, 320")
e(f"s_and_b32 s{S_NCC}, s{S_SPLIT}, 1")
e(f"s_mul_i32 s{S_T2}, s{S_NCC}, 192")
e(f"s_add_u32 s{S_COL}, s{S_COL}, s{S_T2}")
e(f"s_lshl_b32 s{S_NCC}, s{S_NCC}, 2")
e(f"s_sub_u32 s{S_NCC}, 12, s{S_NCC}")
e(f"s_mov_b32 s{S_T2}, s{S_COL}")
e(f"s_add_u32 s{S_T1}, s{S_T1}, s{S_T2}")
make_srd(R_WO, P_WO, S_T1, 6144 * 1280, S_T1)
e(f"s_mul_i32 s{S_T1}, s{S_HEAD}, {48*1280}")
e(f"s_add_u32 s{S_T1}, s{S_T1}, s{S_T2}")
make_srd(R_W2, P_W2, S_T1, 1536 * 1280, S_T1)
stamp(0, 4, 5)
e(f"s_cmp_ge_u32 s{S_WAVE}, 8")
e("s_cbranch_scc1 L_helper")

cm("================= streaming waves =================")
cm("park K tiles until q is ready")
D0 = OPT["depth0"]
for _ in range(D0):
    paced_issue(D0)
e("s_barrier")
while can_issue() and st["pos"] < 3 * F:
    paced_issue(D0)
cm("tail weight voffsets: rgrp*1280 + cc*16 (cc<10)")
e(f"v_lshrrev_b32 v{V_T}, 4, v{V_LANE}")
e(f"s_lshl_b32 s{S_T0}, s{S_WAVE}, 2")
e(f"v_add_u32 v{V_T}, s{S_T0}, v{V_T}")
e(f"v_mul_u32_u24 v{V_T}, 1280, v{V_T}")
e(f"v_and_b32 v{V_T+1}, 15, v{V_LANE}")
e(f"v_lshl_add_u32 v{V_T}, v{V_T+1}, 4, v{V_T}")
e(f"v_mov_b32 v{V_T+2}, {OOB:#x}")
e(f"v_cmp_gt_u32 vcc, s{S_NCC}, v{V_T+1}")
e("s_nop 1")
e(f"v_cndmask_b32 v{V_TWO}, v{V_T+2}, v{V_T}, vcc")
e(f"s_cmp_lt_u32 s{S_WAVE}, 4")
e(f"s_cselect_b64 vcc, vcc, 0")
e("s_nop 1")
e(f"v_cndmask_b32 v{V_TWO2}, v{V_T+2}, v{V_T}, vcc")
cm("pool ticket address (lane 0)")
e(f"s_lshl_b32 s{S_T0}, s{S_HEAD}, 7")
e(f"s_add_u32 s{S_T0}, s{S_T0}, {WS_POOL}")
e(f"v_mov_b32 v{V_CLMO}, s{S_T0}")
e(f"v_cmp_eq_u32 vcc, 0, v{V_LANE}")
e(f"v_mov_b32 v{V_CLM}, 1")
e("s_nop 0")
e(f"v_cndmask_b32 v{V_CLMO}, v{V_T+2}, v{V_CLMO}, vcc")
cm("q fragment addresses: g=l>>4,u=l&3 ; qo = g*64+u*16")
e(f"v_lshrrev_b32 v4, 4, v{V_LANE}")
e(f"v_and_b32 v5, 3, v{V_LANE}")
e(f"v_lshlrev_b32 v5, 4, v5")
e(f"v_lshl_add_u32 v5, v4, 6, v5")
e(f"v_add_u32 v5, {LDS_QBF}, v5")
e(f"v_mov_b32 v6, {LDS_ZERO}")
e(f"v_cmp_gt_u32 vcc, 32, v{V_LANE}")
e(f"v_add_u32 v7, 256, v5")
e(f"v_subrev_u32 v4, 128, v5")
e(f"v_cndmask_b32 v7, v6, v7, vcc")
e(f"v_cndmask_b32 v4, v4, v6, vcc")
e(f"v_mov_b32 v{V_MAX}, 0xff800000")
stamp(1, 76, 77)
e("s_barrier")
B0, B1L, B1H, B2 = V_QF, V_QF + 4, V_QF + 8, V_QF + 12
e(f"ds_read_b128 {vr(B0,4)}, v5")
e(f"ds_read_b128 {vr(B1L,4)}, v7")
e(f"ds_read_b128 {vr(B1H,4)}, v4")
e(f"ds_read_b128 {vr(B2,4)}, v5 offset:128")
e("s_waitcnt lgkmcnt(0)")
stamp(2, 76, 77)

def mfma_tile(r0, r1, r2, aX, aY):
    e(f"v_mfma_f32_16x16x32_bf16 {vr(aX,4)}, {vr(r0,4)}, {vr(B0,4)}, 0")
    e(f"v_mfma_f32_16x16x32_bf16 {vr(aY,4)}, {vr(r1,4)}, {vr(B1H,4)}, 0")
    e(f"v_mfma_f32_16x16x32_bf16 {vr(aX,4)}, {vr(r1,4)}, {vr(B1L,4)}, {vr(aX,4)}")
    e(f"v_mfma_f32_16x16x32_bf16 {vr(aY,4)}, {vr(r2,4)}, {vr(B2,4)}, {vr(aY,4)}")
def score_pair(aX, aY, dst, tx, ty):
    e(f"v_mov_b32_dpp v{tx}, v{aX} quad_perm:[0,0,0,0] row_mask:0xf bank_mask:0xf")
    e(f"v_mov_b32_dpp v{ty}, v{aY} quad_perm:[0,0,0,0] row_mask:0xf bank_mask:0xf")
    for r in (1, 2, 3):
        e(f"v_add_f32_dpp v{tx}, v{aX+r}, v{tx} quad_perm:[{r},{r},{r},{r}] row_mask:0xf bank_mask:0xf")
        e(f"v_add_f32_dpp v{ty}, v{aY+r}, v{ty} quad_perm:[{r},{r},{r},{r}] row_mask:0xf bank_mask:0xf")
    e(f"v_cvt_pk_bf16_f32 v{tx}, v{tx}, v{ty}")
    e(f"v_and_b32 v{ty}, s{S_HI}, v{tx}")
    e(f"v_lshlrev_b32 v{tx}, 16, v{tx}")
    e(f"v_mul_f32 v{tx}, s{S_SCALE}, v{tx}")
    e(f"v_mul_f32 v{ty}, s{S_SCALE}, v{ty}")
    e(f"v_cvt_pk_bf16_f32 v{dst}, v{tx}, v{ty}")
    e(f"v_and_b32 v{ty}, s{S_HI}, v{dst}")
    e(f"v_lshlrev_b32 v{tx}, 16, v{dst}")
def post_scores(T):
    aX = V_MACC + 8 * (T & 1)
    score_pair(aX, aX + 4, V_SC + T, t0, t1)
    e(f"v_max3_f32 v{V_MAX}, v{V_MAX}, v{t0}, v{t1}")
def consume_k(T):
    n0 = 3 * T
    aX = V_MACC + 8 * (T & 1)
    cm(f"K tile {T}")
    mfma_tile(sl('k', n0), sl('k', n0 + 1), sl('k', n0 + 2), aX, aX + 4)
    release("k", range(n0, n0 + 3))
    if T > 0:
        post_scores(T - 1)
    else:
        e("s_nop 7")
    if T == F - 1:
        e("s_nop 1")
        post_scores(F - 1)
        stamp(3, 76, 77)
        cm("wave max")
        allgroups("v_max_f32", V_MAX, t0)
        e(f"v_mul_f32 v{V_ML2}, s{S_L2E}, v{V_MAX}")
        e(f"v_mov_b32 v{V_LS}, 0")
        for i in range(24):
            e(f"v_mov_b32 v{V_ACC+i}, 0")
def pv_tile(r0, r1, r2):
    e(f"v_cndmask_b32 v{pM}, v{pY}, v{pX}, s[{S_MC8}:{S_MC8+1}]")
    e(f"v_add_f32 v{V_LS}, v{V_LS}, v{pX}")
    e(f"v_add_f32 v{V_LS}, v{V_LS}, v{pY}")
    for j, (r, p) in enumerate(((r0, pX), (r1, pM), (r2, pY))):
        fma_tile(r, p, V_ACC + 8 * j, t0, t1)
def consume_v(T):
    n0 = 3 * T
    cm(f"V tile {T}")
    e(f"v_lshlrev_b32 v{pX}, 16, v{V_SC+T}")
    e(f"v_and_b32 v{pY}, s{S_HI}, v{V_SC+T}")
    e(f"v_fma_f32 v{pX}, v{pX}, s{S_L2E}, -v{V_ML2}")
    e(f"v_fma_f32 v{pY}, v{pY}, s{S_L2E}, -v{V_ML2}")
    e(f"v_exp_f32 v{pX}, v{pX}")
    e(f"v_exp_f32 v{pY}, v{pY}")
    e("s_nop 0")
    pv_tile(sl("v", n0), sl("v", n0 + 1), sl("v", n0 + 2))
    release("v", range(n0, n0 + 3))
tile = 0
claimed = False
while tile < 2 * F:
    last = pos_of[("k", 3 * tile + 2) if tile < F else ("v", 3 * (tile - F) + 2)]
    if can_issue():
        paced_issue()
        if st["pos"] == len(main) - 3 and NPOOL:
            cm("first pool ticket")
            vm.issue(f"buffer_atomic_add v{V_CLM}, v{V_CLMO}, {srd(R_WS)}, 0 offen sc0")
            claimed = True
    else:
        wait_main(last)
    if st["landed"] > last:
        if tile < F: consume_k(tile)
        else: consume_v(tile - F)
        tile += 1
assert st["pos"] == len(main)
stamp(10, 76, 77)
tws = sorted(slot_of[("tw", i)] for i in range(8))
assert tws == list(range(NVGPR - 32, NVGPR, 4)), tws
if NPOOL:
    assert claimed
    cm("==== pool tiles: claimed one at a time, online softmax per lane group ====")
    BUF = [[SRING0 + 4 * i for i in range(6)], [SRING0 + 24 + 4 * i for i in range(6)]]
    S_C = 30
    def pool_next(buf, lbl_none):
        e(f"v_readfirstlane_b32 s{S_C}, v{V_CLM}")
        e(f"v_mov_b32 v{V_CLM}, 1")
        e("s_nop 2")
        e(f"s_cmp_ge_u32 s{S_C}, {NPOOL}")
        e(f"s_cbranch_scc1 {lbl_none}")
        e(f"s_mul_i32 s{S_OFF}, s{S_C}, 3072")
        e(f"s_add_u32 s{S_OFF}, s{S_OFF}, {512*F*384}")
        e(f"buffer_atomic_add v{V_CLM}, v{V_CLMO}, {srd(R_WS)}, 0 offen sc0")
        for j in range(3):
            e(f"buffer_load_dwordx4 {vr(buf[j],4)}, v{V_KOFF}, {srd(R_K)}, s{S_OFF} offen offset:{256*j}{KNT}")
        for j in range(3):
            e(f"buffer_load_dwordx4 {vr(buf[3+j],4)}, v{V_VOFF}, {srd(R_V)}, s{S_OFF} offen offset:{256*j}{VNT}")
    def pool_front(buf):
        e("s_waitcnt vmcnt(3)")
        mfma_tile(buf[0], buf[1], buf[2], V_MACC, V_MACC + 4)
        e("s_nop 7")
        score_pair(V_MACC, V_MACC + 4, 4, pX, pY)
        e(f"v_max3_f32 v{t0}, v{V_MAX}, v{pX}, v{pY}")
        e(f"v_sub_f32 v{t1}, v{V_MAX}, v{t0}")
        e(f"v_mul_f32 v{t1}, s{S_L2E}, v{t1}")
        e(f"v_exp_f32 v{t1}, v{t1}")
        e(f"v_mov_b32 v{V_MAX}, v{t0}")
        e(f"v_mul_f32 v{V_ML2}, s{S_L2E}, v{t0}")
        e(f"v_fma_f32 v{pX}, v{pX}, s{S_L2E}, -v{V_ML2}")
        e(f"v_fma_f32 v{pY}, v{pY}, s{S_L2E}, -v{V_ML2}")
        e(f"v_exp_f32 v{pX}, v{pX}")
        e(f"v_exp_f32 v{pY}, v{pY}")
        e(f"v_mul_f32 v{V_LS}, v{V_LS}, v{t1}")
        for i in range(24):
            e(f"v_mul_f32 v{V_ACC+i}, v{V_ACC+i}, v{t1}")
        e(f"s_waitcnt vmcnt({OPT['pool_ahead']})")
    e("s_waitcnt vmcnt(0)")
    pool_next(BUF[0], "L_pool_done")
    lab("L_pool_loop")
    pool_front(BUF[0])
    pool_next(BUF[1], "L_pool_lastA")
    if OPT['pool_ahead']: e("s_waitcnt vmcnt(7)")
    pv_tile(*BUF[0][3:])
    pool_front(BUF[1])
    pool_next(BUF[0], "L_pool_lastB")
    if OPT['pool_ahead']: e("s_waitcnt vmcnt(7)")
    pv_tile(*BUF[1][3:])
    e("s_branch L_pool_loop")
    lab("L_pool_lastA")
    e("s_waitcnt vmcnt(0)")
    pv_tile(*BUF[0][3:])
    e("s_branch L_pool_done")
    lab("L_pool_lastB")
    e("s_waitcnt vmcnt(0)")
    pv_tile(*BUF[1][3:])
    lab("L_pool_done")
    cm("bring the 4 lane groups to a common max")
    e(f"v_mov_b32 v{pX}, v{V_MAX}")
    allgroups("v_max_f32", V_MAX, t0)
    e(f"v_sub_f32 v{t1}, v{pX}, v{V_MAX}")
    e(f"v_mul_f32 v{t1}, s{S_L2E}, v{t1}")
    e(f"v_exp_f32 v{t1}, v{t1}")
    e("s_nop 0")
    e(f"v_mul_f32 v{V_LS}, v{V_LS}, v{t1}")
    for i in range(24):
        e(f"v_mul_f32 v{V_ACC+i}, v{V_ACC+i}, v{t1}")
stamp(4, 76, 77)
V_CNT, V_CNTO = 16, 17
cm("slice counter (only the reducers look at it)")
e(f"s_lshl_b32 s{S_T0}, s{S_SPLIT}, 5")
e(f"s_add_u32 s{S_T0}, s{S_T0}, 4")
e(f"v_mov_b32 v{V_CNTO}, s{S_T0}")
e(f"buffer_load_dword v{V_CNT}, v{V_CNTO}, {srd(R_DBG)}, 0 offen sc1")
cm("==== T0: wave reduce ====")
swap_reduce(V_ACC, 24)
red24_to_lds(V_ACC, 4, 5, 6, 7)
allgroups("v_add_f32", V_LS, V_T)
e(f"s_lshl_b32 s{S_T0}, s{S_WAVE}, 3")
e(f"v_mov_b32 v4, s{S_T0}")
e(f"v_mov_b32 v6, v{V_MAX}")
e(f"v_mov_b32 v7, v{V_LS}")
e(f"ds_write_b64 v4, v[6:7] offset:{LDS_STAT}")
e("s_waitcnt lgkmcnt(0)")
e("s_barrier")

cm("==== T1: wave 0 combines the 8 waves and publishes ====")
e(f"s_lshl_b32 s{S_T1}, s{S_HEAD}, 3")
e(f"s_add_u32 s{S_T2}, s{S_T1}, s{S_SPLIT}")
e(f"s_cmp_lg_u32 s{S_WAVE}, 0")
e("s_cbranch_scc1 L_t1done")
e("v_mov_b32 v4, 0")
SB = SRING0
RB = 20
for w in range(4):
    e(f"ds_read_b128 {vr(SB+4*w,4)}, v4 offset:{LDS_STAT+16*w}")
e(f"v_lshlrev_b32 v5, 4, v{V_LANE}")
e(f"v_min_u32 v5, 752, v5")
for w in range(8):
    e(f"ds_read_b128 {vr(RB+8*w,4)}, v5 offset:{LDS_RED+1536*w}")
    e(f"ds_read_b128 {vr(RB+8*w+4,4)}, v5 offset:{LDS_RED+1536*w+768}")
e("s_waitcnt lgkmcnt(15)")
e(f"v_max3_f32 v6, v{SB}, v{SB+2}, v{SB+4}")
e(f"v_max3_f32 v6, v6, v{SB+6}, v{SB+8}")
e(f"v_max3_f32 v6, v6, v{SB+10}, v{SB+12}")
e(f"v_max_f32 v6, v6, v{SB+14}")
e(f"v_mul_f32 v7, s{S_L2E}, v6")
for w in range(8):
    e(f"v_fma_f32 v{SB+2*w}, v{SB+2*w}, s{S_L2E}, -v7")
for w in range(8):
    e(f"v_exp_f32 v{SB+2*w}, v{SB+2*w}")
e("s_nop 0")
e(f"v_mul_f32 v7, v{SB}, v{SB+1}")
for w in range(1, 8):
    e(f"v_fmac_f32 v7, v{SB+2*w}, v{SB+2*w+1}")
e("s_waitcnt lgkmcnt(0)")
for w in range(8):
    for i in range(4):
        e(f"v_add_f32 v{RB+8*w+i}, v{RB+8*w+i}, v{RB+8*w+4+i}")
    for i in range(4):
        if w == 0:
            e(f"v_mul_f32 v{8+i}, v{SB}, v{RB+i}")
        else:
            e(f"v_fmac_f32 v{8+i}, v{SB+2*w}, v{RB+8*w+i}")
cm("lane48: (M,L,0,0) ; lanes>=49: 0")
e(f"v_cmp_lt_u32 vcc, 47, v{V_LANE}")
e("s_nop 1")
for i in range(4):
    e(f"v_cndmask_b32 v{8+i}, v{8+i}, v4, vcc")
e(f"v_cmp_eq_u32 vcc, 48, v{V_LANE}")
e("s_nop 1")
e("v_cndmask_b32 v8, v8, v6, vcc")
e("v_cndmask_b32 v9, v9, v7, vcc")
canon4(8, 12)
e(f"s_lshl_b32 s{S_T0}, s{S_T2}, 10")
e(f"v_lshlrev_b32 v5, 4, v{V_LANE}")
e(f"v_add_u32 v5, s{S_T0}, v5")
e(f"buffer_store_dwordx4 v[8:11], v5, {srd(R_WS)}, 0 offen sc1")
lab("L_t1done")
stamp(5, 4, 5)
cm("all waves: wave j gathers outbox j of this head")
e(f"s_add_u32 s{S_T0}, s{S_T1}, s{S_WAVE}")
e(f"s_lshl_b32 s{S_T0}, s{S_T0}, 10")
e(f"v_lshlrev_b32 v5, 4, v{V_LANE}")
e(f"v_add_u32 v6, s{S_T0}, v5")
cm("(addresses for T3 while waiting)")
e(f"s_lshl_b32 s{S_T0}, s{S_WAVE}, 10")
e(f"v_add_u32 v13, s{S_T0}, v5")
e(f"v_lshrrev_b32 v5, 4, v{V_LANE}")
e(f"s_lshl_b32 s{S_T0}, s{S_WAVE}, 2")
e(f"v_add_u32 v5, s{S_T0}, v5")
e(f"v_and_b32 v14, 15, v{V_LANE}")
e(f"v_min_u32 v14, 5, v14")
e(f"v_lshl_add_u32 v14, v14, 5, v5")
e(f"v_lshlrev_b32 v14, 2, v14")
e("v_lshlrev_b32 v7, 2, v5")
e(f"ds_read_b32 v44, v7 offset:{LDS_H48}")
e("v_add_u32 v7, 32, v5")
e("v_min_u32 v7, 47, v7")
e("v_lshlrev_b32 v7, 2, v7")
e(f"ds_read_b32 v45, v7 offset:{LDS_H48}")
e("v_mov_b32 v4, 0")
GA = 52
cm("b part of the GEMV slice (h @ w2) does not depend on the gather")
e("s_waitcnt lgkmcnt(0)")
e("v_lshrrev_b32 v74, 16, v44")
e("v_lshrrev_b32 v75, 16, v45")
if OPT["dot2"]:
    dot_tile(sl("tw", 6), 44, 74, GA + 8, True)
    dot_tile(sl("tw", 7), 45, 75, GA + 8, False)
else:
    for i in range(8):
        e(f"v_mov_b32 v{GA+8+i}, 0")
    for k in range(2):
        fma_tile(sl("tw", 6 + k), 44 + k, GA + 8, 74, 75)
poll_quads([8], 6, [0], 7)
stamp(6, 15, 12)
e(f"ds_write_b128 v13, v[8:11] offset:{LDS_GATH}")
e("s_waitcnt lgkmcnt(0)")
e("s_barrier")

cm("==== T3: combine splits, output GEMV slice ====")
for j in range(8):
    e(f"ds_read_b64 v[{20+2*j}:{21+2*j}], v4 offset:{LDS_GATH+1024*j+768}")
for j in range(8):
    e(f"ds_read_b32 v{36+j}, v14 offset:{LDS_GATH+1024*j}")
e("s_waitcnt lgkmcnt(8)")
e("v_max3_f32 v6, v20, v22, v24")
e("v_max3_f32 v6, v6, v26, v28")
e("v_max3_f32 v6, v6, v30, v32")
e("v_max_f32 v6, v6, v34")
e(f"v_mul_f32 v7, s{S_L2E}, v6")
for j in range(8):
    e(f"v_fma_f32 v{20+2*j}, v{20+2*j}, s{S_L2E}, -v7")
for j in range(8):
    e(f"v_exp_f32 v{20+2*j}, v{20+2*j}")
e("s_waitcnt lgkmcnt(0)")
e("v_mul_f32 v7, v20, v21")
e("v_mul_f32 v8, v20, v36")
for j in range(1, 8):
    e(f"v_fmac_f32 v7, v{20+2*j}, v{21+2*j}")
    e(f"v_fmac_f32 v8, v{20+2*j}, v{36+j}")
e("v_rcp_f32 v7, v7")
e("s_nop 0")
e("v_mul_f32 v8, v8, v7")
bf16_round(8)
e("v_lshrrev_b32 v9, 16, v8")
e("s_nop 0")
for k in range(6):
    e(f"v_mov_b32_dpp v{46+k}, v8 row_newbcast:{k} row_mask:0xf bank_mask:0xf")
if OPT["dot2"]:
    for k in range(6):
        e(f"v_mov_b32_dpp v{68+k}, v9 row_newbcast:{k} row_mask:0xf bank_mask:0xf")
    for k in range(6):
        dot_tile(sl("tw", k), 46 + k, 68 + k, GA, k == 0)
    e("s_nop 1")
else:
    for i in range(8):
        e(f"v_mov_b32 v{GA+i}, 0")
    for k in range(6):
        fma_tile(sl("tw", k), 46 + k, GA, 4, 5)
swap_reduce(GA, 16)
cm("RED2[w] + (g>>1)*384 + cc*32 + (g&1)*16, cc<12")
e(f"v_lshrrev_b32 v5, 5, v{V_LANE}")
e(f"v_mul_u32_u24 v5, 384, v5")
e(f"v_bfe_u32 v6, v{V_LANE}, 4, 1")
e(f"v_lshl_add_u32 v5, v6, 4, v5")
e(f"v_and_b32 v6, 15, v{V_LANE}")
e(f"v_lshl_add_u32 v5, v6, 5, v5")
e(f"s_mul_i32 s{S_T0}, s{S_WAVE}, 768")
e(f"v_add_u32 v5, s{S_T0}, v5")
e(f"v_cmp_gt_u32 vcc, 12, v6")
e(f"s_and_saveexec_b64 s[{S_EX}:{S_EX+1}], vcc")
e(f"ds_write_b128 v5, v[{GA}:{GA+3}] offset:{LDS_RED2}")
e(f"s_mov_b64 exec, s[{S_EX}:{S_EX+1}]")
e("s_waitcnt lgkmcnt(0)")
e("s_barrier")

cm("==== T4: wave 0 publishes the slice partial ====")
e(f"s_cmp_lg_u32 s{S_WAVE}, 0")
e("s_cbranch_scc1 L_t4done")
e(f"v_lshlrev_b32 v5, 4, v{V_LANE}")
e(f"v_min_u32 v6, 752, v5")
for w in range(8):
    e(f"ds_read_b128 {vr(RB+4*w,4)}, v6 offset:{LDS_RED2+768*w}")
e("s_waitcnt lgkmcnt(0)")
for st in (1, 2, 4):
    for w in range(0, 8, 2 * st):
        for i in range(4):
            e(f"v_add_f32 v{RB+4*w+i}, v{RB+4*w+i}, v{RB+4*(w+st)+i}")
canon4(RB, 12)
e(f"s_lshl_b32 s{S_T0}, s{S_SPLIT}, 5")
e(f"s_add_u32 s{S_T0}, s{S_T0}, s{S_HEAD}")
e(f"s_mul_i32 s{S_T0}, s{S_T0}, 768")
e(f"s_add_u32 s{S_T0}, s{S_T0}, {WS_OUT2}")
e(f"v_add_u32 v5, s{S_T0}, v5")
e(f"v_mov_b32 v6, {OOB:#x}")
e(f"v_cmp_gt_u32 vcc, 48, v{V_LANE}")
e("s_nop 1")
e(f"v_cndmask_b32 v5, v6, v5, vcc")
e(f"buffer_store_dwordx4 {vr(RB,4)}, v5, {srd(R_WS)}, 0 offen sc1")
lab("L_t4done")

stamp(7, 4, 5)
cm("==== T5: reducer WGs (head == 4*split) ====")
e(f"s_lshl_b32 s{S_T0}, s{S_SPLIT}, 2")
e(f"s_cmp_lg_u32 s{S_T0}, s{S_HEAD}")
e("s_cbranch_scc1 " + ("L_fin" if OPT["stamps"] else "L_end"))
e("s_waitcnt vmcnt(0)")
spin_counter(0, 32, V_CNT, V_CNTO)
e(f"s_lshl_b32 s{S_T0}, s{S_SPLIT}, 5")
e(f"s_lshl_b32 s{S_T1}, s{S_WAVE}, 2")
e(f"s_add_u32 s{S_T0}, s{S_T0}, s{S_T1}")
e(f"s_mul_i32 s{S_T0}, s{S_T0}, 768")
e(f"s_add_u32 s{S_T0}, s{S_T0}, {WS_OUT2}")
e(f"v_lshlrev_b32 v5, 4, v{V_LANE}")
e(f"v_add_u32 v7, s{S_T0}, v5")
e(f"v_mov_b32 v6, {OOB:#x}")
e(f"v_cmp_gt_u32 vcc, 48, v{V_LANE}")
e("s_nop 1")
e(f"v_cndmask_b32 v7, v6, v7, vcc")
poll_quads([20, 24, 28, 32], 7, [0, 768, 1536, 2304], 8)
stamp(8, 4, 12)
for i in range(4):
    e(f"v_add_f32 v{20+i}, v{20+i}, v{24+i}")
    e(f"v_add_f32 v{28+i}, v{28+i}, v{32+i}")
for i in range(4):
    e(f"v_add_f32 v{20+i}, v{20+i}, v{28+i}")
e(f"s_mul_i32 s{S_T0}, s{S_WAVE}, 768")
e(f"v_add_u32 v5, s{S_T0}, v5")
e(f"v_cmp_gt_u32 vcc, 48, v{V_LANE}")
e(f"s_and_saveexec_b64 s[{S_EX}:{S_EX+1}], vcc")
e(f"ds_write_b128 v5, v[20:23] offset:{LDS_RED3}")
e(f"s_mov_b64 exec, s[{S_EX}:{S_EX+1}]")
e("s_waitcnt lgkmcnt(0)")
e("s_barrier")
e(f"s_cmp_gt_u32 s{S_WAVE}, 1")
e("s_cbranch_scc1 " + ("L_fin" if OPT["stamps"] else "L_end"))
e(f"v_min_u32 v5, 95, v{V_TID}")
e(f"v_lshlrev_b32 v5, 2, v5")
for w in range(8):
    e(f"ds_read_b32 v{20+w}, v5 offset:{LDS_RED3+768*w}")
    e(f"ds_read_b32 v{28+w}, v5 offset:{LDS_RED3+768*w+384}")
e("v_mov_b32 v4, 0")
e(f"ds_read_b32 v36, v4 offset:{LDS_HG+28}")
e("s_waitcnt lgkmcnt(0)")
for base in (20, 28):
    for a, b in ((0, 1), (2, 3), (4, 5), (6, 7), (0, 2), (4, 6), (0, 4)):
        e(f"v_add_f32 v{base+a}, v{base+a}, v{base+b}")
bf16_round(20)
bf16_round(28)
e("v_mul_f32 v20, v36, v20")
bf16_round(20)
e("v_sub_f32 v21, 1.0, v36")
bf16_round(21)
e("v_mul_f32 v21, v21, v28")
bf16_round(21)
e("v_add_f32 v20, v20, v21")
e("v_cvt_pk_bf16_f32 v20, v20, v20")
e(f"s_lshl_b32 s{S_T0}, s{S_NCC}, 3")
e(f"v_lshlrev_b32 v5, 1, v{V_TID}")
e(f"v_add_u32 v5, s{S_COL}, v5")
e(f"v_mov_b32 v6, {OOB:#x}")
e(f"v_cmp_gt_u32 vcc, s{S_T0}, v{V_TID}")
e("s_nop 1")
e(f"v_cndmask_b32 v5, v6, v5, vcc")
e(f"buffer_store_short v20, v5, {srd(R_OUT)}, 0 offen")
e("s_branch " + ("L_fin" if OPT["stamps"] else "L_end"))

L_SAVE = L
cm("================= helper waves (8: H0, 9: H1) =================")
lab("L_helper")
S_H = 31
e(f"s_sub_u32 s{S_H}, s{S_WAVE}, 8")
e(f"v_mov_b32 v63, {OOB:#x}")
e(f"v_lshlrev_b32 v8, 4, v{V_LANE}")
e("v_mov_b32 v57, v63")
for i in range(24):
    e(f"v_mov_b32 v{V_ACC+i}, 0")
cm("H0: clear own boxes to the sentinel (out1, out2 slot, qbox); zero LDS flag and zero block")
e(f"s_cmp_lg_u32 s{S_H}, 0")
e("s_cbranch_scc1 L_noclear")
e("v_mov_b32 v4, -1"); e("v_mov_b32 v5, -1"); e("v_mov_b32 v6, -1"); e("v_mov_b32 v7, -1")
e(f"s_mul_i32 s{S_T1}, s{S_LW}, {QB}")
e(f"s_add_u32 s{S_T1}, s{S_T1}, {WS_QBOX}")
e(f"v_add_u32 v11, s{S_T1}, v8")
e(f"buffer_store_dwordx4 v[4:7], v11, {srd(R_WS)}, 0 offen sc1")
e(f"v_cmp_gt_u32 vcc, 9, v{V_LANE}")
e("s_nop 1")
e(f"v_cndmask_b32 v11, v63, v11, vcc")
e(f"buffer_store_dwordx4 v[4:7], v11, {srd(R_WS)}, 0 offen offset:1024 sc1")
e(f"s_lshl_b32 s{S_T1}, s{S_LW}, 10")
e(f"v_add_u32 v9, s{S_T1}, v8")
e(f"buffer_store_dwordx4 v[4:7], v9, {srd(R_WS)}, 0 offen sc1")
e(f"s_lshl_b32 s{S_T1}, s{S_SPLIT}, 5")
e(f"s_add_u32 s{S_T1}, s{S_T1}, s{S_HEAD}")
e(f"s_mul_i32 s{S_T1}, s{S_T1}, 768")
e(f"s_add_u32 s{S_T1}, s{S_T1}, {WS_OUT2}")
e(f"v_add_u32 v10, s{S_T1}, v8")
e(f"v_cmp_gt_u32 vcc, 48, v{V_LANE}")
e("s_nop 1")
e(f"v_cndmask_b32 v10, v63, v10, vcc")
e(f"buffer_store_dwordx4 v[4:7], v10, {srd(R_WS)}, 0 offen sc1")
cm("split 0 zeroes the pool ticket counter of the head")
e(f"s_lshl_b32 s{S_T1}, s{S_HEAD}, 7")
e(f"s_add_u32 s{S_T1}, s{S_T1}, {WS_POOL}")
e(f"s_cmp_eq_u32 s{S_SPLIT}, 0")
e(f"s_cselect_b32 s{S_T1}, s{S_T1}, {OOB:#x}")
e(f"v_mov_b32 v12, s{S_T1}")
e(f"v_cmp_eq_u32 vcc, 0, v{V_LANE}")
e("s_nop 1")
e(f"v_cndmask_b32 v12, v63, v12, vcc")
e(f"buffer_store_dword v{V_ACC}, v12, {srd(R_WS)}, 0 offen sc1")
e(f"v_mov_b32 v12, {LDS_ZERO}")
e(f"ds_write_b128 v12, v[{V_ACC}:{V_ACC+3}]")
e(f"v_mov_b32 v12, {LDS_FLAG2}")
e(f"ds_write_b32 v12, v{V_ACC}")
e(f"ds_write_b32 v12, v{V_ACC} offset:4")
lab("L_noclear")
cm("wq rows: row0 = 80*split + 20g + 10h ; pairs T=0..4")
e(f"s_mul_i32 s{S_T0}, s{S_SPLIT}, 80")
e(f"s_mul_i32 s{S_T1}, s{S_H}, 10")
e(f"s_add_u32 s{S_T1}, s{S_T0}, s{S_T1}")
e(f"v_mul_u32_u24 v60, 20, v{Vg}")
e(f"v_add_u32 v60, s{S_T1}, v60")
e(f"v_lshlrev_b32 v61, 1, v60")
e(f"s_mov_b32 s{S_T1}, 12288")
e(f"v_mul_lo_u32 v60, v60, s{S_T1}")
e(f"v_lshl_add_u32 v{V_WQO}, v{Vc}, 4, v60")
e(f"v_add_u32 v{V_WQO+2}, 12416, v{V_WQO}")
e(f"v_add_u32 v62, 256, v{V_WQO}")
e(f"v_add_u32 v60, 12160, v{V_WQO}")
e(f"v_cndmask_b32 v{V_WQO+1}, v60, v62, s[{S_MC8}:{S_MC8+1}]")
hv = VM()
hv.issue(f"buffer_load_dwordx4 {vr(V_XW,4)}, v61, {srd(R_X)}, 0 offen")
hv.issue(f"buffer_load_dword v{V_XW+4}, v61, {srd(R_X)}, 0 offen offset:16")
hid = {}
for T in range(5):
    e(f"s_mov_b32 s{S_OFF}, {T*24576}")
    for j in range(3):
        hid[(T, j)] = hv.issue(f"buffer_load_dwordx4 {vr(RING0+4*(3*T+j),4)}, v{V_WQO+j}, {srd(R_WQ)}, s{S_OFF} offen{WNT}")
e(f"s_cmp_lg_u32 s{S_H}, 0")
e("s_cbranch_scc1 L_h1pre")
cm("H0: clears done -> arrive on the group counter (returning atomic, lane 0)")
e(f"s_lshl_b32 s{S_T1}, s{S_HEAD}, 3")
e(f"v_mov_b32 v10, s{S_T1}")
e(f"v_cmp_eq_u32 vcc, 0, v{V_LANE}")
e("v_mov_b32 v13, 1")
e("s_nop 0")
e(f"v_cndmask_b32 v10, v63, v10, vcc")
e("s_waitcnt lgkmcnt(0)")
e("s_barrier")
e("s_waitcnt vmcnt(17)")
e(f"buffer_atomic_add v13, v10, {srd(R_DBG)}, 0 offen sc0")
e(f"v_mov_b32 v12, {LDS_FLAG2}")
e("v_mov_b32 v14, 1")
e("ds_write_b32 v12, v14")
e("s_branch L_hq")
lab("L_h1pre")
cm("H1: gate/up partial loads: lane (cq=l&7 <6, r8=l>>3), rows 80*split + 10*r8 + k")
MB = RING0 + 60
e(f"v_lshrrev_b32 v9, 3, v{V_LANE}")
e(f"v_mul_u32_u24 v9, 10, v9")
e(f"v_add_u32 v9, s{S_T0}, v9")
e(f"v_lshlrev_b32 v10, 1, v9")
e(f"v_mul_u32_u24 v9, 3072, v9")
e(f"v_and_b32 v11, 7, v{V_LANE}")
e(f"v_lshl_add_u32 v9, v11, 4, v9")
e(f"v_cmp_gt_u32 vcc, 6, v11")
e("s_nop 1")
e(f"v_cndmask_b32 v57, v63, v9, vcc")
e(f"buffer_load_dwordx4 v[12:15], v10, {srd(R_X)}, 0 offen")
e(f"buffer_load_dword v16, v10, {srd(R_X)}, 0 offen offset:16")
NPRE = 5
for k in range(NPRE):
    e(f"s_mov_b32 s{S_OFF}, {k*3072}")
    e(f"buffer_load_dwordx4 {vr(MB+8*k,4)}, v57, {srd(R_W1)}, s{S_OFF} offen{WNT}")
    e(f"buffer_load_dwordx4 {vr(MB+8*k+4,4)}, v57, {srd(R_W3)}, s{S_OFF} offen{WNT}")
e("s_barrier")
lab("L_hq")
hpX, hpY, hpM, ht0, ht1 = 4, 5, 6, 7, 9
for T in range(5):
    k = hv.n - 1 - hid[(T, 2)]
    lx = newlabel("hw")
    e(f"s_cmp_eq_u32 s{S_H}, 1")
    e(f"s_cbranch_scc1 {lx}a")
    e(f"s_waitcnt vmcnt({k+1})")
    e(f"s_branch {lx}b")
    lab(lx + "a")
    e(f"s_waitcnt vmcnt({k+2+2*NPRE})")
    lab(lx + "b")
    e(f"v_lshlrev_b32 v{hpX}, 16, v{V_XW+T}")
    e(f"v_and_b32 v{hpY}, s{S_HI}, v{V_XW+T}")
    e(f"v_cndmask_b32 v{hpM}, v{hpY}, v{hpX}, s[{S_MC8}:{S_MC8+1}]")
    for j, p in enumerate((hpX, hpM, hpY)):
        fma_tile(RING0 + 4 * (3 * T + j), p, V_ACC + 8 * j, ht0, ht1)
stamp(1, 4, 5)
swap_reduce(V_ACC, 24)
red24_to_lds(V_ACC, 4, 5, 6, 7, sreg=S_H)
e("s_waitcnt lgkmcnt(0)")
e(f"s_cmp_eq_u32 s{S_H}, 1")
e("s_cbranch_scc1 L_h1")
cm("---- H0: wait for H1's half, publish the WG partial, gather the 8 partials of the head ----")
e(f"v_mov_b32 v12, {LDS_FLAG}")
e(f"s_mov_b32 s{S_CNT}, {OPT['spin_cap']*8}")
lab("L_h0flag")
e("ds_read_b32 v14, v12")
e("s_waitcnt lgkmcnt(0)")
e("v_readfirstlane_b32 s30, v14")
e(f"s_sub_u32 s{S_CNT}, s{S_CNT}, 1")
e(f"s_cmp_eq_u32 s{S_CNT}, 0")
e("s_cbranch_scc1 L_h0go")
e("s_cmp_eq_u32 s30, 0")
e("s_cbranch_scc1 L_h0flag")
lab("L_h0go")
e(f"v_min_u32 v5, 752, v8")
e(f"ds_read_b128 v[20:23], v5 offset:{LDS_RED}")
e(f"ds_read_b128 v[24:27], v5 offset:{LDS_RED+768}")
e(f"ds_read_b128 v[28:31], v5 offset:{LDS_RED+1536}")
e(f"ds_read_b128 v[32:35], v5 offset:{LDS_RED+1536+768}")
e(f"s_mul_i32 s{S_T0}, s{S_LW}, {QB}")
e(f"s_add_u32 s{S_T0}, s{S_T0}, {WS_QBOX}")
e(f"v_add_u32 v9, s{S_T0}, v8")
e(f"v_cmp_gt_u32 s[{S_MSK}:{S_MSK+1}], 48, v{V_LANE}")
e("s_nop 1")
e(f"v_cndmask_b32 v9, v63, v9, s[{S_MSK}:{S_MSK+1}]")
e("s_waitcnt lgkmcnt(0)")
for i in range(4):
    e(f"v_add_f32 v{20+i}, v{20+i}, v{24+i}")
    e(f"v_add_f32 v{28+i}, v{28+i}, v{32+i}")
for i in range(4):
    e(f"v_add_f32 v{20+i}, v{20+i}, v{28+i}")
canon4(20, 12)
e(f"buffer_store_dwordx4 v[20:23], v9, {srd(R_WS)}, 0 offen sc1")
cm("---- H0: last arriver tells the 8 WGs of the head that every box is cleared ----")
e("s_waitcnt vmcnt(1)")
e("v_readfirstlane_b32 s30, v13")
e(f"s_mul_i32 s{S_T0}, s{S_HEAD}, {8*QB}")
e(f"s_add_u32 s{S_T0}, s{S_T0}, {WS_QBOX+1152}")
e("s_and_b32 s30, s30, 7")
e("s_cmp_lg_u32 s30, 7")
e("s_cbranch_scc1 L_h0nogo")
e(f"v_mul_u32_u24 v9, {QB}, v{V_LANE}")
e(f"v_add_u32 v9, s{S_T0}, v9")
e(f"v_cmp_gt_u32 vcc, 8, v{V_LANE}")
e("v_mov_b32 v12, 0")
e("s_nop 0")
e(f"v_cndmask_b32 v9, v63, v9, vcc")
e(f"buffer_store_dword v12, v9, {srd(R_WS)}, 0 offen sc1")
lab("L_h0nogo")
e(f"s_mul_i32 s{S_T0}, s{S_LW}, {QB}")
e(f"s_add_u32 s{S_T0}, s{S_T0}, {WS_QBOX+1152}")
e(f"v_mov_b32 v10, s{S_T0}")
e(f"buffer_load_dword v13, v10, {srd(R_WS)}, 0 offen sc1")
stamp(2, 4, 5)
e("s_waitcnt vmcnt(0)")
e(f"s_mov_b32 s{S_CNT}, {OPT['spin_cap']}")
lab("L_h0gospin")
e("v_readfirstlane_b32 s30, v13")
e(f"s_sub_u32 s{S_CNT}, s{S_CNT}, 1")
e(f"s_cmp_eq_u32 s{S_CNT}, 0")
e("s_cbranch_scc1 L_h0godone")
e("s_cmp_lg_u32 s30, -1")
e("s_cbranch_scc1 L_h0godone")
e(f"s_sleep {OPT['sleep']}")
e(f"buffer_load_dword v13, v10, {srd(R_WS)}, 0 offen sc1")
e("s_waitcnt vmcnt(0)")
e("s_branch L_h0gospin")
lab("L_h0godone")
stamp(3, 4, 5)
e(f"s_mul_i32 s{S_T0}, s{S_HEAD}, {8*QB}")
e(f"s_add_u32 s{S_T0}, s{S_T0}, {WS_QBOX}")
e(f"v_add_u32 v9, s{S_T0}, v8")
e(f"v_cndmask_b32 v9, v63, v9, s[{S_MSK}:{S_MSK+1}]")
poll_quads([RING0 + 4 * j for j in range(8)], 9, [QB * j for j in range(8)], 7)
for stp in (1, 2, 4):
    for j in range(0, 8, 2 * stp):
        for i in range(4):
            e(f"v_add_f32 v{RING0+4*j+i}, v{RING0+4*j+i}, v{RING0+4*(j+stp)+i}")
e(f"v_cvt_pk_bf16_f32 v20, v{RING0}, v{RING0+1}")
e(f"v_cvt_pk_bf16_f32 v21, v{RING0+2}, v{RING0+3}")
e(f"v_lshlrev_b32 v5, 3, v{V_LANE}")
e(f"s_and_saveexec_b64 s[{S_EX}:{S_EX+1}], s[{S_MSK}:{S_MSK+1}]")
e(f"ds_write_b64 v5, v[20:21] offset:{LDS_QBF}")
e(f"s_mov_b64 exec, s[{S_EX}:{S_EX+1}]")
e("s_waitcnt lgkmcnt(0)")
stamp(4, 4, 5)
e("s_barrier")
e("s_branch " + ("L_fin" if OPT["stamps"] else "L_end"))

lab("L_h1")
e(f"v_mov_b32 v9, {LDS_FLAG}")
e("v_mov_b32 v10, 1")
e("ds_write_b32 v9, v10")
cm("---- H1: gate/up partial over this WG's 80 rows ----")
for k in range(NPRE, 10):
    e(f"s_mov_b32 s{S_OFF}, {k*3072}")
    r = RING0 + 8 * (k - NPRE)
    e(f"buffer_load_dwordx4 {vr(r,4)}, v57, {srd(R_W1)}, s{S_OFF} offen{WNT}")
    e(f"buffer_load_dwordx4 {vr(r+4,4)}, v57, {srd(R_W3)}, s{S_OFF} offen{WNT}")
MA = V_ACC
for i in range(16):
    e(f"v_mov_b32 v{MA+i}, 0")
for k in range(10):
    e(f"s_waitcnt vmcnt({18-2*k})")
    if k % 2 == 0:
        e(f"v_lshlrev_b32 v5, 16, v{12+k//2}")
    else:
        e(f"v_and_b32 v5, s{S_HI}, v{12+k//2}")
    r = MB + 8 * k if k < NPRE else RING0 + 8 * (k - NPRE)
    fma_tile(r, 5, MA, 6, 7)
    fma_tile(r + 4, 5, MA + 8, 6, 7)
swap_reduce(MA, 16)
e("s_nop 1")
for i in range(4):
    e(f"v_add_f32_dpp v{MA+i}, v{MA+i}, v{MA+i} row_ror:8 row_mask:0xf bank_mask:0xf")
canon4(MA, 12)
cm("store at qbox + 768 + (g>>1)*192 + cq*32 + (g&1)*16 for (l&15)<6")
e(f"v_lshrrev_b32 v5, 5, v{V_LANE}")
e(f"v_mul_u32_u24 v5, 192, v5")
e(f"v_bfe_u32 v6, v{V_LANE}, 4, 1")
e(f"v_lshl_add_u32 v5, v6, 4, v5")
e(f"v_and_b32 v6, 15, v{V_LANE}")
e(f"v_lshl_add_u32 v5, v6, 5, v5")
e(f"s_mul_i32 s{S_T0}, s{S_LW}, {QB}")
e(f"s_add_u32 s{S_T0}, s{S_T0}, {WS_QBOX+768}")
e(f"v_add_u32 v5, s{S_T0}, v5")
e(f"v_cmp_gt_u32 vcc, 6, v6")
e("s_nop 1")
e(f"v_cndmask_b32 v5, v63, v5, vcc")
cm("H0's clear of this box must have completed")
e(f"v_mov_b32 v6, {LDS_FLAG2}")
e(f"s_mov_b32 s{S_CNT}, {OPT['spin_cap']*8}")
lab("L_h1flag")
e("ds_read_b32 v7, v6")
e("s_waitcnt lgkmcnt(0)")
e("v_readfirstlane_b32 s30, v7")
e(f"s_sub_u32 s{S_CNT}, s{S_CNT}, 1")
e(f"s_cmp_eq_u32 s{S_CNT}, 0")
e("s_cbranch_scc1 L_h1st")
e("s_cmp_eq_u32 s30, 0")
e("s_cbranch_scc1 L_h1flag")
lab("L_h1st")
e(f"buffer_store_dwordx4 v[{MA}:{MA+3}], v5, {srd(R_WS)}, 0 offen sc1")
cm("gate logit operands: lane l owns elements 10l..10l+9")
e(f"v_mul_u32_u24 v4, 20, v{V_LANE}")
e(f"buffer_load_dwordx4 v[44:47], v4, {srd(R_X)}, 0 offen")
e(f"buffer_load_dword v48, v4, {srd(R_X)}, 0 offen offset:16")
e(f"buffer_load_dwordx4 v[52:55], v4, {srd(R_GW)}, 0 offen")
e(f"buffer_load_dword v56, v4, {srd(R_GW)}, 0 offen offset:16")
stamp(2, 4, 5)
e("s_waitcnt lgkmcnt(0)")
e("s_barrier")
cm("slice counter: this WG's out2 slot is cleared (H0 drained the clears before barrier #1)")
e(f"s_lshl_b32 s{S_T0}, s{S_SPLIT}, 5")
e(f"s_add_u32 s{S_T0}, s{S_T0}, 4")
e(f"v_mov_b32 v10, s{S_T0}")
e(f"v_cmp_eq_u32 vcc, 0, v{V_LANE}")
e("v_mov_b32 v12, 1")
e("s_nop 0")
e(f"v_cndmask_b32 v10, v63, v10, vcc")
e(f"buffer_atomic_add v12, v10, {srd(R_DBG)}, 0 offen")
cm("gather the 8 gate/up partials: lanes 0..11 gate quads, lanes 16..27 up quads")
e(f"v_and_b32 v5, 15, v{V_LANE}")
e(f"v_lshlrev_b32 v6, 4, v5")
e(f"v_lshrrev_b32 v7, 4, v{V_LANE}")
e(f"v_mul_u32_u24 v9, 192, v7")
e(f"v_add_u32 v6, v6, v9")
e(f"s_mul_i32 s{S_T0}, s{S_HEAD}, {8*QB}")
e(f"s_add_u32 s{S_T0}, s{S_T0}, {WS_QBOX+768}")
e(f"v_add_u32 v6, s{S_T0}, v6")
e(f"v_cmp_gt_u32 vcc, 12, v5")
e(f"v_cmp_gt_u32 s[{S_MSK}:{S_MSK+1}], 32, v{V_LANE}")
e(f"s_and_b64 vcc, vcc, s[{S_MSK}:{S_MSK+1}]")
e("s_nop 1")
e(f"v_cndmask_b32 v6, v63, v6, vcc")
poll_quads([RING0 + 4 * j for j in range(8)], 6, [QB * j for j in range(8)], 7)
for stp in (1, 2, 4):
    for j in range(0, 8, 2 * stp):
        for i in range(4):
            e(f"v_add_f32 v{RING0+4*j+i}, v{RING0+4*j+i}, v{RING0+4*(j+stp)+i}")
G0 = RING0; U0 = RING0 + 4
for i in range(4):
    bf16_round(G0 + i)
for i in range(4):
    e(f"v_mov_b32 v{U0+i}, v{G0+i}")
e("s_nop 1")
for i in range(4):
    e(f"v_permlane16_swap_b32 v{G0+i}, v{U0+i}")
for i in range(4):
    e(f"v_mul_f32 v{20+i}, s{S_L2E}, v{G0+i}")
    e(f"v_sub_f32 v{20+i}, 0, v{20+i}")
    e(f"v_exp_f32 v{20+i}, v{20+i}")
    e("s_nop 0")
    e(f"v_add_f32 v{20+i}, 1.0, v{20+i}")
    e(f"v_rcp_f32 v{20+i}, v{20+i}")
    e("s_nop 0")
    e(f"v_mul_f32 v{20+i}, v{G0+i}, v{20+i}")
    bf16_round(20 + i)
    e(f"v_mul_f32 v{20+i}, v{20+i}, v{U0+i}")
    bf16_round(20 + i)
e(f"v_cmp_gt_u32 vcc, 12, v{V_LANE}")
e(f"s_and_saveexec_b64 s[{S_EX}:{S_EX+1}], vcc")
e(f"ds_write_b128 v8, v[20:23] offset:{LDS_H48}")
e(f"s_mov_b64 exec, s[{S_EX}:{S_EX+1}]")
cm("gate logit")
e("v_mov_b32 v20, 0")
for k in range(10):
    if k % 2 == 0:
        e(f"v_lshlrev_b32 v5, 16, v{44+k//2}")
        e(f"v_lshlrev_b32 v6, 16, v{52+k//2}")
    else:
        e(f"v_and_b32 v5, s{S_HI}, v{44+k//2}")
        e(f"v_and_b32 v6, s{S_HI}, v{52+k//2}")
    e("v_mul_f32 v6, v5, v6")
    bf16_round(6)
    e("v_add_f32 v20, v20, v6")
allgroups("v_add_f32", 20, 21)
for sh in (8, 4, 2, 1):
    e("s_nop 1")
    e(f"v_add_f32_dpp v20, v20, v20 row_ror:{sh} row_mask:0xf bank_mask:0xf")
bf16_round(20)
e(f"v_mul_f32 v22, s{S_L2E}, v20")
e("v_sub_f32 v22, 0, v22")
e("v_exp_f32 v22, v22")
e("s_nop 0")
e("v_add_f32 v22, 1.0, v22")
e("v_rcp_f32 v22, v22")
e("s_nop 0")
bf16_round(22)
e(f"v_mov_b32 v4, {LDS_HG+28}")
e("ds_write_b32 v4, v22")
e("s_waitcnt lgkmcnt(0)")
stamp(3, 4, 5)
e("s_barrier")
e("s_branch " + ("L_fin" if OPT["stamps"] else "L_end"))

if OPT["stamps"]:
    lab("L_fin")
    stamp(9, 4, 5)
    e("s_getreg_b32 s98, hwreg(HW_REG_XCC_ID)")
    e("v_mov_b32 v4, s98")
    e(f"ds_write_b32 v5, v4 offset:{LDS_STAMP+4*15}")
    e("s_waitcnt lgkmcnt(0)")
    e(f"v_and_b32 v4, 15, v{V_LANE}")
    e("v_lshlrev_b32 v4, 2, v4")
    e("v_add_u32 v5, s99, v4")
    e(f"ds_read_b32 v6, v5 offset:{LDS_STAMP}")
    e("s_lshl_b32 s98, s2, 10")
    e("s_add_u32 s98, s98, 0x100000")
    e("v_add_u32 v5, s98, v5")
    e("s_waitcnt lgkmcnt(0)")
    e(f"buffer_store_dword v6, v5, {srd(R_WS)}, 0 offen")
lab("L_end")
e("s_endpgm")
L.append('.section .rodata,"a"')
L.append(".p2align 6")
L.append(f".amdhsa_kernel {NAME}_kernel")
L.append(f"  .amdhsa_next_free_vgpr {NVGPR}")
L.append("  .amdhsa_next_free_sgpr 102")
L.append(f"  .amdhsa_accum_offset {NVGPR}")
L.append("  .amdhsa_group_segment_fixed_size 0")
L.append("  .amdhsa_kernarg_size 104")
L.append("  .amdhsa_user_sgpr_count 2")
L.append("  .amdhsa_user_sgpr_kernarg_segment_ptr 1")
L.append("  .amdhsa_system_sgpr_workgroup_id_x 1")
L.append("  .amdhsa_float_denorm_mode_32 3")
L.append(".end_amdhsa_kernel")
out = sys.argv[1] if len(sys.argv) > 1 else f"cdna_kernels/{NAME}.s"
open(out, "w").write("\n".join(L) + "\n")
print("wrote", out, len(L), "lines")
```

```python
import sys

NAME = "gated_mix__mha_block_cached__glu_gated_swiglu__decode"
HEADER = open(f"cdna_kernels/{NAME}.s.ref").read().split("; Override launch geometry")[0]

OPT = dict(
    w_nt=True,
    spin_cap=400000,
    sleep=1,
    stamps=0,
    depth=4,
    depth0=3,
    kv_nt=1,
    v_nt=-1,
    dot2=1,
    pool_ahead=3,
    F=14,
)
for a in sys.argv[2:]:
    k, v = a.split("=")
    OPT[k] = type(OPT[k])(int(v))


L = []
def e(s=""):
    L.append("    " + s if s and not s.endswith(":") else s)
def lab(s):
    L.append(s + ":")
def cm(s):
    L.append("    ; " + s)

P_X, P_K, P_V, P_WQ, P_WO, P_BX, P_W1, P_W3, P_W2, P_GW, P_OUT, P_DBG, P_WS = [4 + 2 * i for i in range(13)]
R_K, R_V, R_WQ, R_WO, R_W1, R_W3, R_W2, R_X, R_GW, R_OUT, R_DBG, R_WS = [32 + 4 * i for i in range(12)]
S_HEAD, S_SPLIT, S_WAVE, S_OFF, S_HI, S_L2E, S_SCALE, S_T0, S_T1, S_T2, S_CNT = 80, 81, 82, 83, 84, 85, 86, 87, 92, 93, 94
S_MC8 = 88
S_MSK = 90
S_EX = 96
S_F0, S_FOK = 14, 15
S_COL, S_NCC = 100, 101
def srd(r): return f"s[{r}:{r+3}]"

V_TID, V_KOFF, V_VOFF, V_LANE = 0, 1, 2, 3
V_SC = 4
V_ACC = 20
V_QF = 44
V_MACC = 60
pX, pY, pM, t0, t1 = 76, 77, 78, 79, 80
V_MAX, V_ML2, V_LS = 81, 82, 83
V_TWO, V_TWO2 = 84, 85
V_CLM, V_CLMO = 86, 87
V_T = 76
SRING0 = 88
NVGPR = 168
V_XW = 44
V_WQO = 54
RING0 = 64
def vr(a, n): return f"v[{a}:{a+n-1}]"
F = OPT["F"]
NPOOL = 1024 - 64 * F
S_FB = 3

LDS_RED = 0
LDS_STAT = 12288
LDS_MLPR = 12352
LDS_QBF = 12864
LDS_ZERO = 13248
LDS_HG = 13280
LDS_GATH = 13312
LDS_RED2 = 21504
LDS_RED3 = 29696
LDS_STAMP = 37888
LDS_TOTAL = 37888 + (640 if OPT["stamps"] else 0)

WS_OUT1 = 0
WS_OUT2 = 262144
WS_QBOX = WS_OUT2 + 8 * 32 * 1024
QB = 1408
WS_POOL = WS_QBOX + 256 * QB
WS_BYTES = WS_POOL + 32 * 128 if not OPT["stamps"] else (2 << 20)
LDS_H48 = LDS_MLPR
LDS_FLAG2 = LDS_HG + 20
LDS_FLAG = LDS_HG + 24
OOB = 0x80000000

class VM:
    def __init__(self): self.n = 0
    def issue(self, s):
        e(s); self.n += 1; return self.n - 1
    def wait(self, idx):
        k = self.n - 1 - idx
        assert k >= 0
        e(f"s_waitcnt vmcnt({min(k, 63)})")
vm = VM()

WNT = " nt" if OPT["w_nt"] else ""
_POL = {0: "", 1: " nt", 2: " sc1", 3: " sc0 sc1", 4: " sc1 nt", 5: " sc0"}
KNT = _POL[OPT["kv_nt"]]
VNT = _POL[OPT["v_nt"] if OPT["v_nt"] >= 0 else OPT["kv_nt"]]

def make_srd(r, p, off_s=None, nrec=None, nrec_s=None):
    if off_s is None:
        e(f"s_mov_b32 s{r}, s{p}")
        e(f"s_and_b32 s{r+1}, s{p+1}, 0xffff")
    else:
        e(f"s_add_u32 s{r}, s{p}, s{off_s}")
        e(f"s_addc_u32 s{r+1}, s{p+1}, 0")
        e(f"s_and_b32 s{r+1}, s{r+1}, 0xffff")
    if nrec_s is not None:
        e(f"s_sub_u32 s{r+2}, {nrec}, s{nrec_s}")
    else:
        e(f"s_mov_b32 s{r+2}, {nrec}")
    e(f"s_mov_b32 s{r+3}, 0x00020000")

def fma_tile(src, p, acc, t0, t1):
    for d in range(4):
        e(f"v_lshlrev_b32 v{t0}, 16, v{src+d}")
        e(f"v_and_b32 v{t1}, s{S_HI}, v{src+d}")
        e(f"v_fmac_f32 v{acc+2*d}, v{p}, v{t0}")
        e(f"v_fmac_f32 v{acc+2*d+1}, v{p}, v{t1}")

def dot_tile(src, phi, plo, acc, first):
    for d in range(4):
        if first:
            e(f"v_dot2_f32_bf16 v{acc+2*d}, v{src+d}, v{plo}, 0")
            e(f"v_dot2_f32_bf16 v{acc+2*d+1}, v{src+d}, v{phi}, 0")
        else:
            e(f"v_dot2c_f32_bf16 v{acc+2*d}, v{src+d}, v{plo}")
            e(f"v_dot2c_f32_bf16 v{acc+2*d+1}, v{src+d}, v{phi}")

def swap_reduce(acc, n):
    h = n // 2
    e("s_nop 1")
    for i in range(h):
        e(f"v_permlane32_swap_b32 v{acc+i}, v{acc+i+h}")
    for i in range(h):
        e(f"v_add_f32 v{acc+i}, v{acc+i}, v{acc+i+h}")
    q = h // 2
    e("s_nop 1")
    for i in range(q):
        e(f"v_permlane16_swap_b32 v{acc+i}, v{acc+i+q}")
    for i in range(q):
        e(f"v_add_f32 v{acc+i}, v{acc+i}, v{acc+i+q}")

def allgroups(op, v, t):
    e(f"v_mov_b32 v{t}, v{v}")
    e("s_nop 1")
    e(f"v_permlane32_swap_b32 v{v}, v{t}")
    e(f"{op} v{v}, v{v}, v{t}")
    e(f"v_mov_b32 v{t}, v{v}")
    e("s_nop 1")
    e(f"v_permlane16_swap_b32 v{v}, v{t}")
    e(f"{op} v{v}, v{v}, v{t}")

def red24_to_lds(acc, tA, tB, tC, tD, sreg=None):
    e(f"v_and_b32 v{tD}, 15, v{V_LANE}")
    e(f"v_lshlrev_b32 v{tD}, 5, v{tD}")
    e(f"s_mul_i32 s{S_T0}, s{S_WAVE if sreg is None else sreg}, 1536")
    e(f"v_add_u32 v{tD}, s{S_T0}, v{tD}")
    e(f"v_lshrrev_b32 v{tA}, 4, v{V_LANE}")
    e(f"v_mul_u32_u24 v{tA}, 6, v{tA}")
    for p in range(3):
        e(f"v_add_u32 v{tB}, {2*p}, v{tA}")
        e(f"v_lshrrev_b32 v{tC}, 3, v{tB}")
        e(f"v_lshl_add_u32 v{tC}, v{tC}, 9, v{tD}")
        e(f"v_and_b32 v{tB}, 7, v{tB}")
        e(f"v_lshl_add_u32 v{tC}, v{tB}, 2, v{tC}")
        e(f"ds_write_b64 v{tC}, v[{acc+2*p}:{acc+2*p+1}] offset:{LDS_RED}")

def canon4(r, t):
    e(f"v_mov_b32 v{t}, 0x7fc00000")
    for i in range(4):
        e(f"v_cmp_eq_u32 vcc, -1, v{r+i}")
        e("s_nop 1")
        e(f"v_cndmask_b32 v{r+i}, v{r+i}, v{t}, vcc")

def bf16_round(v, t=None):
    e(f"v_cvt_pk_bf16_f32 v{v}, v{v}, v{v}")
    e(f"v_lshlrev_b32 v{v}, 16, v{v}")

def stamp(k, ta, tb):
    if not OPT["stamps"]:
        return
    e("s_memrealtime s[98:99]")
    e("s_waitcnt lgkmcnt(0)")
    e(f"s_lshl_b32 s99, s{S_WAVE}, 6")
    e(f"v_mov_b32 v{ta}, s98")
    e(f"v_mov_b32 v{tb}, s99")
    e(f"ds_write_b32 v{tb}, v{ta} offset:{LDS_STAMP+4*k}")

_lbl = [0]
def newlabel(p):
    _lbl[0] += 1
    return f"L_{p}_{_lbl[0]}"

def spin_counter(lane_sel, target, vcnt, voff, hi=False):
    lo, done = newlabel("cspin"), newlabel("cdone")
    e(f"s_mov_b32 s{S_CNT}, {OPT['spin_cap']}")
    lab(lo)
    e(f"v_readlane_b32 s{S_T0}, v{vcnt}, {lane_sel}")
    e("s_nop 3")
    if hi:
        e(f"s_lshr_b32 s{S_T0}, s{S_T0}, 16")
    else:
        e(f"s_and_b32 s{S_T0}, s{S_T0}, 0xffff")
    e(f"s_cmp_ge_u32 s{S_T0}, {target}")
    e(f"s_cbranch_scc1 {done}")
    e(f"s_sub_u32 s{S_CNT}, s{S_CNT}, 1")
    e(f"s_cmp_eq_u32 s{S_CNT}, 0")
    e(f"s_cbranch_scc1 {done}")
    e("s_sleep 32")
    e(f"buffer_load_dword v{vcnt}, v{voff}, {srd(R_DBG)}, 0 offen sc1")
    e("s_waitcnt vmcnt(0)")
    e(f"s_branch {lo}")
    lab(done)

def poll_quads(regs, voff, offs, t):
    big = max(offs) > 4095
    lo, done = newlabel("poll"), newlabel("pdone")
    e(f"s_mov_b32 s{S_CNT}, {OPT['spin_cap']}")
    lab(lo)
    for r, o in zip(regs, offs):
        if big:
            e(f"s_mov_b32 s{S_OFF}, {o}")
            e(f"buffer_load_dwordx4 {vr(r,4)}, v{voff}, {srd(R_WS)}, s{S_OFF} offen sc1")
        else:
            e(f"buffer_load_dwordx4 {vr(r,4)}, v{voff}, {srd(R_WS)}, 0 offen offset:{o} sc1")
    e("s_waitcnt vmcnt(0)")
    first = True
    for r in regs:
        if first:
            e(f"v_max_u32 v{t}, v{r}, v{r+1}")
            first = False
        else:
            e(f"v_max3_u32 v{t}, v{t}, v{r}, v{r+1}")
        e(f"v_max3_u32 v{t}, v{t}, v{r+2}, v{r+3}")
    e(f"v_cmp_eq_u32 vcc, -1, v{t}")
    e("s_nop 4")
    e(f"s_cbranch_vccz {done}")
    e(f"s_sub_u32 s{S_CNT}, s{S_CNT}, 1")
    e(f"s_cmp_eq_u32 s{S_CNT}, 0")
    e(f"s_cbranch_scc1 {done}")
    e(f"s_sleep {OPT['sleep']}")
    e(f"s_branch {lo}")
    lab(done)

early_slots = [8, 12, 16, 20, 24, 28, 32, 36, 40]
ring_slots = list(range(SRING0, NVGPR, 4))
free_slots = early_slots + ring_slots
slot_of = {}
vmid = {}
def sl(kind, i): return slot_of[(kind, i)]
def issue(kind, i):
    free_slots.sort()
    slot_of[(kind, i)] = free_slots.pop(-1 if kind == "tw" else 0)
    r = sl(kind, i)
    n = (kind, i)
    if kind in ("k", "v"):
        T, j = divmod(i, 3)
        e(f"s_add_u32 s{S_OFF}, s{S_FB}, {T*3072}")
        vo, rr, pol = (V_KOFF, R_K, KNT) if kind == "k" else (V_VOFF, R_V, VNT)
        vmid[n] = vm.issue(f"buffer_load_dwordx4 {vr(r,4)}, v{vo}, {srd(rr)}, s{S_OFF} offen offset:{256*j}{pol}")
    elif kind == "tw":
        if i < 6:
            e(f"s_mov_b32 s{S_OFF}, {i*40960}")
            vmid[n] = vm.issue(f"buffer_load_dwordx4 {vr(r,4)}, v{V_TWO}, {srd(R_WO)}, s{S_OFF} offen{WNT}")
        else:
            e(f"s_mov_b32 s{S_OFF}, {(i-6)*40960}")
            vo = V_TWO2
            vmid[n] = vm.issue(f"buffer_load_dwordx4 {vr(r,4)}, v{vo}, {srd(R_W2)}, s{S_OFF} offen{WNT}")
def release(kind, idxs):
    for i in idxs:
        if slot_of[(kind, i)] in ring_slots:
            free_slots.append(slot_of[(kind, i)])
main = [("k", i) for i in range(3*F)] + [("v", i) for i in range(3*F-12)] + [("tw", i) for i in range(8)] + [("v", i) for i in range(3*F-12, 3*F)]
pos_of = {n: i for i, n in enumerate(main)}
st = dict(pos=0, landed=0)
D = OPT["depth"]
def can_issue():
    return st["pos"] < len(main) and bool(free_slots)
def wait_main(j):
    if st["landed"] <= j:
        vm.wait(vmid[main[j]])
        st["landed"] = j + 1
def paced_issue(d=None):
    d = D if d is None else d
    p = st["pos"]
    if p >= d:
        wait_main(p - d)
    issue(*main[p]); st["pos"] += 1

L.append(HEADER.rstrip("\n"))
L.append(f"; @launch grid=(256,1,1) block=(640,1,1) lds={LDS_TOTAL}")
L.append('.amdgcn_target "amdgcn-amd-amdhsa--gfx950"')
L.append(".text")
L.append(f".globl {NAME}_kernel")
L.append(".p2align 8")
L.append(f".type {NAME}_kernel,@function")
lab(f"{NAME}_kernel")
e("s_cmp_ge_u32 s2, 256")
e("s_cbranch_scc1 L_end")
e("s_load_dwordx16 s[4:19], s[0:1], 0")
e("s_load_dwordx8 s[20:27], s[0:1], 64")
e("s_load_dwordx2 s[28:29], s[0:1], 96")
cm("head = b>>3 ; split = b&7  (the 8 splits of a head sit on 8 different XCDs)")
e(f"s_lshr_b32 s{S_HEAD}, s2, 3")
e(f"s_and_b32 s{S_SPLIT}, s2, 7")
e(f"v_lshrrev_b32 v{V_T}, 6, v{V_TID}")
e(f"v_and_b32 v{V_LANE}, 63, v{V_TID}")
e(f"v_readfirstlane_b32 s{S_WAVE}, v{V_T}")
e(f"s_mov_b32 s{S_HI}, 0xffff0000")
e(f"s_mov_b32 s{S_L2E}, 0x3fb8aa3b")
e(f"s_mov_b32 s{S_SCALE}, 0x3d93cd3a")
Vc, Vg = 58, 59
e(f"v_and_b32 v{Vc}, 15, v{V_LANE}")
e(f"v_lshrrev_b32 v{Vg}, 4, v{V_LANE}")
e(f"v_cmp_gt_u32 s[{S_MC8}:{S_MC8+1}], 8, v{Vc}")
cm("K voffset = m*768 + g*64 + u*16 ; V voffset = g*768 + c*16 ; fixed part starts at (split*64F + w*8F)*384")
e(f"v_bfe_u32 v60, v{V_LANE}, 2, 2")
e(f"v_mul_u32_u24 v60, 768, v60")
e(f"v_lshl_add_u32 v60, v{Vg}, 6, v60")
e(f"v_and_b32 v61, 3, v{V_LANE}")
e(f"v_lshl_add_u32 v{V_KOFF}, v61, 4, v60")
e(f"v_mul_u32_u24 v60, 768, v{Vg}")
e(f"v_lshl_add_u32 v{V_VOFF}, v{Vc}, 4, v60")
e(f"s_lshl_b32 s{S_FB}, s{S_SPLIT}, 3")
e(f"s_add_u32 s{S_FB}, s{S_FB}, s{S_WAVE}")
e(f"s_mul_i32 s{S_FB}, s{S_FB}, {8*F*384}")
e("s_waitcnt lgkmcnt(0)")
cm("SRDs")
S_LW = 95
e(f"s_lshl_b32 s{S_LW}, s{S_HEAD}, 3")
e(f"s_add_u32 s{S_LW}, s{S_LW}, s{S_SPLIT}")
e(f"s_mul_i32 s{S_T1}, s{S_HEAD}, 3145728")
make_srd(R_K, P_K, S_T1, 3145728)
make_srd(R_V, P_V, S_T1, 3145728)
make_srd(R_X, P_X, None, 1280)
make_srd(R_GW, P_GW, None, 1280)
e(f"s_mul_i32 s{S_T1}, s{S_HEAD}, 384")
make_srd(R_WQ, P_WQ, S_T1, 640 * 12288, S_T1)
cm("mlp columns of this head: f0 = (head>>2)*192 + (head&3)*64, 64 of them (none if head&3==3)")
e(f"s_lshr_b32 s{S_F0}, s{S_HEAD}, 2")
e(f"s_mul_i32 s{S_F0}, s{S_F0}, 192")
e(f"s_and_b32 s{S_T1}, s{S_HEAD}, 3")
e(f"s_lshl_b32 s{S_T1}, s{S_T1}, 6")
e(f"s_add_u32 s{S_F0}, s{S_F0}, s{S_T1}")
e(f"s_cmp_eq_u32 s{S_T1}, 192")
e(f"s_cselect_b32 s{S_F0}, 0, s{S_F0}")
e(f"s_cselect_b32 s{S_FOK}, 0, 1")
e(f"s_lshl_b32 s{S_T1}, s{S_F0}, 1")
make_srd(R_W1, P_W1, S_T1, 640 * 3072, S_T1)
make_srd(R_W3, P_W3, S_T1, 640 * 3072, S_T1)
make_srd(R_WS, P_WS, None, WS_BYTES)
make_srd(R_DBG, P_DBG, None, 256)
make_srd(R_OUT, P_OUT, None, 1280)
e(f"s_mul_i32 s{S_T1}, s{S_HEAD}, {192*1280}")
cm("output column slice (128-B aligned): split%4==0 -> 128 columns, else 64; byte start (s>>2)*640 + {0,256,384,512}")
e(f"s_lshr_b32 s{S_COL}, s{S_SPLIT}, 2")
e(f"s_mul_i32 s{S_COL}, s{S_COL}, 640")
e(f"s_and_b32 s{S_T2}, s{S_SPLIT}, 3")
e(f"s_cmp_eq_u32 s{S_T2}, 0")
e(f"s_cselect_b32 s{S_NCC}, 16, 8")
e(f"s_lshl_b32 s{S_T2}, s{S_T2}, 7")
e(f"s_add_u32 s{S_T2}, s{S_T2}, 128")
e(f"s_cmp_eq_u32 s{S_NCC}, 16")
e(f"s_cselect_b32 s{S_T2}, 0, s{S_T2}")
e(f"s_add_u32 s{S_COL}, s{S_COL}, s{S_T2}")
e(f"s_mov_b32 s{S_T2}, s{S_COL}")
e(f"s_add_u32 s{S_T1}, s{S_T1}, s{S_T2}")
make_srd(R_WO, P_WO, S_T1, 6144 * 1280, S_T1)
e(f"s_mul_i32 s{S_T1}, s{S_F0}, 1280")
e(f"s_add_u32 s{S_T1}, s{S_T1}, s{S_T2}")
make_srd(R_W2, P_W2, S_T1, 1536 * 1280, S_T1)
stamp(0, 4, 5)
e(f"s_cmp_ge_u32 s{S_WAVE}, 8")
e("s_cbranch_scc1 L_helper")

cm("================= streaming waves =================")
cm("park K tiles until q is ready")
D0 = OPT["depth0"]
for _ in range(D0):
    paced_issue(D0)
e("s_barrier")
while can_issue() and st["pos"] < 3 * F:
    paced_issue(D0)
cm("tail weight voffsets: rgrp*1280 + cc*16 (cc<10)")
e(f"v_lshrrev_b32 v{V_T}, 4, v{V_LANE}")
e(f"s_lshl_b32 s{S_T0}, s{S_WAVE}, 2")
e(f"v_add_u32 v{V_T}, s{S_T0}, v{V_T}")
e(f"v_mul_u32_u24 v{V_T}, 1280, v{V_T}")
e(f"v_and_b32 v{V_T+1}, 15, v{V_LANE}")
e(f"v_lshl_add_u32 v{V_T}, v{V_T+1}, 4, v{V_T}")
e(f"v_mov_b32 v{V_T+2}, {OOB:#x}")
e(f"v_cmp_gt_u32 vcc, s{S_NCC}, v{V_T+1}")
e("s_nop 1")
e(f"v_cndmask_b32 v{V_TWO}, v{V_T+2}, v{V_T}, vcc")
e(f"s_cmp_eq_u32 s{S_FOK}, 1")
e(f"s_cselect_b64 vcc, vcc, 0")
e("s_nop 1")
e(f"v_cndmask_b32 v{V_TWO2}, v{V_T+2}, v{V_T}, vcc")
cm("pool ticket address (lane 0)")
e(f"s_lshl_b32 s{S_T0}, s{S_HEAD}, 7")
e(f"s_add_u32 s{S_T0}, s{S_T0}, {WS_POOL}")
e(f"v_mov_b32 v{V_CLMO}, s{S_T0}")
e(f"v_cmp_eq_u32 vcc, 0, v{V_LANE}")
e(f"v_mov_b32 v{V_CLM}, 1")
e("s_nop 0")
e(f"v_cndmask_b32 v{V_CLMO}, v{V_T+2}, v{V_CLMO}, vcc")
cm("q fragment addresses: g=l>>4,u=l&3 ; qo = g*64+u*16")
e(f"v_lshrrev_b32 v4, 4, v{V_LANE}")
e(f"v_and_b32 v5, 3, v{V_LANE}")
e(f"v_lshlrev_b32 v5, 4, v5")
e(f"v_lshl_add_u32 v5, v4, 6, v5")
e(f"v_add_u32 v5, {LDS_QBF}, v5")
e(f"v_mov_b32 v6, {LDS_ZERO}")
e(f"v_cmp_gt_u32 vcc, 32, v{V_LANE}")
e(f"v_add_u32 v7, 256, v5")
e(f"v_subrev_u32 v4, 128, v5")
e(f"v_cndmask_b32 v7, v6, v7, vcc")
e(f"v_cndmask_b32 v4, v4, v6, vcc")
e(f"v_mov_b32 v{V_MAX}, 0xff800000")
stamp(1, 76, 77)
e("s_barrier")
B0, B1L, B1H, B2 = V_QF, V_QF + 4, V_QF + 8, V_QF + 12
e(f"ds_read_b128 {vr(B0,4)}, v5")
e(f"ds_read_b128 {vr(B1L,4)}, v7")
e(f"ds_read_b128 {vr(B1H,4)}, v4")
e(f"ds_read_b128 {vr(B2,4)}, v5 offset:128")
e("s_waitcnt lgkmcnt(0)")
stamp(2, 76, 77)

def mfma_tile(r0, r1, r2, aX, aY):
    e(f"v_mfma_f32_16x16x32_bf16 {vr(aX,4)}, {vr(r0,4)}, {vr(B0,4)}, 0")
    e(f"v_mfma_f32_16x16x32_bf16 {vr(aY,4)}, {vr(r1,4)}, {vr(B1H,4)}, 0")
    e(f"v_mfma_f32_16x16x32_bf16 {vr(aX,4)}, {vr(r1,4)}, {vr(B1L,4)}, {vr(aX,4)}")
    e(f"v_mfma_f32_16x16x32_bf16 {vr(aY,4)}, {vr(r2,4)}, {vr(B2,4)}, {vr(aY,4)}")
def score_pair(aX, aY, dst, tx, ty):
    e(f"v_mov_b32_dpp v{tx}, v{aX} quad_perm:[0,0,0,0] row_mask:0xf bank_mask:0xf")
    e(f"v_mov_b32_dpp v{ty}, v{aY} quad_perm:[0,0,0,0] row_mask:0xf bank_mask:0xf")
    for r in (1, 2, 3):
        e(f"v_add_f32_dpp v{tx}, v{aX+r}, v{tx} quad_perm:[{r},{r},{r},{r}] row_mask:0xf bank_mask:0xf")
        e(f"v_add_f32_dpp v{ty}, v{aY+r}, v{ty} quad_perm:[{r},{r},{r},{r}] row_mask:0xf bank_mask:0xf")
    e(f"v_cvt_pk_bf16_f32 v{tx}, v{tx}, v{ty}")
    e(f"v_and_b32 v{ty}, s{S_HI}, v{tx}")
    e(f"v_lshlrev_b32 v{tx}, 16, v{tx}")
    e(f"v_mul_f32 v{tx}, s{S_SCALE}, v{tx}")
    e(f"v_mul_f32 v{ty}, s{S_SCALE}, v{ty}")
    e(f"v_cvt_pk_bf16_f32 v{dst}, v{tx}, v{ty}")
    e(f"v_and_b32 v{ty}, s{S_HI}, v{dst}")
    e(f"v_lshlrev_b32 v{tx}, 16, v{dst}")
def post_scores(T):
    aX = V_MACC + 8 * (T & 1)
    score_pair(aX, aX + 4, V_SC + T, t0, t1)
    e(f"v_max3_f32 v{V_MAX}, v{V_MAX}, v{t0}, v{t1}")
def consume_k(T):
    n0 = 3 * T
    aX = V_MACC + 8 * (T & 1)
    cm(f"K tile {T}")
    mfma_tile(sl('k', n0), sl('k', n0 + 1), sl('k', n0 + 2), aX, aX + 4)
    release("k", range(n0, n0 + 3))
    if T > 0:
        post_scores(T - 1)
    else:
        e("s_nop 7")
    if T == F - 1:
        e("s_nop 1")
        post_scores(F - 1)
        stamp(3, 76, 77)
        cm("wave max")
        allgroups("v_max_f32", V_MAX, t0)
        e(f"v_mul_f32 v{V_ML2}, s{S_L2E}, v{V_MAX}")
        e(f"v_mov_b32 v{V_LS}, 0")
        for i in range(24):
            e(f"v_mov_b32 v{V_ACC+i}, 0")
def pv_tile(r0, r1, r2):
    e(f"v_cndmask_b32 v{pM}, v{pY}, v{pX}, s[{S_MC8}:{S_MC8+1}]")
    e(f"v_add_f32 v{V_LS}, v{V_LS}, v{pX}")
    e(f"v_add_f32 v{V_LS}, v{V_LS}, v{pY}")
    for j, (r, p) in enumerate(((r0, pX), (r1, pM), (r2, pY))):
        fma_tile(r, p, V_ACC + 8 * j, t0, t1)
def consume_v(T):
    n0 = 3 * T
    cm(f"V tile {T}")
    e(f"v_lshlrev_b32 v{pX}, 16, v{V_SC+T}")
    e(f"v_and_b32 v{pY}, s{S_HI}, v{V_SC+T}")
    e(f"v_fma_f32 v{pX}, v{pX}, s{S_L2E}, -v{V_ML2}")
    e(f"v_fma_f32 v{pY}, v{pY}, s{S_L2E}, -v{V_ML2}")
    e(f"v_exp_f32 v{pX}, v{pX}")
    e(f"v_exp_f32 v{pY}, v{pY}")
    e("s_nop 0")
    pv_tile(sl("v", n0), sl("v", n0 + 1), sl("v", n0 + 2))
    release("v", range(n0, n0 + 3))
tile = 0
claimed = False
while tile < 2 * F:
    last = pos_of[("k", 3 * tile + 2) if tile < F else ("v", 3 * (tile - F) + 2)]
    if can_issue():
        paced_issue()
        if st["pos"] == len(main) - 3 and NPOOL:
            cm("first pool ticket")
            vm.issue(f"buffer_atomic_add v{V_CLM}, v{V_CLMO}, {srd(R_WS)}, 0 offen sc0")
            claimed = True
    else:
        wait_main(last)
    if st["landed"] > last:
        if tile < F: consume_k(tile)
        else: consume_v(tile - F)
        tile += 1
assert st["pos"] == len(main)
stamp(10, 76, 77)
tws = sorted(slot_of[("tw", i)] for i in range(8))
assert tws == list(range(NVGPR - 32, NVGPR, 4)), tws
if NPOOL:
    assert claimed
    cm("==== pool tiles: claimed one at a time, online softmax per lane group ====")
    BUF = [[SRING0 + 4 * i for i in range(6)], [SRING0 + 24 + 4 * i for i in range(6)]]
    S_C = 30
    def pool_next(buf, lbl_none):
        e(f"v_readfirstlane_b32 s{S_C}, v{V_CLM}")
        e(f"v_mov_b32 v{V_CLM}, 1")
        e("s_nop 2")
        e(f"s_cmp_ge_u32 s{S_C}, {NPOOL}")
        e(f"s_cbranch_scc1 {lbl_none}")
        e(f"s_mul_i32 s{S_OFF}, s{S_C}, 3072")
        e(f"s_add_u32 s{S_OFF}, s{S_OFF}, {512*F*384}")
        e(f"buffer_atomic_add v{V_CLM}, v{V_CLMO}, {srd(R_WS)}, 0 offen sc0")
        for j in range(3):
            e(f"buffer_load_dwordx4 {vr(buf[j],4)}, v{V_KOFF}, {srd(R_K)}, s{S_OFF} offen offset:{256*j}{KNT}")
        for j in range(3):
            e(f"buffer_load_dwordx4 {vr(buf[3+j],4)}, v{V_VOFF}, {srd(R_V)}, s{S_OFF} offen offset:{256*j}{VNT}")
    def pool_front(buf):
        e("s_waitcnt vmcnt(3)")
        mfma_tile(buf[0], buf[1], buf[2], V_MACC, V_MACC + 4)
        e("s_nop 7")
        score_pair(V_MACC, V_MACC + 4, 4, pX, pY)
        e(f"v_max3_f32 v{t0}, v{V_MAX}, v{pX}, v{pY}")
        e(f"v_sub_f32 v{t1}, v{V_MAX}, v{t0}")
        e(f"v_mul_f32 v{t1}, s{S_L2E}, v{t1}")
        e(f"v_exp_f32 v{t1}, v{t1}")
        e(f"v_mov_b32 v{V_MAX}, v{t0}")
        e(f"v_mul_f32 v{V_ML2}, s{S_L2E}, v{t0}")
        e(f"v_fma_f32 v{pX}, v{pX}, s{S_L2E}, -v{V_ML2}")
        e(f"v_fma_f32 v{pY}, v{pY}, s{S_L2E}, -v{V_ML2}")
        e(f"v_exp_f32 v{pX}, v{pX}")
        e(f"v_exp_f32 v{pY}, v{pY}")
        e(f"v_mul_f32 v{V_LS}, v{V_LS}, v{t1}")
        for i in range(24):
            e(f"v_mul_f32 v{V_ACC+i}, v{V_ACC+i}, v{t1}")
        e(f"s_waitcnt vmcnt({OPT['pool_ahead']})")
    e("s_waitcnt vmcnt(0)")
    pool_next(BUF[0], "L_pool_done")
    lab("L_pool_loop")
    pool_front(BUF[0])
    pool_next(BUF[1], "L_pool_lastA")
    if OPT['pool_ahead']: e("s_waitcnt vmcnt(7)")
    pv_tile(*BUF[0][3:])
    pool_front(BUF[1])
    pool_next(BUF[0], "L_pool_lastB")
    if OPT['pool_ahead']: e("s_waitcnt vmcnt(7)")
    pv_tile(*BUF[1][3:])
    e("s_branch L_pool_loop")
    lab("L_pool_lastA")
    e("s_waitcnt vmcnt(0)")
    pv_tile(*BUF[0][3:])
    e("s_branch L_pool_done")
    lab("L_pool_lastB")
    e("s_waitcnt vmcnt(0)")
    pv_tile(*BUF[1][3:])
    lab("L_pool_done")
    cm("bring the 4 lane groups to a common max")
    e(f"v_mov_b32 v{pX}, v{V_MAX}")
    allgroups("v_max_f32", V_MAX, t0)
    e(f"v_sub_f32 v{t1}, v{pX}, v{V_MAX}")
    e(f"v_mul_f32 v{t1}, s{S_L2E}, v{t1}")
    e(f"v_exp_f32 v{t1}, v{t1}")
    e("s_nop 0")
    e(f"v_mul_f32 v{V_LS}, v{V_LS}, v{t1}")
    for i in range(24):
        e(f"v_mul_f32 v{V_ACC+i}, v{V_ACC+i}, v{t1}")
stamp(4, 76, 77)
V_CNT, V_CNTO = 16, 17
cm("slice counter (only the reducers look at it)")
e(f"s_lshl_b32 s{S_T0}, s{S_SPLIT}, 5")
e(f"s_add_u32 s{S_T0}, s{S_T0}, 4")
e(f"v_mov_b32 v{V_CNTO}, s{S_T0}")
e(f"buffer_load_dword v{V_CNT}, v{V_CNTO}, {srd(R_DBG)}, 0 offen sc1")
cm("==== T0: wave reduce ====")
swap_reduce(V_ACC, 24)
red24_to_lds(V_ACC, 4, 5, 6, 7)
allgroups("v_add_f32", V_LS, V_T)
e(f"s_lshl_b32 s{S_T0}, s{S_WAVE}, 3")
e(f"v_mov_b32 v4, s{S_T0}")
e(f"v_mov_b32 v6, v{V_MAX}")
e(f"v_mov_b32 v7, v{V_LS}")
e(f"ds_write_b64 v4, v[6:7] offset:{LDS_STAT}")
e("s_waitcnt lgkmcnt(0)")
e("s_barrier")

cm("==== T1: wave 0 combines the 8 waves and publishes ====")
e(f"s_lshl_b32 s{S_T1}, s{S_HEAD}, 3")
e(f"s_add_u32 s{S_T2}, s{S_T1}, s{S_SPLIT}")
e(f"s_cmp_lg_u32 s{S_WAVE}, 0")
e("s_cbranch_scc1 L_t1done")
e("v_mov_b32 v4, 0")
SB = SRING0
RB = 20
for w in range(4):
    e(f"ds_read_b128 {vr(SB+4*w,4)}, v4 offset:{LDS_STAT+16*w}")
e(f"v_lshlrev_b32 v5, 4, v{V_LANE}")
e(f"v_min_u32 v5, 752, v5")
for w in range(8):
    e(f"ds_read_b128 {vr(RB+8*w,4)}, v5 offset:{LDS_RED+1536*w}")
    e(f"ds_read_b128 {vr(RB+8*w+4,4)}, v5 offset:{LDS_RED+1536*w+768}")
e("s_waitcnt lgkmcnt(15)")
e(f"v_max3_f32 v6, v{SB}, v{SB+2}, v{SB+4}")
e(f"v_max3_f32 v6, v6, v{SB+6}, v{SB+8}")
e(f"v_max3_f32 v6, v6, v{SB+10}, v{SB+12}")
e(f"v_max_f32 v6, v6, v{SB+14}")
e(f"v_mul_f32 v7, s{S_L2E}, v6")
for w in range(8):
    e(f"v_fma_f32 v{SB+2*w}, v{SB+2*w}, s{S_L2E}, -v7")
for w in range(8):
    e(f"v_exp_f32 v{SB+2*w}, v{SB+2*w}")
e("s_nop 0")
e(f"v_mul_f32 v7, v{SB}, v{SB+1}")
for w in range(1, 8):
    e(f"v_fmac_f32 v7, v{SB+2*w}, v{SB+2*w+1}")
e("s_waitcnt lgkmcnt(0)")
for w in range(8):
    for i in range(4):
        e(f"v_add_f32 v{RB+8*w+i}, v{RB+8*w+i}, v{RB+8*w+4+i}")
    for i in range(4):
        if w == 0:
            e(f"v_mul_f32 v{8+i}, v{SB}, v{RB+i}")
        else:
            e(f"v_fmac_f32 v{8+i}, v{SB+2*w}, v{RB+8*w+i}")
cm("lane48: (M,L,0,0) ; lanes>=49: 0")
e(f"v_cmp_lt_u32 vcc, 47, v{V_LANE}")
e("s_nop 1")
for i in range(4):
    e(f"v_cndmask_b32 v{8+i}, v{8+i}, v4, vcc")
e(f"v_cmp_eq_u32 vcc, 48, v{V_LANE}")
e("s_nop 1")
e("v_cndmask_b32 v8, v8, v6, vcc")
e("v_cndmask_b32 v9, v9, v7, vcc")
canon4(8, 12)
e(f"s_lshl_b32 s{S_T0}, s{S_T2}, 10")
e(f"v_lshlrev_b32 v5, 4, v{V_LANE}")
e(f"v_add_u32 v5, s{S_T0}, v5")
e(f"buffer_store_dwordx4 v[8:11], v5, {srd(R_WS)}, 0 offen sc1")
lab("L_t1done")
stamp(5, 4, 5)
cm("all waves: wave j gathers outbox j of this head")
e(f"s_add_u32 s{S_T0}, s{S_T1}, s{S_WAVE}")
e(f"s_lshl_b32 s{S_T0}, s{S_T0}, 10")
e(f"v_lshlrev_b32 v5, 4, v{V_LANE}")
e(f"v_add_u32 v6, s{S_T0}, v5")
cm("(addresses for T3 while waiting)")
e(f"s_lshl_b32 s{S_T0}, s{S_WAVE}, 10")
e(f"v_add_u32 v13, s{S_T0}, v5")
e(f"v_lshrrev_b32 v5, 4, v{V_LANE}")
e(f"s_lshl_b32 s{S_T0}, s{S_WAVE}, 2")
e(f"v_add_u32 v5, s{S_T0}, v5")
e(f"v_and_b32 v14, 15, v{V_LANE}")
e(f"v_min_u32 v14, 5, v14")
e(f"v_lshl_add_u32 v14, v14, 5, v5")
e(f"v_lshlrev_b32 v14, 2, v14")
e("v_lshlrev_b32 v7, 2, v5")
e(f"ds_read_b32 v44, v7 offset:{LDS_H48}")
e(f"ds_read_b32 v45, v7 offset:{LDS_H48+128}")
e("v_mov_b32 v4, 0")
GA = 52
cm("b part of the GEMV slice (h @ w2) does not depend on the gather")
e("s_waitcnt lgkmcnt(0)")
e("v_lshrrev_b32 v74, 16, v44")
e("v_lshrrev_b32 v75, 16, v45")
if OPT["dot2"]:
    dot_tile(sl("tw", 6), 44, 74, GA + 8, True)
    dot_tile(sl("tw", 7), 45, 75, GA + 8, False)
else:
    for i in range(8):
        e(f"v_mov_b32 v{GA+8+i}, 0")
    for k in range(2):
        fma_tile(sl("tw", 6 + k), 44 + k, GA + 8, 74, 75)
poll_quads([8], 6, [0], 7)
stamp(6, 15, 12)
e(f"ds_write_b128 v13, v[8:11] offset:{LDS_GATH}")
e("s_waitcnt lgkmcnt(0)")
e("s_barrier")

cm("==== T3: combine splits, output GEMV slice ====")
for j in range(8):
    e(f"ds_read_b64 v[{20+2*j}:{21+2*j}], v4 offset:{LDS_GATH+1024*j+768}")
for j in range(8):
    e(f"ds_read_b32 v{36+j}, v14 offset:{LDS_GATH+1024*j}")
e("s_waitcnt lgkmcnt(8)")
e("v_max3_f32 v6, v20, v22, v24")
e("v_max3_f32 v6, v6, v26, v28")
e("v_max3_f32 v6, v6, v30, v32")
e("v_max_f32 v6, v6, v34")
e(f"v_mul_f32 v7, s{S_L2E}, v6")
for j in range(8):
    e(f"v_fma_f32 v{20+2*j}, v{20+2*j}, s{S_L2E}, -v7")
for j in range(8):
    e(f"v_exp_f32 v{20+2*j}, v{20+2*j}")
e("s_waitcnt lgkmcnt(0)")
e("v_mul_f32 v7, v20, v21")
e("v_mul_f32 v8, v20, v36")
for j in range(1, 8):
    e(f"v_fmac_f32 v7, v{20+2*j}, v{21+2*j}")
    e(f"v_fmac_f32 v8, v{20+2*j}, v{36+j}")
e("v_rcp_f32 v7, v7")
e("s_nop 0")
e("v_mul_f32 v8, v8, v7")
bf16_round(8)
e("v_lshrrev_b32 v9, 16, v8")
e("s_nop 0")
for k in range(6):
    e(f"v_mov_b32_dpp v{46+k}, v8 row_newbcast:{k} row_mask:0xf bank_mask:0xf")
if OPT["dot2"]:
    for k in range(6):
        e(f"v_mov_b32_dpp v{68+k}, v9 row_newbcast:{k} row_mask:0xf bank_mask:0xf")
    for k in range(6):
        dot_tile(sl("tw", k), 46 + k, 68 + k, GA, k == 0)
    e("s_nop 1")
else:
    for i in range(8):
        e(f"v_mov_b32 v{GA+i}, 0")
    for k in range(6):
        fma_tile(sl("tw", k), 46 + k, GA, 4, 5)
swap_reduce(GA, 16)
cm("RED2[w] + (g>>1)*512 + cc*32 + (g&1)*16")
e(f"v_lshrrev_b32 v5, 5, v{V_LANE}")
e(f"v_mul_u32_u24 v5, 512, v5")
e(f"v_bfe_u32 v6, v{V_LANE}, 4, 1")
e(f"v_lshl_add_u32 v5, v6, 4, v5")
e(f"v_and_b32 v6, 15, v{V_LANE}")
e(f"v_lshl_add_u32 v5, v6, 5, v5")
e(f"s_mul_i32 s{S_T0}, s{S_WAVE}, 1024")
e(f"v_add_u32 v5, s{S_T0}, v5")
e(f"ds_write_b128 v5, v[{GA}:{GA+3}] offset:{LDS_RED2}")
e("s_waitcnt lgkmcnt(0)")
e("s_barrier")

cm("==== T4: wave 0 publishes the slice partial ====")
e(f"s_cmp_lg_u32 s{S_WAVE}, 0")
e("s_cbranch_scc1 L_t4done")
e(f"v_lshlrev_b32 v5, 4, v{V_LANE}")
for w in range(8):
    e(f"ds_read_b128 {vr(RB+4*w,4)}, v5 offset:{LDS_RED2+1024*w}")
e("s_waitcnt lgkmcnt(0)")
for st in (1, 2, 4):
    for w in range(0, 8, 2 * st):
        for i in range(4):
            e(f"v_add_f32 v{RB+4*w+i}, v{RB+4*w+i}, v{RB+4*(w+st)+i}")
canon4(RB, 12)
e(f"s_lshl_b32 s{S_T0}, s{S_SPLIT}, 5")
e(f"s_add_u32 s{S_T0}, s{S_T0}, s{S_HEAD}")
e(f"s_mul_i32 s{S_T0}, s{S_T0}, 1024")
e(f"s_add_u32 s{S_T0}, s{S_T0}, {WS_OUT2}")
e(f"v_add_u32 v5, s{S_T0}, v5")
e(f"v_mov_b32 v6, {OOB:#x}")
e(f"v_cmp_gt_u32 vcc, 64, v{V_LANE}")
e("s_nop 1")
e(f"v_cndmask_b32 v5, v6, v5, vcc")
e(f"buffer_store_dwordx4 {vr(RB,4)}, v5, {srd(R_WS)}, 0 offen sc1")
lab("L_t4done")

stamp(7, 4, 5)
cm("==== T5: reducer WGs (head == 4*split) ====")
e(f"s_lshl_b32 s{S_T0}, s{S_SPLIT}, 2")
e(f"s_cmp_lg_u32 s{S_T0}, s{S_HEAD}")
e("s_cbranch_scc1 " + ("L_fin" if OPT["stamps"] else "L_end"))
e("s_waitcnt vmcnt(0)")
spin_counter(0, 32, V_CNT, V_CNTO)
e(f"s_lshl_b32 s{S_T0}, s{S_SPLIT}, 5")
e(f"s_lshl_b32 s{S_T1}, s{S_WAVE}, 2")
e(f"s_add_u32 s{S_T0}, s{S_T0}, s{S_T1}")
e(f"s_mul_i32 s{S_T0}, s{S_T0}, 1024")
e(f"s_add_u32 s{S_T0}, s{S_T0}, {WS_OUT2}")
e(f"v_lshlrev_b32 v5, 4, v{V_LANE}")
e(f"v_add_u32 v7, s{S_T0}, v5")
e(f"v_mov_b32 v6, {OOB:#x}")
e(f"v_cmp_gt_u32 vcc, 64, v{V_LANE}")
e("s_nop 1")
e(f"v_cndmask_b32 v7, v6, v7, vcc")
poll_quads([20, 24, 28, 32], 7, [0, 1024, 2048, 3072], 8)
stamp(8, 4, 12)
for i in range(4):
    e(f"v_add_f32 v{20+i}, v{20+i}, v{24+i}")
    e(f"v_add_f32 v{28+i}, v{28+i}, v{32+i}")
for i in range(4):
    e(f"v_add_f32 v{20+i}, v{20+i}, v{28+i}")
e(f"s_mul_i32 s{S_T0}, s{S_WAVE}, 1024")
e(f"v_add_u32 v5, s{S_T0}, v5")
e(f"v_cmp_gt_u32 vcc, 64, v{V_LANE}")
e(f"s_and_saveexec_b64 s[{S_EX}:{S_EX+1}], vcc")
e(f"ds_write_b128 v5, v[20:23] offset:{LDS_RED3}")
e(f"s_mov_b64 exec, s[{S_EX}:{S_EX+1}]")
e("s_waitcnt lgkmcnt(0)")
e("s_barrier")
e(f"s_cmp_gt_u32 s{S_WAVE}, 1")
e("s_cbranch_scc1 " + ("L_fin" if OPT["stamps"] else "L_end"))
e(f"v_min_u32 v5, 127, v{V_TID}")
e(f"v_lshlrev_b32 v5, 2, v5")
for w in range(8):
    e(f"ds_read_b32 v{20+w}, v5 offset:{LDS_RED3+1024*w}")
    e(f"ds_read_b32 v{28+w}, v5 offset:{LDS_RED3+1024*w+512}")
e("v_mov_b32 v4, 0")
e(f"ds_read_b32 v36, v4 offset:{LDS_HG+28}")
e("s_waitcnt lgkmcnt(0)")
for base in (20, 28):
    for a, b in ((0, 1), (2, 3), (4, 5), (6, 7), (0, 2), (4, 6), (0, 4)):
        e(f"v_add_f32 v{base+a}, v{base+a}, v{base+b}")
bf16_round(20)
bf16_round(28)
e("v_mul_f32 v20, v36, v20")
bf16_round(20)
e("v_sub_f32 v21, 1.0, v36")
bf16_round(21)
e("v_mul_f32 v21, v21, v28")
bf16_round(21)
e("v_add_f32 v20, v20, v21")
e("v_cvt_pk_bf16_f32 v20, v20, v20")
e(f"s_lshl_b32 s{S_T0}, s{S_NCC}, 3")
e(f"v_lshlrev_b32 v5, 1, v{V_TID}")
e(f"v_add_u32 v5, s{S_COL}, v5")
e(f"v_mov_b32 v6, {OOB:#x}")
e(f"v_cmp_gt_u32 vcc, s{S_T0}, v{V_TID}")
e("s_nop 1")
e(f"v_cndmask_b32 v5, v6, v5, vcc")
e(f"buffer_store_short v20, v5, {srd(R_OUT)}, 0 offen")
e("s_branch " + ("L_fin" if OPT["stamps"] else "L_end"))

L_SAVE = L
cm("================= helper waves (8: H0, 9: H1) =================")
lab("L_helper")
S_H = 31
e(f"s_sub_u32 s{S_H}, s{S_WAVE}, 8")
e(f"v_mov_b32 v63, {OOB:#x}")
e(f"v_lshlrev_b32 v8, 4, v{V_LANE}")
e("v_mov_b32 v57, v63")
for i in range(24):
    e(f"v_mov_b32 v{V_ACC+i}, 0")
cm("H0: clear own boxes to the sentinel (out1, out2 slot, qbox); zero LDS flag and zero block")
e(f"s_cmp_lg_u32 s{S_H}, 0")
e("s_cbranch_scc1 L_noclear")
e("v_mov_b32 v4, -1"); e("v_mov_b32 v5, -1"); e("v_mov_b32 v6, -1"); e("v_mov_b32 v7, -1")
e(f"s_mul_i32 s{S_T1}, s{S_LW}, {QB}")
e(f"s_add_u32 s{S_T1}, s{S_T1}, {WS_QBOX}")
e(f"v_add_u32 v11, s{S_T1}, v8")
e(f"buffer_store_dwordx4 v[4:7], v11, {srd(R_WS)}, 0 offen sc1")
e(f"v_cmp_gt_u32 vcc, 17, v{V_LANE}")
e("s_nop 1")
e(f"v_cndmask_b32 v11, v63, v11, vcc")
e(f"buffer_store_dwordx4 v[4:7], v11, {srd(R_WS)}, 0 offen offset:1024 sc1")
e(f"s_lshl_b32 s{S_T1}, s{S_LW}, 10")
e(f"v_add_u32 v9, s{S_T1}, v8")
e(f"buffer_store_dwordx4 v[4:7], v9, {srd(R_WS)}, 0 offen sc1")
e(f"s_lshl_b32 s{S_T1}, s{S_SPLIT}, 5")
e(f"s_add_u32 s{S_T1}, s{S_T1}, s{S_HEAD}")
e(f"s_mul_i32 s{S_T1}, s{S_T1}, 1024")
e(f"s_add_u32 s{S_T1}, s{S_T1}, {WS_OUT2}")
e(f"v_add_u32 v10, s{S_T1}, v8")
e(f"v_cmp_gt_u32 vcc, 64, v{V_LANE}")
e("s_nop 1")
e(f"v_cndmask_b32 v10, v63, v10, vcc")
e(f"buffer_store_dwordx4 v[4:7], v10, {srd(R_WS)}, 0 offen sc1")
cm("split 0 zeroes the pool ticket counter of the head")
e(f"s_lshl_b32 s{S_T1}, s{S_HEAD}, 7")
e(f"s_add_u32 s{S_T1}, s{S_T1}, {WS_POOL}")
e(f"s_cmp_eq_u32 s{S_SPLIT}, 0")
e(f"s_cselect_b32 s{S_T1}, s{S_T1}, {OOB:#x}")
e(f"v_mov_b32 v12, s{S_T1}")
e(f"v_cmp_eq_u32 vcc, 0, v{V_LANE}")
e("s_nop 1")
e(f"v_cndmask_b32 v12, v63, v12, vcc")
e(f"buffer_store_dword v{V_ACC}, v12, {srd(R_WS)}, 0 offen sc1")
e(f"v_mov_b32 v12, {LDS_ZERO}")
e(f"ds_write_b128 v12, v[{V_ACC}:{V_ACC+3}]")
e(f"v_mov_b32 v12, {LDS_FLAG2}")
e(f"ds_write_b32 v12, v{V_ACC}")
e(f"ds_write_b32 v12, v{V_ACC} offset:4")
lab("L_noclear")
cm("wq rows: row0 = 80*split + 20g + 10h ; pairs T=0..4")
e(f"s_mul_i32 s{S_T0}, s{S_SPLIT}, 80")
e(f"s_mul_i32 s{S_T1}, s{S_H}, 10")
e(f"s_add_u32 s{S_T1}, s{S_T0}, s{S_T1}")
e(f"v_mul_u32_u24 v60, 20, v{Vg}")
e(f"v_add_u32 v60, s{S_T1}, v60")
e(f"v_lshlrev_b32 v61, 1, v60")
e(f"s_mov_b32 s{S_T1}, 12288")
e(f"v_mul_lo_u32 v60, v60, s{S_T1}")
e(f"v_lshl_add_u32 v{V_WQO}, v{Vc}, 4, v60")
e(f"v_add_u32 v{V_WQO+2}, 12416, v{V_WQO}")
e(f"v_add_u32 v62, 256, v{V_WQO}")
e(f"v_add_u32 v60, 12160, v{V_WQO}")
e(f"v_cndmask_b32 v{V_WQO+1}, v60, v62, s[{S_MC8}:{S_MC8+1}]")
hv = VM()
hv.issue(f"buffer_load_dwordx4 {vr(V_XW,4)}, v61, {srd(R_X)}, 0 offen")
hv.issue(f"buffer_load_dword v{V_XW+4}, v61, {srd(R_X)}, 0 offen offset:16")
hid = {}
for T in range(5):
    e(f"s_mov_b32 s{S_OFF}, {T*24576}")
    for j in range(3):
        hid[(T, j)] = hv.issue(f"buffer_load_dwordx4 {vr(RING0+4*(3*T+j),4)}, v{V_WQO+j}, {srd(R_WQ)}, s{S_OFF} offen{WNT}")
e(f"s_cmp_lg_u32 s{S_H}, 0")
e("s_cbranch_scc1 L_h1pre")
cm("H0: clears done -> arrive on the group counter (returning atomic, lane 0)")
e(f"s_lshl_b32 s{S_T1}, s{S_HEAD}, 3")
e(f"v_mov_b32 v10, s{S_T1}")
e(f"v_cmp_eq_u32 vcc, 0, v{V_LANE}")
e("v_mov_b32 v13, 1")
e("s_nop 0")
e(f"v_cndmask_b32 v10, v63, v10, vcc")
e("s_waitcnt lgkmcnt(0)")
e("s_barrier")
e("s_waitcnt vmcnt(17)")
e(f"buffer_atomic_add v13, v10, {srd(R_DBG)}, 0 offen sc0")
e(f"v_mov_b32 v12, {LDS_FLAG2}")
e("v_mov_b32 v14, 1")
e("ds_write_b32 v12, v14")
e("s_branch L_hq")
lab("L_h1pre")
cm("H1: gate/up partial loads: lane (cq=l&7 <6, r8=l>>3), rows 80*split + 10*r8 + k")
MB = RING0 + 60
e(f"v_lshrrev_b32 v9, 3, v{V_LANE}")
e(f"v_mul_u32_u24 v9, 10, v9")
e(f"v_add_u32 v9, s{S_T0}, v9")
e(f"v_lshlrev_b32 v10, 1, v9")
e(f"v_mul_u32_u24 v9, 3072, v9")
e(f"v_and_b32 v11, 7, v{V_LANE}")
e(f"v_lshl_add_u32 v9, v11, 4, v9")
e(f"s_cmp_eq_u32 s{S_FOK}, 1")
e("s_cselect_b64 vcc, -1, 0")
e("s_nop 1")
e(f"v_cndmask_b32 v57, v63, v9, vcc")
e(f"buffer_load_dwordx4 v[12:15], v10, {srd(R_X)}, 0 offen")
e(f"buffer_load_dword v16, v10, {srd(R_X)}, 0 offen offset:16")
NPRE = 5
for k in range(NPRE):
    e(f"s_mov_b32 s{S_OFF}, {k*3072}")
    e(f"buffer_load_dwordx4 {vr(MB+8*k,4)}, v57, {srd(R_W1)}, s{S_OFF} offen{WNT}")
    e(f"buffer_load_dwordx4 {vr(MB+8*k+4,4)}, v57, {srd(R_W3)}, s{S_OFF} offen{WNT}")
e("s_barrier")
lab("L_hq")
hpX, hpY, hpM, ht0, ht1 = 4, 5, 6, 7, 9
for T in range(5):
    k = hv.n - 1 - hid[(T, 2)]
    lx = newlabel("hw")
    e(f"s_cmp_eq_u32 s{S_H}, 1")
    e(f"s_cbranch_scc1 {lx}a")
    e(f"s_waitcnt vmcnt({k+1})")
    e(f"s_branch {lx}b")
    lab(lx + "a")
    e(f"s_waitcnt vmcnt({k+2+2*NPRE})")
    lab(lx + "b")
    e(f"v_lshlrev_b32 v{hpX}, 16, v{V_XW+T}")
    e(f"v_and_b32 v{hpY}, s{S_HI}, v{V_XW+T}")
    e(f"v_cndmask_b32 v{hpM}, v{hpY}, v{hpX}, s[{S_MC8}:{S_MC8+1}]")
    for j, p in enumerate((hpX, hpM, hpY)):
        fma_tile(RING0 + 4 * (3 * T + j), p, V_ACC + 8 * j, ht0, ht1)
stamp(1, 4, 5)
swap_reduce(V_ACC, 24)
red24_to_lds(V_ACC, 4, 5, 6, 7, sreg=S_H)
e("s_waitcnt lgkmcnt(0)")
e(f"s_cmp_eq_u32 s{S_H}, 1")
e("s_cbranch_scc1 L_h1")
cm("---- H0: wait for H1's half, publish the WG partial, gather the 8 partials of the head ----")
e(f"v_mov_b32 v12, {LDS_FLAG}")
e(f"s_mov_b32 s{S_CNT}, {OPT['spin_cap']*8}")
lab("L_h0flag")
e("ds_read_b32 v14, v12")
e("s_waitcnt lgkmcnt(0)")
e("v_readfirstlane_b32 s30, v14")
e(f"s_sub_u32 s{S_CNT}, s{S_CNT}, 1")
e(f"s_cmp_eq_u32 s{S_CNT}, 0")
e("s_cbranch_scc1 L_h0go")
e("s_cmp_eq_u32 s30, 0")
e("s_cbranch_scc1 L_h0flag")
lab("L_h0go")
e(f"v_min_u32 v5, 752, v8")
e(f"ds_read_b128 v[20:23], v5 offset:{LDS_RED}")
e(f"ds_read_b128 v[24:27], v5 offset:{LDS_RED+768}")
e(f"ds_read_b128 v[28:31], v5 offset:{LDS_RED+1536}")
e(f"ds_read_b128 v[32:35], v5 offset:{LDS_RED+1536+768}")
e(f"s_mul_i32 s{S_T0}, s{S_LW}, {QB}")
e(f"s_add_u32 s{S_T0}, s{S_T0}, {WS_QBOX}")
e(f"v_add_u32 v9, s{S_T0}, v8")
e(f"v_cmp_gt_u32 s[{S_MSK}:{S_MSK+1}], 48, v{V_LANE}")
e("s_nop 1")
e(f"v_cndmask_b32 v9, v63, v9, s[{S_MSK}:{S_MSK+1}]")
e("s_waitcnt lgkmcnt(0)")
for i in range(4):
    e(f"v_add_f32 v{20+i}, v{20+i}, v{24+i}")
    e(f"v_add_f32 v{28+i}, v{28+i}, v{32+i}")
for i in range(4):
    e(f"v_add_f32 v{20+i}, v{20+i}, v{28+i}")
canon4(20, 12)
e(f"buffer_store_dwordx4 v[20:23], v9, {srd(R_WS)}, 0 offen sc1")
cm("---- H0: last arriver tells the 8 WGs of the head that every box is cleared ----")
e("s_waitcnt vmcnt(1)")
e("v_readfirstlane_b32 s30, v13")
e(f"s_mul_i32 s{S_T0}, s{S_HEAD}, {8*QB}")
e(f"s_add_u32 s{S_T0}, s{S_T0}, {WS_QBOX+1280}")
e("s_and_b32 s30, s30, 7")
e("s_cmp_lg_u32 s30, 7")
e("s_cbranch_scc1 L_h0nogo")
e(f"v_mul_u32_u24 v9, {QB}, v{V_LANE}")
e(f"v_add_u32 v9, s{S_T0}, v9")
e(f"v_cmp_gt_u32 vcc, 8, v{V_LANE}")
e("v_mov_b32 v12, 0")
e("s_nop 0")
e(f"v_cndmask_b32 v9, v63, v9, vcc")
e(f"buffer_store_dword v12, v9, {srd(R_WS)}, 0 offen sc1")
lab("L_h0nogo")
e(f"s_mul_i32 s{S_T0}, s{S_LW}, {QB}")
e(f"s_add_u32 s{S_T0}, s{S_T0}, {WS_QBOX+1280}")
e(f"v_mov_b32 v10, s{S_T0}")
e(f"buffer_load_dword v13, v10, {srd(R_WS)}, 0 offen sc1")
stamp(2, 4, 5)
e("s_waitcnt vmcnt(0)")
e(f"s_mov_b32 s{S_CNT}, {OPT['spin_cap']}")
lab("L_h0gospin")
e("v_readfirstlane_b32 s30, v13")
e(f"s_sub_u32 s{S_CNT}, s{S_CNT}, 1")
e(f"s_cmp_eq_u32 s{S_CNT}, 0")
e("s_cbranch_scc1 L_h0godone")
e("s_cmp_lg_u32 s30, -1")
e("s_cbranch_scc1 L_h0godone")
e(f"s_sleep {OPT['sleep']}")
e(f"buffer_load_dword v13, v10, {srd(R_WS)}, 0 offen sc1")
e("s_waitcnt vmcnt(0)")
e("s_branch L_h0gospin")
lab("L_h0godone")
stamp(3, 4, 5)
e(f"s_mul_i32 s{S_T0}, s{S_HEAD}, {8*QB}")
e(f"s_add_u32 s{S_T0}, s{S_T0}, {WS_QBOX}")
e(f"v_add_u32 v9, s{S_T0}, v8")
e(f"v_cndmask_b32 v9, v63, v9, s[{S_MSK}:{S_MSK+1}]")
poll_quads([RING0 + 4 * j for j in range(8)], 9, [QB * j for j in range(8)], 7)
for stp in (1, 2, 4):
    for j in range(0, 8, 2 * stp):
        for i in range(4):
            e(f"v_add_f32 v{RING0+4*j+i}, v{RING0+4*j+i}, v{RING0+4*(j+stp)+i}")
e(f"v_cvt_pk_bf16_f32 v20, v{RING0}, v{RING0+1}")
e(f"v_cvt_pk_bf16_f32 v21, v{RING0+2}, v{RING0+3}")
e(f"v_lshlrev_b32 v5, 3, v{V_LANE}")
e(f"s_and_saveexec_b64 s[{S_EX}:{S_EX+1}], s[{S_MSK}:{S_MSK+1}]")
e(f"ds_write_b64 v5, v[20:21] offset:{LDS_QBF}")
e(f"s_mov_b64 exec, s[{S_EX}:{S_EX+1}]")
e("s_waitcnt lgkmcnt(0)")
stamp(4, 4, 5)
e("s_barrier")
e("s_branch " + ("L_fin" if OPT["stamps"] else "L_end"))

lab("L_h1")
e(f"v_mov_b32 v9, {LDS_FLAG}")
e("v_mov_b32 v10, 1")
e("ds_write_b32 v9, v10")
cm("---- H1: gate/up partial over this WG's 80 rows ----")
for k in range(NPRE, 10):
    e(f"s_mov_b32 s{S_OFF}, {k*3072}")
    r = RING0 + 8 * (k - NPRE)
    e(f"buffer_load_dwordx4 {vr(r,4)}, v57, {srd(R_W1)}, s{S_OFF} offen{WNT}")
    e(f"buffer_load_dwordx4 {vr(r+4,4)}, v57, {srd(R_W3)}, s{S_OFF} offen{WNT}")
MA = V_ACC
for i in range(16):
    e(f"v_mov_b32 v{MA+i}, 0")
for k in range(10):
    e(f"s_waitcnt vmcnt({18-2*k})")
    if k % 2 == 0:
        e(f"v_lshlrev_b32 v5, 16, v{12+k//2}")
    else:
        e(f"v_and_b32 v5, s{S_HI}, v{12+k//2}")
    r = MB + 8 * k if k < NPRE else RING0 + 8 * (k - NPRE)
    fma_tile(r, 5, MA, 6, 7)
    fma_tile(r + 4, 5, MA + 8, 6, 7)
swap_reduce(MA, 16)
e("s_nop 1")
for i in range(4):
    e(f"v_add_f32_dpp v{MA+i}, v{MA+i}, v{MA+i} row_ror:8 row_mask:0xf bank_mask:0xf")
canon4(MA, 12)
cm("store at qbox + 768 + (g>>1)*256 + cq*32 + (g&1)*16 for (l&15)<8")
e(f"v_lshrrev_b32 v5, 5, v{V_LANE}")
e(f"v_mul_u32_u24 v5, 256, v5")
e(f"v_bfe_u32 v6, v{V_LANE}, 4, 1")
e(f"v_lshl_add_u32 v5, v6, 4, v5")
e(f"v_and_b32 v6, 15, v{V_LANE}")
e(f"v_lshl_add_u32 v5, v6, 5, v5")
e(f"s_mul_i32 s{S_T0}, s{S_LW}, {QB}")
e(f"s_add_u32 s{S_T0}, s{S_T0}, {WS_QBOX+768}")
e(f"v_add_u32 v5, s{S_T0}, v5")
e(f"v_cmp_gt_u32 vcc, 8, v6")
e("s_nop 1")
e(f"v_cndmask_b32 v5, v63, v5, vcc")
cm("H0's clear of this box must have completed")
e(f"v_mov_b32 v6, {LDS_FLAG2}")
e(f"s_mov_b32 s{S_CNT}, {OPT['spin_cap']*8}")
lab("L_h1flag")
e("ds_read_b32 v7, v6")
e("s_waitcnt lgkmcnt(0)")
e("v_readfirstlane_b32 s30, v7")
e(f"s_sub_u32 s{S_CNT}, s{S_CNT}, 1")
e(f"s_cmp_eq_u32 s{S_CNT}, 0")
e("s_cbranch_scc1 L_h1st")
e("s_cmp_eq_u32 s30, 0")
e("s_cbranch_scc1 L_h1flag")
lab("L_h1st")
e(f"buffer_store_dwordx4 v[{MA}:{MA+3}], v5, {srd(R_WS)}, 0 offen sc1")
cm("gate logit operands: lane l owns elements 10l..10l+9")
e(f"v_mul_u32_u24 v4, 20, v{V_LANE}")
e(f"buffer_load_dwordx4 v[44:47], v4, {srd(R_X)}, 0 offen")
e(f"buffer_load_dword v48, v4, {srd(R_X)}, 0 offen offset:16")
e(f"buffer_load_dwordx4 v[52:55], v4, {srd(R_GW)}, 0 offen")
e(f"buffer_load_dword v56, v4, {srd(R_GW)}, 0 offen offset:16")
stamp(2, 4, 5)
e("s_waitcnt lgkmcnt(0)")
e("s_barrier")
cm("slice counter: this WG's out2 slot is cleared (H0 drained the clears before barrier #1)")
e(f"s_lshl_b32 s{S_T0}, s{S_SPLIT}, 5")
e(f"s_add_u32 s{S_T0}, s{S_T0}, 4")
e(f"v_mov_b32 v10, s{S_T0}")
e(f"v_cmp_eq_u32 vcc, 0, v{V_LANE}")
e("v_mov_b32 v12, 1")
e("s_nop 0")
e(f"v_cndmask_b32 v10, v63, v10, vcc")
e(f"buffer_atomic_add v12, v10, {srd(R_DBG)}, 0 offen")
cm("gather the 8 gate/up partials: lanes 0..11 gate quads, lanes 16..27 up quads")
e(f"v_and_b32 v5, 15, v{V_LANE}")
e(f"v_lshlrev_b32 v6, 4, v5")
e(f"v_lshrrev_b32 v7, 4, v{V_LANE}")
e(f"v_mul_u32_u24 v9, 256, v7")
e(f"v_add_u32 v6, v6, v9")
e(f"s_mul_i32 s{S_T0}, s{S_HEAD}, {8*QB}")
e(f"s_add_u32 s{S_T0}, s{S_T0}, {WS_QBOX+768}")
e(f"v_add_u32 v6, s{S_T0}, v6")
e(f"v_cmp_gt_u32 vcc, 32, v{V_LANE}")
e("s_nop 1")
e(f"v_cndmask_b32 v6, v63, v6, vcc")
poll_quads([RING0 + 4 * j for j in range(8)], 6, [QB * j for j in range(8)], 7)
for stp in (1, 2, 4):
    for j in range(0, 8, 2 * stp):
        for i in range(4):
            e(f"v_add_f32 v{RING0+4*j+i}, v{RING0+4*j+i}, v{RING0+4*(j+stp)+i}")
G0 = RING0; U0 = RING0 + 4
for i in range(4):
    bf16_round(G0 + i)
for i in range(4):
    e(f"v_mov_b32 v{U0+i}, v{G0+i}")
e("s_nop 1")
for i in range(4):
    e(f"v_permlane16_swap_b32 v{G0+i}, v{U0+i}")
for i in range(4):
    e(f"v_mul_f32 v{20+i}, s{S_L2E}, v{G0+i}")
    e(f"v_sub_f32 v{20+i}, 0, v{20+i}")
    e(f"v_exp_f32 v{20+i}, v{20+i}")
    e("s_nop 0")
    e(f"v_add_f32 v{20+i}, 1.0, v{20+i}")
    e(f"v_rcp_f32 v{20+i}, v{20+i}")
    e("s_nop 0")
    e(f"v_mul_f32 v{20+i}, v{G0+i}, v{20+i}")
    bf16_round(20 + i)
    e(f"v_mul_f32 v{20+i}, v{20+i}, v{U0+i}")
    bf16_round(20 + i)
e(f"v_cmp_gt_u32 vcc, 16, v{V_LANE}")
e(f"s_and_saveexec_b64 s[{S_EX}:{S_EX+1}], vcc")
e(f"ds_write_b128 v8, v[20:23] offset:{LDS_H48}")
e(f"s_mov_b64 exec, s[{S_EX}:{S_EX+1}]")
cm("gate logit")
e("v_mov_b32 v20, 0")
for k in range(10):
    if k % 2 == 0:
        e(f"v_lshlrev_b32 v5, 16, v{44+k//2}")
        e(f"v_lshlrev_b32 v6, 16, v{52+k//2}")
    else:
        e(f"v_and_b32 v5, s{S_HI}, v{44+k//2}")
        e(f"v_and_b32 v6, s{S_HI}, v{52+k//2}")
    e("v_mul_f32 v6, v5, v6")
    bf16_round(6)
    e("v_add_f32 v20, v20, v6")
allgroups("v_add_f32", 20, 21)
for sh in (8, 4, 2, 1):
    e("s_nop 1")
    e(f"v_add_f32_dpp v20, v20, v20 row_ror:{sh} row_mask:0xf bank_mask:0xf")
bf16_round(20)
e(f"v_mul_f32 v22, s{S_L2E}, v20")
e("v_sub_f32 v22, 0, v22")
e("v_exp_f32 v22, v22")
e("s_nop 0")
e("v_add_f32 v22, 1.0, v22")
e("v_rcp_f32 v22, v22")
e("s_nop 0")
bf16_round(22)
e(f"v_mov_b32 v4, {LDS_HG+28}")
e("ds_write_b32 v4, v22")
e("s_waitcnt lgkmcnt(0)")
stamp(3, 4, 5)
e("s_barrier")
e("s_branch " + ("L_fin" if OPT["stamps"] else "L_end"))

if OPT["stamps"]:
    lab("L_fin")
    stamp(9, 4, 5)
    e("s_getreg_b32 s98, hwreg(HW_REG_XCC_ID)")
    e("v_mov_b32 v4, s98")
    e(f"ds_write_b32 v5, v4 offset:{LDS_STAMP+4*15}")
    e("s_waitcnt lgkmcnt(0)")
    e(f"v_and_b32 v4, 15, v{V_LANE}")
    e("v_lshlrev_b32 v4, 2, v4")
    e("v_add_u32 v5, s99, v4")
    e(f"ds_read_b32 v6, v5 offset:{LDS_STAMP}")
    e("s_lshl_b32 s98, s2, 10")
    e("s_add_u32 s98, s98, 0x100000")
    e("v_add_u32 v5, s98, v5")
    e("s_waitcnt lgkmcnt(0)")
    e(f"buffer_store_dword v6, v5, {srd(R_WS)}, 0 offen")
lab("L_end")
e("s_endpgm")
L.append('.section .rodata,"a"')
L.append(".p2align 6")
L.append(f".amdhsa_kernel {NAME}_kernel")
L.append(f"  .amdhsa_next_free_vgpr {NVGPR}")
L.append("  .amdhsa_next_free_sgpr 102")
L.append(f"  .amdhsa_accum_offset {NVGPR}")
L.append("  .amdhsa_group_segment_fixed_size 0")
L.append("  .amdhsa_kernarg_size 104")
L.append("  .amdhsa_user_sgpr_count 2")
L.append("  .amdhsa_user_sgpr_kernarg_segment_ptr 1")
L.append("  .amdhsa_system_sgpr_workgroup_id_x 1")
L.append("  .amdhsa_float_denorm_mode_32 3")
L.append(".end_amdhsa_kernel")
out = sys.argv[1] if len(sys.argv) > 1 else f"cdna_kernels/{NAME}.s"
open(out, "w").write("\n".join(L) + "\n")
print("wrote", out, len(L), "lines")
```

```python
import sys

NAME = "gated_mix__mha_block_cached__glu_gated_swiglu__decode"
HEADER = open(f"cdna_kernels/{NAME}.s.ref").read().split("; Override launch geometry")[0]

OPT = dict(
    w_nt=True,
    spin_cap=400000,
    sleep=1,
    stamps=0,
    depth=5,
    depth0=3,
    kv_nt=1,
    v_nt=-1,
    dot2=1,
    pool_ahead=3,
    F=14,
)
for a in sys.argv[2:]:
    k, v = a.split("=")
    OPT[k] = type(OPT[k])(int(v))


L = []
def e(s=""):
    L.append("    " + s if s and not s.endswith(":") else s)
def lab(s):
    L.append(s + ":")
def cm(s):
    L.append("    ; " + s)

P_X, P_K, P_V, P_WQ, P_WO, P_BX, P_W1, P_W3, P_W2, P_GW, P_OUT, P_DBG, P_WS = [4 + 2 * i for i in range(13)]
R_K, R_V, R_WQ, R_WO, R_W1, R_W3, R_W2, R_X, R_GW, R_OUT, R_DBG, R_WS = [32 + 4 * i for i in range(12)]
S_HEAD, S_SPLIT, S_WAVE, S_OFF, S_HI, S_L2E, S_SCALE, S_T0, S_T1, S_T2, S_CNT = 80, 81, 82, 83, 84, 85, 86, 87, 92, 93, 94
S_MC8 = 88
S_MSK = 90
S_EX = 96
S_F0, S_FOK = 14, 15
S_COL, S_NCC = 100, 101
def srd(r): return f"s[{r}:{r+3}]"

V_TID, V_KOFF, V_VOFF, V_LANE = 0, 1, 2, 3
V_SC = 4
V_ACC = 20
V_QF = 44
V_MACC = 60
pX, pY, pM, t0, t1 = 76, 77, 78, 79, 80
V_MAX, V_ML2, V_LS = 81, 82, 83
V_TWO, V_TWO2 = 84, 85
V_CLM, V_CLMO = 86, 87
V_T = 76
SRING0 = 88
NVGPR = 168
V_XW = 44
V_WQO = 54
RING0 = 64
def vr(a, n): return f"v[{a}:{a+n-1}]"
F = OPT["F"]
NPOOL = 1024 - 64 * F
S_FB = 3

LDS_RED = 0
LDS_STAT = 12288
LDS_MLPR = 12352
LDS_QBF = 12864
LDS_ZERO = 13248
LDS_HG = 13280
LDS_GATH = 13312
LDS_RED2 = 21504
LDS_RED3 = 29696
LDS_STAMP = 37888
LDS_TOTAL = 37888 + (640 if OPT["stamps"] else 0)

WS_OUT1 = 0
WS_OUT2 = 262144
WS_QBOX = WS_OUT2 + 8 * 32 * 1024
QB = 1408
WS_POOL = WS_QBOX + 256 * QB
WS_BYTES = WS_POOL + 32 * 128 if not OPT["stamps"] else (2 << 20)
LDS_H48 = LDS_MLPR
LDS_FLAG2 = LDS_HG + 20
LDS_FLAG = LDS_HG + 24
OOB = 0x80000000

class VM:
    def __init__(self): self.n = 0
    def issue(self, s):
        e(s); self.n += 1; return self.n - 1
    def wait(self, idx):
        k = self.n - 1 - idx
        assert k >= 0
        e(f"s_waitcnt vmcnt({min(k, 63)})")
vm = VM()

WNT = " nt" if OPT["w_nt"] else ""
_POL = {0: "", 1: " nt", 2: " sc1", 3: " sc0 sc1", 4: " sc1 nt", 5: " sc0"}
KNT = _POL[OPT["kv_nt"]]
VNT = _POL[OPT["v_nt"] if OPT["v_nt"] >= 0 else OPT["kv_nt"]]

def make_srd(r, p, off_s=None, nrec=None, nrec_s=None):
    if off_s is None:
        e(f"s_mov_b32 s{r}, s{p}")
        e(f"s_and_b32 s{r+1}, s{p+1}, 0xffff")
    else:
        e(f"s_add_u32 s{r}, s{p}, s{off_s}")
        e(f"s_addc_u32 s{r+1}, s{p+1}, 0")
        e(f"s_and_b32 s{r+1}, s{r+1}, 0xffff")
    if nrec_s is not None:
        e(f"s_sub_u32 s{r+2}, {nrec}, s{nrec_s}")
    else:
        e(f"s_mov_b32 s{r+2}, {nrec}")
    e(f"s_mov_b32 s{r+3}, 0x00020000")

def fma_tile(src, p, acc, t0, t1):
    for d in range(4):
        e(f"v_lshlrev_b32 v{t0}, 16, v{src+d}")
        e(f"v_and_b32 v{t1}, s{S_HI}, v{src+d}")
        e(f"v_fmac_f32 v{acc+2*d}, v{p}, v{t0}")
        e(f"v_fmac_f32 v{acc+2*d+1}, v{p}, v{t1}")

def dot_tile(src, phi, plo, acc, first):
    for d in range(4):
        if first:
            e(f"v_dot2_f32_bf16 v{acc+2*d}, v{src+d}, v{plo}, 0")
            e(f"v_dot2_f32_bf16 v{acc+2*d+1}, v{src+d}, v{phi}, 0")
        else:
            e(f"v_dot2c_f32_bf16 v{acc+2*d}, v{src+d}, v{plo}")
            e(f"v_dot2c_f32_bf16 v{acc+2*d+1}, v{src+d}, v{phi}")

def swap_reduce(acc, n):
    h = n // 2
    e("s_nop 1")
    for i in range(h):
        e(f"v_permlane32_swap_b32 v{acc+i}, v{acc+i+h}")
    for i in range(h):
        e(f"v_add_f32 v{acc+i}, v{acc+i}, v{acc+i+h}")
    q = h // 2
    e("s_nop 1")
    for i in range(q):
        e(f"v_permlane16_swap_b32 v{acc+i}, v{acc+i+q}")
    for i in range(q):
        e(f"v_add_f32 v{acc+i}, v{acc+i}, v{acc+i+q}")

def allgroups(op, v, t):
    e(f"v_mov_b32 v{t}, v{v}")
    e("s_nop 1")
    e(f"v_permlane32_swap_b32 v{v}, v{t}")
    e(f"{op} v{v}, v{v}, v{t}")
    e(f"v_mov_b32 v{t}, v{v}")
    e("s_nop 1")
    e(f"v_permlane16_swap_b32 v{v}, v{t}")
    e(f"{op} v{v}, v{v}, v{t}")

def red24_to_lds(acc, tA, tB, tC, tD, sreg=None):
    e(f"v_and_b32 v{tD}, 15, v{V_LANE}")
    e(f"v_lshlrev_b32 v{tD}, 5, v{tD}")
    e(f"s_mul_i32 s{S_T0}, s{S_WAVE if sreg is None else sreg}, 1536")
    e(f"v_add_u32 v{tD}, s{S_T0}, v{tD}")
    e(f"v_lshrrev_b32 v{tA}, 4, v{V_LANE}")
    e(f"v_mul_u32_u24 v{tA}, 6, v{tA}")
    for p in range(3):
        e(f"v_add_u32 v{tB}, {2*p}, v{tA}")
        e(f"v_lshrrev_b32 v{tC}, 3, v{tB}")
        e(f"v_lshl_add_u32 v{tC}, v{tC}, 9, v{tD}")
        e(f"v_and_b32 v{tB}, 7, v{tB}")
        e(f"v_lshl_add_u32 v{tC}, v{tB}, 2, v{tC}")
        e(f"ds_write_b64 v{tC}, v[{acc+2*p}:{acc+2*p+1}] offset:{LDS_RED}")

def canon4(r, t):
    e(f"v_mov_b32 v{t}, 0x7fc00000")
    for i in range(4):
        e(f"v_cmp_eq_u32 vcc, -1, v{r+i}")
        e("s_nop 1")
        e(f"v_cndmask_b32 v{r+i}, v{r+i}, v{t}, vcc")

def bf16_round(v, t=None):
    e(f"v_cvt_pk_bf16_f32 v{v}, v{v}, v{v}")
    e(f"v_lshlrev_b32 v{v}, 16, v{v}")

def stamp(k, ta, tb):
    if not OPT["stamps"]:
        return
    e("s_memrealtime s[98:99]")
    e("s_waitcnt lgkmcnt(0)")
    e(f"s_lshl_b32 s99, s{S_WAVE}, 6")
    e(f"v_mov_b32 v{ta}, s98")
    e(f"v_mov_b32 v{tb}, s99")
    e(f"ds_write_b32 v{tb}, v{ta} offset:{LDS_STAMP+4*k}")

_lbl = [0]
def newlabel(p):
    _lbl[0] += 1
    return f"L_{p}_{_lbl[0]}"

def spin_counter(lane_sel, target, vcnt, voff, hi=False):
    lo, done = newlabel("cspin"), newlabel("cdone")
    e(f"s_mov_b32 s{S_CNT}, {OPT['spin_cap']}")
    lab(lo)
    e(f"v_readlane_b32 s{S_T0}, v{vcnt}, {lane_sel}")
    e("s_nop 3")
    if hi:
        e(f"s_lshr_b32 s{S_T0}, s{S_T0}, 16")
    else:
        e(f"s_and_b32 s{S_T0}, s{S_T0}, 0xffff")
    e(f"s_cmp_ge_u32 s{S_T0}, {target}")
    e(f"s_cbranch_scc1 {done}")
    e(f"s_sub_u32 s{S_CNT}, s{S_CNT}, 1")
    e(f"s_cmp_eq_u32 s{S_CNT}, 0")
    e(f"s_cbranch_scc1 {done}")
    e("s_sleep 32")
    e(f"buffer_load_dword v{vcnt}, v{voff}, {srd(R_DBG)}, 0 offen sc1")
    e("s_waitcnt vmcnt(0)")
    e(f"s_branch {lo}")
    lab(done)

def poll_quads(regs, voff, offs, t):
    big = max(offs) > 4095
    lo, done = newlabel("poll"), newlabel("pdone")
    e(f"s_mov_b32 s{S_CNT}, {OPT['spin_cap']}")
    lab(lo)
    for r, o in zip(regs, offs):
        if big:
            e(f"s_mov_b32 s{S_OFF}, {o}")
            e(f"buffer_load_dwordx4 {vr(r,4)}, v{voff}, {srd(R_WS)}, s{S_OFF} offen sc1")
        else:
            e(f"buffer_load_dwordx4 {vr(r,4)}, v{voff}, {srd(R_WS)}, 0 offen offset:{o} sc1")
    e("s_waitcnt vmcnt(0)")
    first = True
    for r in regs:
        if first:
            e(f"v_max_u32 v{t}, v{r}, v{r+1}")
            first = False
        else:
            e(f"v_max3_u32 v{t}, v{t}, v{r}, v{r+1}")
        e(f"v_max3_u32 v{t}, v{t}, v{r+2}, v{r+3}")
    e(f"v_cmp_eq_u32 vcc, -1, v{t}")
    e("s_nop 4")
    e(f"s_cbranch_vccz {done}")
    e(f"s_sub_u32 s{S_CNT}, s{S_CNT}, 1")
    e(f"s_cmp_eq_u32 s{S_CNT}, 0")
    e(f"s_cbranch_scc1 {done}")
    e(f"s_sleep {OPT['sleep']}")
    e(f"s_branch {lo}")
    lab(done)

early_slots = [8, 12, 16, 20, 24, 28, 32, 36, 40]
ring_slots = list(range(SRING0, NVGPR, 4))
free_slots = early_slots + ring_slots
slot_of = {}
vmid = {}
def sl(kind, i): return slot_of[(kind, i)]
def issue(kind, i):
    free_slots.sort()
    slot_of[(kind, i)] = free_slots.pop(-1 if kind == "tw" else 0)
    r = sl(kind, i)
    n = (kind, i)
    if kind in ("k", "v"):
        T, j = divmod(i, 3)
        e(f"s_add_u32 s{S_OFF}, s{S_FB}, {T*3072}")
        vo, rr, pol = (V_KOFF, R_K, KNT) if kind == "k" else (V_VOFF, R_V, VNT)
        vmid[n] = vm.issue(f"buffer_load_dwordx4 {vr(r,4)}, v{vo}, {srd(rr)}, s{S_OFF} offen offset:{256*j}{pol}")
    elif kind == "tw":
        if i < 6:
            e(f"s_mov_b32 s{S_OFF}, {i*40960}")
            vmid[n] = vm.issue(f"buffer_load_dwordx4 {vr(r,4)}, v{V_TWO}, {srd(R_WO)}, s{S_OFF} offen{WNT}")
        else:
            e(f"s_mov_b32 s{S_OFF}, {(i-6)*40960}")
            vo = V_TWO2
            vmid[n] = vm.issue(f"buffer_load_dwordx4 {vr(r,4)}, v{vo}, {srd(R_W2)}, s{S_OFF} offen{WNT}")
def release(kind, idxs):
    for i in idxs:
        if slot_of[(kind, i)] in ring_slots:
            free_slots.append(slot_of[(kind, i)])
main = [("k", i) for i in range(3*F)] + [("v", i) for i in range(3*F-12)] + [("tw", i) for i in range(8)] + [("v", i) for i in range(3*F-12, 3*F)]
pos_of = {n: i for i, n in enumerate(main)}
st = dict(pos=0, landed=0)
D = OPT["depth"]
def can_issue():
    return st["pos"] < len(main) and bool(free_slots)
def wait_main(j):
    if st["landed"] <= j:
        vm.wait(vmid[main[j]])
        st["landed"] = j + 1
def paced_issue(d=None):
    d = D if d is None else d
    p = st["pos"]
    if p >= d:
        wait_main(p - d)
    issue(*main[p]); st["pos"] += 1

L.append(HEADER.rstrip("\n"))
L.append(f"; @launch grid=(256,1,1) block=(640,1,1) lds={LDS_TOTAL}")
L.append('.amdgcn_target "amdgcn-amd-amdhsa--gfx950"')
L.append(".text")
L.append(f".globl {NAME}_kernel")
L.append(".p2align 8")
L.append(f".type {NAME}_kernel,@function")
lab(f"{NAME}_kernel")
e("s_cmp_ge_u32 s2, 256")
e("s_cbranch_scc1 L_end")
e("s_load_dwordx16 s[4:19], s[0:1], 0")
e("s_load_dwordx8 s[20:27], s[0:1], 64")
e("s_load_dwordx2 s[28:29], s[0:1], 96")
cm("head = b>>3 ; split = b&7  (the 8 splits of a head sit on 8 different XCDs)")
e(f"s_lshr_b32 s{S_HEAD}, s2, 3")
e(f"s_and_b32 s{S_SPLIT}, s2, 7")
e(f"v_lshrrev_b32 v{V_T}, 6, v{V_TID}")
e(f"v_and_b32 v{V_LANE}, 63, v{V_TID}")
e(f"v_readfirstlane_b32 s{S_WAVE}, v{V_T}")
e(f"s_mov_b32 s{S_HI}, 0xffff0000")
e(f"s_mov_b32 s{S_L2E}, 0x3fb8aa3b")
e(f"s_mov_b32 s{S_SCALE}, 0x3d93cd3a")
Vc, Vg = 58, 59
e(f"v_and_b32 v{Vc}, 15, v{V_LANE}")
e(f"v_lshrrev_b32 v{Vg}, 4, v{V_LANE}")
e(f"v_cmp_gt_u32 s[{S_MC8}:{S_MC8+1}], 8, v{Vc}")
cm("K voffset = m*768 + g*64 + u*16 ; V voffset = g*768 + c*16 ; fixed part starts at (split*64F + w*8F)*384")
e(f"v_bfe_u32 v60, v{V_LANE}, 2, 2")
e(f"v_mul_u32_u24 v60, 768, v60")
e(f"v_lshl_add_u32 v60, v{Vg}, 6, v60")
e(f"v_and_b32 v61, 3, v{V_LANE}")
e(f"v_lshl_add_u32 v{V_KOFF}, v61, 4, v60")
e(f"v_mul_u32_u24 v60, 768, v{Vg}")
e(f"v_lshl_add_u32 v{V_VOFF}, v{Vc}, 4, v60")
e(f"s_lshl_b32 s{S_FB}, s{S_SPLIT}, 3")
e(f"s_add_u32 s{S_FB}, s{S_FB}, s{S_WAVE}")
e(f"s_mul_i32 s{S_FB}, s{S_FB}, {8*F*384}")
e("s_waitcnt lgkmcnt(0)")
cm("SRDs")
S_LW = 95
e(f"s_lshl_b32 s{S_LW}, s{S_HEAD}, 3")
e(f"s_add_u32 s{S_LW}, s{S_LW}, s{S_SPLIT}")
e(f"s_mul_i32 s{S_T1}, s{S_HEAD}, 3145728")
make_srd(R_K, P_K, S_T1, 3145728)
cm("streaming waves start their K stream right away")
e(f"s_cmp_ge_u32 s{S_WAVE}, 8")
e("s_cbranch_scc1 L_skipk")
D0 = OPT["depth0"]
for _ in range(D0):
    paced_issue(D0)
lab("L_skipk")
make_srd(R_V, P_V, S_T1, 3145728)
make_srd(R_X, P_X, None, 1280)
make_srd(R_GW, P_GW, None, 1280)
e(f"s_mul_i32 s{S_T1}, s{S_HEAD}, 384")
make_srd(R_WQ, P_WQ, S_T1, 640 * 12288, S_T1)
cm("mlp columns of this head: f0 = (head>>2)*192 + (head&3)*64, 64 of them (none if head&3==3)")
e(f"s_lshr_b32 s{S_F0}, s{S_HEAD}, 2")
e(f"s_mul_i32 s{S_F0}, s{S_F0}, 192")
e(f"s_and_b32 s{S_T1}, s{S_HEAD}, 3")
e(f"s_lshl_b32 s{S_T1}, s{S_T1}, 6")
e(f"s_add_u32 s{S_F0}, s{S_F0}, s{S_T1}")
e(f"s_cmp_eq_u32 s{S_T1}, 192")
e(f"s_cselect_b32 s{S_F0}, 0, s{S_F0}")
e(f"s_cselect_b32 s{S_FOK}, 0, 1")
e(f"s_lshl_b32 s{S_T1}, s{S_F0}, 1")
make_srd(R_W1, P_W1, S_T1, 640 * 3072, S_T1)
make_srd(R_W3, P_W3, S_T1, 640 * 3072, S_T1)
make_srd(R_WS, P_WS, None, WS_BYTES)
make_srd(R_DBG, P_DBG, None, 256)
make_srd(R_OUT, P_OUT, None, 1280)
e(f"s_mul_i32 s{S_T1}, s{S_HEAD}, {192*1280}")
cm("output column slice (128-B aligned): split%4==0 -> 128 columns, else 64; byte start (s>>2)*640 + {0,256,384,512}")
e(f"s_lshr_b32 s{S_COL}, s{S_SPLIT}, 2")
e(f"s_mul_i32 s{S_COL}, s{S_COL}, 640")
e(f"s_and_b32 s{S_T2}, s{S_SPLIT}, 3")
e(f"s_cmp_eq_u32 s{S_T2}, 0")
e(f"s_cselect_b32 s{S_NCC}, 16, 8")
e(f"s_lshl_b32 s{S_T2}, s{S_T2}, 7")
e(f"s_add_u32 s{S_T2}, s{S_T2}, 128")
e(f"s_cmp_eq_u32 s{S_NCC}, 16")
e(f"s_cselect_b32 s{S_T2}, 0, s{S_T2}")
e(f"s_add_u32 s{S_COL}, s{S_COL}, s{S_T2}")
e(f"s_mov_b32 s{S_T2}, s{S_COL}")
e(f"s_add_u32 s{S_T1}, s{S_T1}, s{S_T2}")
make_srd(R_WO, P_WO, S_T1, 6144 * 1280, S_T1)
e(f"s_mul_i32 s{S_T1}, s{S_F0}, 1280")
e(f"s_add_u32 s{S_T1}, s{S_T1}, s{S_T2}")
make_srd(R_W2, P_W2, S_T1, 1536 * 1280, S_T1)
stamp(0, 4, 5)
e(f"s_cmp_ge_u32 s{S_WAVE}, 8")
e("s_cbranch_scc1 L_helper")

cm("================= streaming waves =================")
cm("park K tiles until q is ready")
e("s_barrier")
while can_issue() and st["pos"] < 3 * F:
    paced_issue(D0)
cm("tail weight voffsets: rgrp*1280 + cc*16 (cc<10)")
e(f"v_lshrrev_b32 v{V_T}, 4, v{V_LANE}")
e(f"s_lshl_b32 s{S_T0}, s{S_WAVE}, 2")
e(f"v_add_u32 v{V_T}, s{S_T0}, v{V_T}")
e(f"v_mul_u32_u24 v{V_T}, 1280, v{V_T}")
e(f"v_and_b32 v{V_T+1}, 15, v{V_LANE}")
e(f"v_lshl_add_u32 v{V_T}, v{V_T+1}, 4, v{V_T}")
e(f"v_mov_b32 v{V_T+2}, {OOB:#x}")
e(f"v_cmp_gt_u32 vcc, s{S_NCC}, v{V_T+1}")
e("s_nop 1")
e(f"v_cndmask_b32 v{V_TWO}, v{V_T+2}, v{V_T}, vcc")
e(f"s_cmp_eq_u32 s{S_FOK}, 1")
e(f"s_cselect_b64 vcc, vcc, 0")
e("s_nop 1")
e(f"v_cndmask_b32 v{V_TWO2}, v{V_T+2}, v{V_T}, vcc")
cm("pool ticket address (lane 0)")
e(f"s_lshl_b32 s{S_T0}, s{S_HEAD}, 7")
e(f"s_add_u32 s{S_T0}, s{S_T0}, {WS_POOL}")
e(f"v_mov_b32 v{V_CLMO}, s{S_T0}")
e(f"v_cmp_eq_u32 vcc, 0, v{V_LANE}")
e(f"v_mov_b32 v{V_CLM}, 1")
e("s_nop 0")
e(f"v_cndmask_b32 v{V_CLMO}, v{V_T+2}, v{V_CLMO}, vcc")
cm("q fragment addresses: g=l>>4,u=l&3 ; qo = g*64+u*16")
e(f"v_lshrrev_b32 v4, 4, v{V_LANE}")
e(f"v_and_b32 v5, 3, v{V_LANE}")
e(f"v_lshlrev_b32 v5, 4, v5")
e(f"v_lshl_add_u32 v5, v4, 6, v5")
e(f"v_add_u32 v5, {LDS_QBF}, v5")
e(f"v_mov_b32 v6, {LDS_ZERO}")
e(f"v_cmp_gt_u32 vcc, 32, v{V_LANE}")
e(f"v_add_u32 v7, 256, v5")
e(f"v_subrev_u32 v4, 128, v5")
e(f"v_cndmask_b32 v7, v6, v7, vcc")
e(f"v_cndmask_b32 v4, v4, v6, vcc")
e(f"v_mov_b32 v{V_MAX}, 0xff800000")
stamp(1, 76, 77)
e("s_barrier")
B0, B1L, B1H, B2 = V_QF, V_QF + 4, V_QF + 8, V_QF + 12
e(f"ds_read_b128 {vr(B0,4)}, v5")
e(f"ds_read_b128 {vr(B1L,4)}, v7")
e(f"ds_read_b128 {vr(B1H,4)}, v4")
e(f"ds_read_b128 {vr(B2,4)}, v5 offset:128")
e("s_waitcnt lgkmcnt(0)")
stamp(2, 76, 77)

def mfma_tile(r0, r1, r2, aX, aY):
    e(f"v_mfma_f32_16x16x32_bf16 {vr(aX,4)}, {vr(r0,4)}, {vr(B0,4)}, 0")
    e(f"v_mfma_f32_16x16x32_bf16 {vr(aY,4)}, {vr(r1,4)}, {vr(B1H,4)}, 0")
    e(f"v_mfma_f32_16x16x32_bf16 {vr(aX,4)}, {vr(r1,4)}, {vr(B1L,4)}, {vr(aX,4)}")
    e(f"v_mfma_f32_16x16x32_bf16 {vr(aY,4)}, {vr(r2,4)}, {vr(B2,4)}, {vr(aY,4)}")
def score_pair(aX, aY, dst, tx, ty):
    e(f"v_mov_b32_dpp v{tx}, v{aX} quad_perm:[0,0,0,0] row_mask:0xf bank_mask:0xf")
    e(f"v_mov_b32_dpp v{ty}, v{aY} quad_perm:[0,0,0,0] row_mask:0xf bank_mask:0xf")
    for r in (1, 2, 3):
        e(f"v_add_f32_dpp v{tx}, v{aX+r}, v{tx} quad_perm:[{r},{r},{r},{r}] row_mask:0xf bank_mask:0xf")
        e(f"v_add_f32_dpp v{ty}, v{aY+r}, v{ty} quad_perm:[{r},{r},{r},{r}] row_mask:0xf bank_mask:0xf")
    e(f"v_cvt_pk_bf16_f32 v{tx}, v{tx}, v{ty}")
    e(f"v_and_b32 v{ty}, s{S_HI}, v{tx}")
    e(f"v_lshlrev_b32 v{tx}, 16, v{tx}")
    e(f"v_mul_f32 v{tx}, s{S_SCALE}, v{tx}")
    e(f"v_mul_f32 v{ty}, s{S_SCALE}, v{ty}")
    e(f"v_cvt_pk_bf16_f32 v{dst}, v{tx}, v{ty}")
    e(f"v_and_b32 v{ty}, s{S_HI}, v{dst}")
    e(f"v_lshlrev_b32 v{tx}, 16, v{dst}")
def post_scores(T):
    aX = V_MACC + 8 * (T & 1)
    score_pair(aX, aX + 4, V_SC + T, t0, t1)
    e(f"v_max3_f32 v{V_MAX}, v{V_MAX}, v{t0}, v{t1}")
def consume_k(T):
    n0 = 3 * T
    aX = V_MACC + 8 * (T & 1)
    cm(f"K tile {T}")
    mfma_tile(sl('k', n0), sl('k', n0 + 1), sl('k', n0 + 2), aX, aX + 4)
    release("k", range(n0, n0 + 3))
    if T > 0:
        post_scores(T - 1)
    else:
        e("s_nop 7")
    if T == F - 1:
        e("s_nop 1")
        post_scores(F - 1)
        stamp(3, 76, 77)
        cm("wave max")
        allgroups("v_max_f32", V_MAX, t0)
        e(f"v_mul_f32 v{V_ML2}, s{S_L2E}, v{V_MAX}")
        e(f"v_mov_b32 v{V_LS}, 0")
        for i in range(24):
            e(f"v_mov_b32 v{V_ACC+i}, 0")
def pv_tile(r0, r1, r2):
    e(f"v_cndmask_b32 v{pM}, v{pY}, v{pX}, s[{S_MC8}:{S_MC8+1}]")
    e(f"v_add_f32 v{V_LS}, v{V_LS}, v{pX}")
    e(f"v_add_f32 v{V_LS}, v{V_LS}, v{pY}")
    for j, (r, p) in enumerate(((r0, pX), (r1, pM), (r2, pY))):
        fma_tile(r, p, V_ACC + 8 * j, t0, t1)
def consume_v(T):
    n0 = 3 * T
    cm(f"V tile {T}")
    e(f"v_lshlrev_b32 v{pX}, 16, v{V_SC+T}")
    e(f"v_and_b32 v{pY}, s{S_HI}, v{V_SC+T}")
    e(f"v_fma_f32 v{pX}, v{pX}, s{S_L2E}, -v{V_ML2}")
    e(f"v_fma_f32 v{pY}, v{pY}, s{S_L2E}, -v{V_ML2}")
    e(f"v_exp_f32 v{pX}, v{pX}")
    e(f"v_exp_f32 v{pY}, v{pY}")
    e("s_nop 0")
    pv_tile(sl("v", n0), sl("v", n0 + 1), sl("v", n0 + 2))
    release("v", range(n0, n0 + 3))
tile = 0
claimed = False
while tile < 2 * F:
    last = pos_of[("k", 3 * tile + 2) if tile < F else ("v", 3 * (tile - F) + 2)]
    if can_issue():
        paced_issue()
        if st["pos"] == len(main) - 3 and NPOOL:
            cm("first pool ticket")
            vm.issue(f"buffer_atomic_add v{V_CLM}, v{V_CLMO}, {srd(R_WS)}, 0 offen sc0")
            claimed = True
    else:
        wait_main(last)
    if st["landed"] > last:
        if tile < F: consume_k(tile)
        else: consume_v(tile - F)
        tile += 1
assert st["pos"] == len(main)
stamp(10, 76, 77)
tws = sorted(slot_of[("tw", i)] for i in range(8))
assert tws == list(range(NVGPR - 32, NVGPR, 4)), tws
if NPOOL:
    assert claimed
    cm("==== pool tiles: claimed one at a time, online softmax per lane group ====")
    BUF = [[SRING0 + 4 * i for i in range(6)], [SRING0 + 24 + 4 * i for i in range(6)]]
    S_C = 30
    def pool_next(buf, lbl_none):
        e(f"v_readfirstlane_b32 s{S_C}, v{V_CLM}")
        e(f"v_mov_b32 v{V_CLM}, 1")
        e("s_nop 2")
        e(f"s_cmp_ge_u32 s{S_C}, {NPOOL}")
        e(f"s_cbranch_scc1 {lbl_none}")
        e(f"s_mul_i32 s{S_OFF}, s{S_C}, 3072")
        e(f"s_add_u32 s{S_OFF}, s{S_OFF}, {512*F*384}")
        e(f"buffer_atomic_add v{V_CLM}, v{V_CLMO}, {srd(R_WS)}, 0 offen sc0")
        for j in range(3):
            e(f"buffer_load_dwordx4 {vr(buf[j],4)}, v{V_KOFF}, {srd(R_K)}, s{S_OFF} offen offset:{256*j}{KNT}")
        for j in range(3):
            e(f"buffer_load_dwordx4 {vr(buf[3+j],4)}, v{V_VOFF}, {srd(R_V)}, s{S_OFF} offen offset:{256*j}{VNT}")
    def pool_front(buf):
        e("s_waitcnt vmcnt(3)")
        mfma_tile(buf[0], buf[1], buf[2], V_MACC, V_MACC + 4)
        e("s_nop 7")
        score_pair(V_MACC, V_MACC + 4, 4, pX, pY)
        e(f"v_max3_f32 v{t0}, v{V_MAX}, v{pX}, v{pY}")
        e(f"v_sub_f32 v{t1}, v{V_MAX}, v{t0}")
        e(f"v_mul_f32 v{t1}, s{S_L2E}, v{t1}")
        e(f"v_exp_f32 v{t1}, v{t1}")
        e(f"v_mov_b32 v{V_MAX}, v{t0}")
        e(f"v_mul_f32 v{V_ML2}, s{S_L2E}, v{t0}")
        e(f"v_fma_f32 v{pX}, v{pX}, s{S_L2E}, -v{V_ML2}")
        e(f"v_fma_f32 v{pY}, v{pY}, s{S_L2E}, -v{V_ML2}")
        e(f"v_exp_f32 v{pX}, v{pX}")
        e(f"v_exp_f32 v{pY}, v{pY}")
        e(f"v_mul_f32 v{V_LS}, v{V_LS}, v{t1}")
        for i in range(24):
            e(f"v_mul_f32 v{V_ACC+i}, v{V_ACC+i}, v{t1}")
        e(f"s_waitcnt vmcnt({OPT['pool_ahead']})")
    e("s_waitcnt vmcnt(0)")
    pool_next(BUF[0], "L_pool_done")
    lab("L_pool_loop")
    pool_front(BUF[0])
    pool_next(BUF[1], "L_pool_lastA")
    if OPT['pool_ahead']: e("s_waitcnt vmcnt(7)")
    pv_tile(*BUF[0][3:])
    pool_front(BUF[1])
    pool_next(BUF[0], "L_pool_lastB")
    if OPT['pool_ahead']: e("s_waitcnt vmcnt(7)")
    pv_tile(*BUF[1][3:])
    e("s_branch L_pool_loop")
    lab("L_pool_lastA")
    e("s_waitcnt vmcnt(0)")
    pv_tile(*BUF[0][3:])
    e("s_branch L_pool_done")
    lab("L_pool_lastB")
    e("s_waitcnt vmcnt(0)")
    pv_tile(*BUF[1][3:])
    lab("L_pool_done")
    cm("bring the 4 lane groups to a common max")
    e(f"v_mov_b32 v{pX}, v{V_MAX}")
    allgroups("v_max_f32", V_MAX, t0)
    e(f"v_sub_f32 v{t1}, v{pX}, v{V_MAX}")
    e(f"v_mul_f32 v{t1}, s{S_L2E}, v{t1}")
    e(f"v_exp_f32 v{t1}, v{t1}")
    e("s_nop 0")
    e(f"v_mul_f32 v{V_LS}, v{V_LS}, v{t1}")
    for i in range(24):
        e(f"v_mul_f32 v{V_ACC+i}, v{V_ACC+i}, v{t1}")
stamp(4, 76, 77)
V_CNT, V_CNTO = 16, 17
cm("slice counter (only the reducers look at it)")
e(f"s_lshl_b32 s{S_T0}, s{S_SPLIT}, 5")
e(f"s_add_u32 s{S_T0}, s{S_T0}, 4")
e(f"v_mov_b32 v{V_CNTO}, s{S_T0}")
e(f"buffer_load_dword v{V_CNT}, v{V_CNTO}, {srd(R_DBG)}, 0 offen sc1")
cm("==== T0: wave reduce ====")
swap_reduce(V_ACC, 24)
red24_to_lds(V_ACC, 4, 5, 6, 7)
allgroups("v_add_f32", V_LS, V_T)
e(f"s_lshl_b32 s{S_T0}, s{S_WAVE}, 3")
e(f"v_mov_b32 v4, s{S_T0}")
e(f"v_mov_b32 v6, v{V_MAX}")
e(f"v_mov_b32 v7, v{V_LS}")
e(f"ds_write_b64 v4, v[6:7] offset:{LDS_STAT}")
e("s_waitcnt lgkmcnt(0)")
e("s_barrier")

cm("==== T1: wave 0 combines the 8 waves and publishes ====")
e(f"s_lshl_b32 s{S_T1}, s{S_HEAD}, 3")
e(f"s_add_u32 s{S_T2}, s{S_T1}, s{S_SPLIT}")
e(f"s_cmp_lg_u32 s{S_WAVE}, 0")
e("s_cbranch_scc1 L_t1done")
e("v_mov_b32 v4, 0")
SB = SRING0
RB = 20
for w in range(4):
    e(f"ds_read_b128 {vr(SB+4*w,4)}, v4 offset:{LDS_STAT+16*w}")
e(f"v_lshlrev_b32 v5, 4, v{V_LANE}")
e(f"v_min_u32 v5, 752, v5")
for w in range(8):
    e(f"ds_read_b128 {vr(RB+8*w,4)}, v5 offset:{LDS_RED+1536*w}")
    e(f"ds_read_b128 {vr(RB+8*w+4,4)}, v5 offset:{LDS_RED+1536*w+768}")
e("s_waitcnt lgkmcnt(15)")
e(f"v_max3_f32 v6, v{SB}, v{SB+2}, v{SB+4}")
e(f"v_max3_f32 v6, v6, v{SB+6}, v{SB+8}")
e(f"v_max3_f32 v6, v6, v{SB+10}, v{SB+12}")
e(f"v_max_f32 v6, v6, v{SB+14}")
e(f"v_mul_f32 v7, s{S_L2E}, v6")
for w in range(8):
    e(f"v_fma_f32 v{SB+2*w}, v{SB+2*w}, s{S_L2E}, -v7")
for w in range(8):
    e(f"v_exp_f32 v{SB+2*w}, v{SB+2*w}")
e("s_nop 0")
e(f"v_mul_f32 v7, v{SB}, v{SB+1}")
for w in range(1, 8):
    e(f"v_fmac_f32 v7, v{SB+2*w}, v{SB+2*w+1}")
e("s_waitcnt lgkmcnt(0)")
for w in range(8):
    for i in range(4):
        e(f"v_add_f32 v{RB+8*w+i}, v{RB+8*w+i}, v{RB+8*w+4+i}")
    for i in range(4):
        if w == 0:
            e(f"v_mul_f32 v{8+i}, v{SB}, v{RB+i}")
        else:
            e(f"v_fmac_f32 v{8+i}, v{SB+2*w}, v{RB+8*w+i}")
cm("lane48: (M,L,0,0) ; lanes>=49: 0")
e(f"v_cmp_lt_u32 vcc, 47, v{V_LANE}")
e("s_nop 1")
for i in range(4):
    e(f"v_cndmask_b32 v{8+i}, v{8+i}, v4, vcc")
e(f"v_cmp_eq_u32 vcc, 48, v{V_LANE}")
e("s_nop 1")
e("v_cndmask_b32 v8, v8, v6, vcc")
e("v_cndmask_b32 v9, v9, v7, vcc")
canon4(8, 12)
e(f"s_lshl_b32 s{S_T0}, s{S_T2}, 10")
e(f"v_lshlrev_b32 v5, 4, v{V_LANE}")
e(f"v_add_u32 v5, s{S_T0}, v5")
e(f"buffer_store_dwordx4 v[8:11], v5, {srd(R_WS)}, 0 offen sc1")
lab("L_t1done")
stamp(5, 4, 5)
cm("all waves: wave j gathers outbox j of this head")
e(f"s_add_u32 s{S_T0}, s{S_T1}, s{S_WAVE}")
e(f"s_lshl_b32 s{S_T0}, s{S_T0}, 10")
e(f"v_lshlrev_b32 v5, 4, v{V_LANE}")
e(f"v_add_u32 v6, s{S_T0}, v5")
cm("(addresses for T3 while waiting)")
e(f"s_lshl_b32 s{S_T0}, s{S_WAVE}, 10")
e(f"v_add_u32 v13, s{S_T0}, v5")
e(f"v_lshrrev_b32 v5, 4, v{V_LANE}")
e(f"s_lshl_b32 s{S_T0}, s{S_WAVE}, 2")
e(f"v_add_u32 v5, s{S_T0}, v5")
e(f"v_and_b32 v14, 15, v{V_LANE}")
e(f"v_min_u32 v14, 5, v14")
e(f"v_lshl_add_u32 v14, v14, 5, v5")
e(f"v_lshlrev_b32 v14, 2, v14")
e("v_lshlrev_b32 v7, 2, v5")
e(f"ds_read_b32 v44, v7 offset:{LDS_H48}")
e(f"ds_read_b32 v45, v7 offset:{LDS_H48+128}")
e("v_mov_b32 v4, 0")
GA = 52
cm("b part of the GEMV slice (h @ w2) does not depend on the gather")
e("s_waitcnt lgkmcnt(0)")
e("v_lshrrev_b32 v74, 16, v44")
e("v_lshrrev_b32 v75, 16, v45")
if OPT["dot2"]:
    dot_tile(sl("tw", 6), 44, 74, GA + 8, True)
    dot_tile(sl("tw", 7), 45, 75, GA + 8, False)
else:
    for i in range(8):
        e(f"v_mov_b32 v{GA+8+i}, 0")
    for k in range(2):
        fma_tile(sl("tw", 6 + k), 44 + k, GA + 8, 74, 75)
poll_quads([8], 6, [0], 7)
stamp(6, 15, 12)
e(f"ds_write_b128 v13, v[8:11] offset:{LDS_GATH}")
e("s_waitcnt lgkmcnt(0)")
e("s_barrier")

cm("==== T3: combine splits, output GEMV slice ====")
for j in range(8):
    e(f"ds_read_b64 v[{20+2*j}:{21+2*j}], v4 offset:{LDS_GATH+1024*j+768}")
for j in range(8):
    e(f"ds_read_b32 v{36+j}, v14 offset:{LDS_GATH+1024*j}")
e("s_waitcnt lgkmcnt(8)")
e("v_max3_f32 v6, v20, v22, v24")
e("v_max3_f32 v6, v6, v26, v28")
e("v_max3_f32 v6, v6, v30, v32")
e("v_max_f32 v6, v6, v34")
e(f"v_mul_f32 v7, s{S_L2E}, v6")
for j in range(8):
    e(f"v_fma_f32 v{20+2*j}, v{20+2*j}, s{S_L2E}, -v7")
for j in range(8):
    e(f"v_exp_f32 v{20+2*j}, v{20+2*j}")
e("s_waitcnt lgkmcnt(0)")
e("v_mul_f32 v7, v20, v21")
e("v_mul_f32 v8, v20, v36")
for j in range(1, 8):
    e(f"v_fmac_f32 v7, v{20+2*j}, v{21+2*j}")
    e(f"v_fmac_f32 v8, v{20+2*j}, v{36+j}")
e("v_rcp_f32 v7, v7")
e("s_nop 0")
e("v_mul_f32 v8, v8, v7")
bf16_round(8)
e("v_lshrrev_b32 v9, 16, v8")
e("s_nop 0")
for k in range(6):
    e(f"v_mov_b32_dpp v{46+k}, v8 row_newbcast:{k} row_mask:0xf bank_mask:0xf")
if OPT["dot2"]:
    for k in range(6):
        e(f"v_mov_b32_dpp v{68+k}, v9 row_newbcast:{k} row_mask:0xf bank_mask:0xf")
    for k in range(6):
        dot_tile(sl("tw", k), 46 + k, 68 + k, GA, k == 0)
    e("s_nop 1")
else:
    for i in range(8):
        e(f"v_mov_b32 v{GA+i}, 0")
    for k in range(6):
        fma_tile(sl("tw", k), 46 + k, GA, 4, 5)
swap_reduce(GA, 16)
cm("RED2[w] + (g>>1)*512 + cc*32 + (g&1)*16")
e(f"v_lshrrev_b32 v5, 5, v{V_LANE}")
e(f"v_mul_u32_u24 v5, 512, v5")
e(f"v_bfe_u32 v6, v{V_LANE}, 4, 1")
e(f"v_lshl_add_u32 v5, v6, 4, v5")
e(f"v_and_b32 v6, 15, v{V_LANE}")
e(f"v_lshl_add_u32 v5, v6, 5, v5")
e(f"s_mul_i32 s{S_T0}, s{S_WAVE}, 1024")
e(f"v_add_u32 v5, s{S_T0}, v5")
e(f"ds_write_b128 v5, v[{GA}:{GA+3}] offset:{LDS_RED2}")
e("s_waitcnt lgkmcnt(0)")
e("s_barrier")

cm("==== T4: wave 0 publishes the slice partial ====")
e(f"s_cmp_lg_u32 s{S_WAVE}, 0")
e("s_cbranch_scc1 L_t4done")
e(f"v_lshlrev_b32 v5, 4, v{V_LANE}")
for w in range(8):
    e(f"ds_read_b128 {vr(RB+4*w,4)}, v5 offset:{LDS_RED2+1024*w}")
e("s_waitcnt lgkmcnt(0)")
for st in (1, 2, 4):
    for w in range(0, 8, 2 * st):
        for i in range(4):
            e(f"v_add_f32 v{RB+4*w+i}, v{RB+4*w+i}, v{RB+4*(w+st)+i}")
canon4(RB, 12)
e(f"s_lshl_b32 s{S_T0}, s{S_SPLIT}, 5")
e(f"s_add_u32 s{S_T0}, s{S_T0}, s{S_HEAD}")
e(f"s_mul_i32 s{S_T0}, s{S_T0}, 1024")
e(f"s_add_u32 s{S_T0}, s{S_T0}, {WS_OUT2}")
e(f"v_add_u32 v5, s{S_T0}, v5")
e(f"v_mov_b32 v6, {OOB:#x}")
e(f"v_cmp_gt_u32 vcc, 64, v{V_LANE}")
e("s_nop 1")
e(f"v_cndmask_b32 v5, v6, v5, vcc")
e(f"buffer_store_dwordx4 {vr(RB,4)}, v5, {srd(R_WS)}, 0 offen sc1")
lab("L_t4done")

stamp(7, 4, 5)
cm("==== T5: reducer WGs (head == 4*split) ====")
e(f"s_lshl_b32 s{S_T0}, s{S_SPLIT}, 2")
e(f"s_cmp_lg_u32 s{S_T0}, s{S_HEAD}")
e("s_cbranch_scc1 " + ("L_fin" if OPT["stamps"] else "L_end"))
e("s_waitcnt vmcnt(0)")
spin_counter(0, 32, V_CNT, V_CNTO)
e(f"s_lshl_b32 s{S_T0}, s{S_SPLIT}, 5")
e(f"s_lshl_b32 s{S_T1}, s{S_WAVE}, 2")
e(f"s_add_u32 s{S_T0}, s{S_T0}, s{S_T1}")
e(f"s_mul_i32 s{S_T0}, s{S_T0}, 1024")
e(f"s_add_u32 s{S_T0}, s{S_T0}, {WS_OUT2}")
e(f"v_lshlrev_b32 v5, 4, v{V_LANE}")
e(f"v_add_u32 v7, s{S_T0}, v5")
e(f"v_mov_b32 v6, {OOB:#x}")
e(f"v_cmp_gt_u32 vcc, 64, v{V_LANE}")
e("s_nop 1")
e(f"v_cndmask_b32 v7, v6, v7, vcc")
poll_quads([20, 24, 28, 32], 7, [0, 1024, 2048, 3072], 8)
stamp(8, 4, 12)
for i in range(4):
    e(f"v_add_f32 v{20+i}, v{20+i}, v{24+i}")
    e(f"v_add_f32 v{28+i}, v{28+i}, v{32+i}")
for i in range(4):
    e(f"v_add_f32 v{20+i}, v{20+i}, v{28+i}")
e(f"s_mul_i32 s{S_T0}, s{S_WAVE}, 1024")
e(f"v_add_u32 v5, s{S_T0}, v5")
e(f"v_cmp_gt_u32 vcc, 64, v{V_LANE}")
e(f"s_and_saveexec_b64 s[{S_EX}:{S_EX+1}], vcc")
e(f"ds_write_b128 v5, v[20:23] offset:{LDS_RED3}")
e(f"s_mov_b64 exec, s[{S_EX}:{S_EX+1}]")
e("s_waitcnt lgkmcnt(0)")
e("s_barrier")
e(f"s_cmp_gt_u32 s{S_WAVE}, 1")
e("s_cbranch_scc1 " + ("L_fin" if OPT["stamps"] else "L_end"))
e(f"v_min_u32 v5, 127, v{V_TID}")
e(f"v_lshlrev_b32 v5, 2, v5")
for w in range(8):
    e(f"ds_read_b32 v{20+w}, v5 offset:{LDS_RED3+1024*w}")
    e(f"ds_read_b32 v{28+w}, v5 offset:{LDS_RED3+1024*w+512}")
e("v_mov_b32 v4, 0")
e(f"ds_read_b32 v36, v4 offset:{LDS_HG+28}")
e("s_waitcnt lgkmcnt(0)")
for base in (20, 28):
    for a, b in ((0, 1), (2, 3), (4, 5), (6, 7), (0, 2), (4, 6), (0, 4)):
        e(f"v_add_f32 v{base+a}, v{base+a}, v{base+b}")
bf16_round(20)
bf16_round(28)
e("v_mul_f32 v20, v36, v20")
bf16_round(20)
e("v_sub_f32 v21, 1.0, v36")
bf16_round(21)
e("v_mul_f32 v21, v21, v28")
bf16_round(21)
e("v_add_f32 v20, v20, v21")
e("v_cvt_pk_bf16_f32 v20, v20, v20")
e(f"s_lshl_b32 s{S_T0}, s{S_NCC}, 3")
e(f"v_lshlrev_b32 v5, 1, v{V_TID}")
e(f"v_add_u32 v5, s{S_COL}, v5")
e(f"v_mov_b32 v6, {OOB:#x}")
e(f"v_cmp_gt_u32 vcc, s{S_T0}, v{V_TID}")
e("s_nop 1")
e(f"v_cndmask_b32 v5, v6, v5, vcc")
e(f"buffer_store_short v20, v5, {srd(R_OUT)}, 0 offen")
e("s_branch " + ("L_fin" if OPT["stamps"] else "L_end"))

L_SAVE = L
cm("================= helper waves (8: H0, 9: H1) =================")
lab("L_helper")
S_H = 31
e(f"s_sub_u32 s{S_H}, s{S_WAVE}, 8")
e(f"v_mov_b32 v63, {OOB:#x}")
e(f"v_lshlrev_b32 v8, 4, v{V_LANE}")
e("v_mov_b32 v57, v63")
for i in range(24):
    e(f"v_mov_b32 v{V_ACC+i}, 0")
cm("H0: clear own boxes to the sentinel (out1, out2 slot, qbox); zero LDS flag and zero block")
e(f"s_cmp_lg_u32 s{S_H}, 0")
e("s_cbranch_scc1 L_noclear")
e("v_mov_b32 v4, -1"); e("v_mov_b32 v5, -1"); e("v_mov_b32 v6, -1"); e("v_mov_b32 v7, -1")
e(f"s_mul_i32 s{S_T1}, s{S_LW}, {QB}")
e(f"s_add_u32 s{S_T1}, s{S_T1}, {WS_QBOX}")
e(f"v_add_u32 v11, s{S_T1}, v8")
e(f"buffer_store_dwordx4 v[4:7], v11, {srd(R_WS)}, 0 offen sc1")
e(f"v_cmp_gt_u32 vcc, 17, v{V_LANE}")
e("s_nop 1")
e(f"v_cndmask_b32 v11, v63, v11, vcc")
e(f"buffer_store_dwordx4 v[4:7], v11, {srd(R_WS)}, 0 offen offset:1024 sc1")
e(f"s_lshl_b32 s{S_T1}, s{S_LW}, 10")
e(f"v_add_u32 v9, s{S_T1}, v8")
e(f"buffer_store_dwordx4 v[4:7], v9, {srd(R_WS)}, 0 offen sc1")
e(f"s_lshl_b32 s{S_T1}, s{S_SPLIT}, 5")
e(f"s_add_u32 s{S_T1}, s{S_T1}, s{S_HEAD}")
e(f"s_mul_i32 s{S_T1}, s{S_T1}, 1024")
e(f"s_add_u32 s{S_T1}, s{S_T1}, {WS_OUT2}")
e(f"v_add_u32 v10, s{S_T1}, v8")
e(f"v_cmp_gt_u32 vcc, 64, v{V_LANE}")
e("s_nop 1")
e(f"v_cndmask_b32 v10, v63, v10, vcc")
e(f"buffer_store_dwordx4 v[4:7], v10, {srd(R_WS)}, 0 offen sc1")
cm("split 0 zeroes the pool ticket counter of the head")
e(f"s_lshl_b32 s{S_T1}, s{S_HEAD}, 7")
e(f"s_add_u32 s{S_T1}, s{S_T1}, {WS_POOL}")
e(f"s_cmp_eq_u32 s{S_SPLIT}, 0")
e(f"s_cselect_b32 s{S_T1}, s{S_T1}, {OOB:#x}")
e(f"v_mov_b32 v12, s{S_T1}")
e(f"v_cmp_eq_u32 vcc, 0, v{V_LANE}")
e("s_nop 1")
e(f"v_cndmask_b32 v12, v63, v12, vcc")
e(f"buffer_store_dword v{V_ACC}, v12, {srd(R_WS)}, 0 offen sc1")
e(f"v_mov_b32 v12, {LDS_ZERO}")
e(f"ds_write_b128 v12, v[{V_ACC}:{V_ACC+3}]")
e(f"v_mov_b32 v12, {LDS_FLAG2}")
e(f"ds_write_b32 v12, v{V_ACC}")
e(f"ds_write_b32 v12, v{V_ACC} offset:4")
lab("L_noclear")
cm("wq rows: row0 = 80*split + 20g + 10h ; pairs T=0..4")
e(f"s_mul_i32 s{S_T0}, s{S_SPLIT}, 80")
e(f"s_mul_i32 s{S_T1}, s{S_H}, 10")
e(f"s_add_u32 s{S_T1}, s{S_T0}, s{S_T1}")
e(f"v_mul_u32_u24 v60, 20, v{Vg}")
e(f"v_add_u32 v60, s{S_T1}, v60")
e(f"v_lshlrev_b32 v61, 1, v60")
e(f"s_mov_b32 s{S_T1}, 12288")
e(f"v_mul_lo_u32 v60, v60, s{S_T1}")
e(f"v_lshl_add_u32 v{V_WQO}, v{Vc}, 4, v60")
e(f"v_add_u32 v{V_WQO+2}, 12416, v{V_WQO}")
e(f"v_add_u32 v62, 256, v{V_WQO}")
e(f"v_add_u32 v60, 12160, v{V_WQO}")
e(f"v_cndmask_b32 v{V_WQO+1}, v60, v62, s[{S_MC8}:{S_MC8+1}]")
hv = VM()
hv.issue(f"buffer_load_dwordx4 {vr(V_XW,4)}, v61, {srd(R_X)}, 0 offen")
hv.issue(f"buffer_load_dword v{V_XW+4}, v61, {srd(R_X)}, 0 offen offset:16")
hid = {}
for T in range(5):
    e(f"s_mov_b32 s{S_OFF}, {T*24576}")
    for j in range(3):
        hid[(T, j)] = hv.issue(f"buffer_load_dwordx4 {vr(RING0+4*(3*T+j),4)}, v{V_WQO+j}, {srd(R_WQ)}, s{S_OFF} offen{WNT}")
e(f"s_cmp_lg_u32 s{S_H}, 0")
e("s_cbranch_scc1 L_h1pre")
cm("H0: clears done -> arrive on the group counter (returning atomic, lane 0)")
e(f"s_lshl_b32 s{S_T1}, s{S_HEAD}, 3")
e(f"v_mov_b32 v10, s{S_T1}")
e(f"v_cmp_eq_u32 vcc, 0, v{V_LANE}")
e("v_mov_b32 v13, 1")
e("s_nop 0")
e(f"v_cndmask_b32 v10, v63, v10, vcc")
e("s_waitcnt lgkmcnt(0)")
e("s_barrier")
e("s_waitcnt vmcnt(17)")
e(f"buffer_atomic_add v13, v10, {srd(R_DBG)}, 0 offen sc0")
e(f"v_mov_b32 v12, {LDS_FLAG2}")
e("v_mov_b32 v14, 1")
e("ds_write_b32 v12, v14")
e("s_branch L_hq")
lab("L_h1pre")
cm("H1: gate/up partial loads: lane (cq=l&7 <6, r8=l>>3), rows 80*split + 10*r8 + k")
MB = RING0 + 60
e(f"v_lshrrev_b32 v9, 3, v{V_LANE}")
e(f"v_mul_u32_u24 v9, 10, v9")
e(f"v_add_u32 v9, s{S_T0}, v9")
e(f"v_lshlrev_b32 v10, 1, v9")
e(f"v_mul_u32_u24 v9, 3072, v9")
e(f"v_and_b32 v11, 7, v{V_LANE}")
e(f"v_lshl_add_u32 v9, v11, 4, v9")
e(f"s_cmp_eq_u32 s{S_FOK}, 1")
e("s_cselect_b64 vcc, -1, 0")
e("s_nop 1")
e(f"v_cndmask_b32 v57, v63, v9, vcc")
e(f"buffer_load_dwordx4 v[12:15], v10, {srd(R_X)}, 0 offen")
e(f"buffer_load_dword v16, v10, {srd(R_X)}, 0 offen offset:16")
NPRE = 5
for k in range(NPRE):
    e(f"s_mov_b32 s{S_OFF}, {k*3072}")
    e(f"buffer_load_dwordx4 {vr(MB+8*k,4)}, v57, {srd(R_W1)}, s{S_OFF} offen{WNT}")
    e(f"buffer_load_dwordx4 {vr(MB+8*k+4,4)}, v57, {srd(R_W3)}, s{S_OFF} offen{WNT}")
e("s_barrier")
lab("L_hq")
hpX, hpY, hpM, ht0, ht1 = 4, 5, 6, 7, 9
for T in range(5):
    k = hv.n - 1 - hid[(T, 2)]
    lx = newlabel("hw")
    e(f"s_cmp_eq_u32 s{S_H}, 1")
    e(f"s_cbranch_scc1 {lx}a")
    e(f"s_waitcnt vmcnt({k+1})")
    e(f"s_branch {lx}b")
    lab(lx + "a")
    e(f"s_waitcnt vmcnt({k+2+2*NPRE})")
    lab(lx + "b")
    e(f"v_lshlrev_b32 v{hpX}, 16, v{V_XW+T}")
    e(f"v_and_b32 v{hpY}, s{S_HI}, v{V_XW+T}")
    e(f"v_cndmask_b32 v{hpM}, v{hpY}, v{hpX}, s[{S_MC8}:{S_MC8+1}]")
    for j, p in enumerate((hpX, hpM, hpY)):
        fma_tile(RING0 + 4 * (3 * T + j), p, V_ACC + 8 * j, ht0, ht1)
stamp(1, 4, 5)
swap_reduce(V_ACC, 24)
red24_to_lds(V_ACC, 4, 5, 6, 7, sreg=S_H)
e("s_waitcnt lgkmcnt(0)")
e(f"s_cmp_eq_u32 s{S_H}, 1")
e("s_cbranch_scc1 L_h1")
cm("---- H0: wait for H1's half, publish the WG partial, gather the 8 partials of the head ----")
e(f"v_mov_b32 v12, {LDS_FLAG}")
e(f"s_mov_b32 s{S_CNT}, {OPT['spin_cap']*8}")
lab("L_h0flag")
e("ds_read_b32 v14, v12")
e("s_waitcnt lgkmcnt(0)")
e("v_readfirstlane_b32 s30, v14")
e(f"s_sub_u32 s{S_CNT}, s{S_CNT}, 1")
e(f"s_cmp_eq_u32 s{S_CNT}, 0")
e("s_cbranch_scc1 L_h0go")
e("s_cmp_eq_u32 s30, 0")
e("s_cbranch_scc1 L_h0flag")
lab("L_h0go")
e(f"v_min_u32 v5, 752, v8")
e(f"ds_read_b128 v[20:23], v5 offset:{LDS_RED}")
e(f"ds_read_b128 v[24:27], v5 offset:{LDS_RED+768}")
e(f"ds_read_b128 v[28:31], v5 offset:{LDS_RED+1536}")
e(f"ds_read_b128 v[32:35], v5 offset:{LDS_RED+1536+768}")
e(f"s_mul_i32 s{S_T0}, s{S_LW}, {QB}")
e(f"s_add_u32 s{S_T0}, s{S_T0}, {WS_QBOX}")
e(f"v_add_u32 v9, s{S_T0}, v8")
e(f"v_cmp_gt_u32 s[{S_MSK}:{S_MSK+1}], 48, v{V_LANE}")
e("s_nop 1")
e(f"v_cndmask_b32 v9, v63, v9, s[{S_MSK}:{S_MSK+1}]")
e("s_waitcnt lgkmcnt(0)")
for i in range(4):
    e(f"v_add_f32 v{20+i}, v{20+i}, v{24+i}")
    e(f"v_add_f32 v{28+i}, v{28+i}, v{32+i}")
for i in range(4):
    e(f"v_add_f32 v{20+i}, v{20+i}, v{28+i}")
canon4(20, 12)
e(f"buffer_store_dwordx4 v[20:23], v9, {srd(R_WS)}, 0 offen sc1")
cm("---- H0: last arriver tells the 8 WGs of the head that every box is cleared ----")
e("s_waitcnt vmcnt(1)")
e("v_readfirstlane_b32 s30, v13")
e(f"s_mul_i32 s{S_T0}, s{S_HEAD}, {8*QB}")
e(f"s_add_u32 s{S_T0}, s{S_T0}, {WS_QBOX+1280}")
e("s_and_b32 s30, s30, 7")
e("s_cmp_lg_u32 s30, 7")
e("s_cbranch_scc1 L_h0nogo")
e(f"v_mul_u32_u24 v9, {QB}, v{V_LANE}")
e(f"v_add_u32 v9, s{S_T0}, v9")
e(f"v_cmp_gt_u32 vcc, 8, v{V_LANE}")
e("v_mov_b32 v12, 0")
e("s_nop 0")
e(f"v_cndmask_b32 v9, v63, v9, vcc")
e(f"buffer_store_dword v12, v9, {srd(R_WS)}, 0 offen sc1")
lab("L_h0nogo")
e(f"s_mul_i32 s{S_T0}, s{S_LW}, {QB}")
e(f"s_add_u32 s{S_T0}, s{S_T0}, {WS_QBOX+1280}")
e(f"v_mov_b32 v10, s{S_T0}")
e(f"buffer_load_dword v13, v10, {srd(R_WS)}, 0 offen sc1")
stamp(2, 4, 5)
e("s_waitcnt vmcnt(0)")
e(f"s_mov_b32 s{S_CNT}, {OPT['spin_cap']}")
lab("L_h0gospin")
e("v_readfirstlane_b32 s30, v13")
e(f"s_sub_u32 s{S_CNT}, s{S_CNT}, 1")
e(f"s_cmp_eq_u32 s{S_CNT}, 0")
e("s_cbranch_scc1 L_h0godone")
e("s_cmp_lg_u32 s30, -1")
e("s_cbranch_scc1 L_h0godone")
e(f"s_sleep {OPT['sleep']}")
e(f"buffer_load_dword v13, v10, {srd(R_WS)}, 0 offen sc1")
e("s_waitcnt vmcnt(0)")
e("s_branch L_h0gospin")
lab("L_h0godone")
stamp(3, 4, 5)
e(f"s_mul_i32 s{S_T0}, s{S_HEAD}, {8*QB}")
e(f"s_add_u32 s{S_T0}, s{S_T0}, {WS_QBOX}")
e(f"v_add_u32 v9, s{S_T0}, v8")
e(f"v_cndmask_b32 v9, v63, v9, s[{S_MSK}:{S_MSK+1}]")
poll_quads([RING0 + 4 * j for j in range(8)], 9, [QB * j for j in range(8)], 7)
for stp in (1, 2, 4):
    for j in range(0, 8, 2 * stp):
        for i in range(4):
            e(f"v_add_f32 v{RING0+4*j+i}, v{RING0+4*j+i}, v{RING0+4*(j+stp)+i}")
e(f"v_cvt_pk_bf16_f32 v20, v{RING0}, v{RING0+1}")
e(f"v_cvt_pk_bf16_f32 v21, v{RING0+2}, v{RING0+3}")
e(f"v_lshlrev_b32 v5, 3, v{V_LANE}")
e(f"s_and_saveexec_b64 s[{S_EX}:{S_EX+1}], s[{S_MSK}:{S_MSK+1}]")
e(f"ds_write_b64 v5, v[20:21] offset:{LDS_QBF}")
e(f"s_mov_b64 exec, s[{S_EX}:{S_EX+1}]")
e("s_waitcnt lgkmcnt(0)")
stamp(4, 4, 5)
e("s_barrier")
e("s_branch " + ("L_fin" if OPT["stamps"] else "L_end"))

lab("L_h1")
e(f"v_mov_b32 v9, {LDS_FLAG}")
e("v_mov_b32 v10, 1")
e("ds_write_b32 v9, v10")
cm("---- H1: gate/up partial over this WG's 80 rows ----")
for k in range(NPRE, 10):
    e(f"s_mov_b32 s{S_OFF}, {k*3072}")
    r = RING0 + 8 * (k - NPRE)
    e(f"buffer_load_dwordx4 {vr(r,4)}, v57, {srd(R_W1)}, s{S_OFF} offen{WNT}")
    e(f"buffer_load_dwordx4 {vr(r+4,4)}, v57, {srd(R_W3)}, s{S_OFF} offen{WNT}")
MA = V_ACC
for i in range(16):
    e(f"v_mov_b32 v{MA+i}, 0")
for k in range(10):
    e(f"s_waitcnt vmcnt({18-2*k})")
    if k % 2 == 0:
        e(f"v_lshlrev_b32 v5, 16, v{12+k//2}")
    else:
        e(f"v_and_b32 v5, s{S_HI}, v{12+k//2}")
    r = MB + 8 * k if k < NPRE else RING0 + 8 * (k - NPRE)
    fma_tile(r, 5, MA, 6, 7)
    fma_tile(r + 4, 5, MA + 8, 6, 7)
swap_reduce(MA, 16)
e("s_nop 1")
for i in range(4):
    e(f"v_add_f32_dpp v{MA+i}, v{MA+i}, v{MA+i} row_ror:8 row_mask:0xf bank_mask:0xf")
canon4(MA, 12)
cm("store at qbox + 768 + (g>>1)*256 + cq*32 + (g&1)*16 for (l&15)<8")
e(f"v_lshrrev_b32 v5, 5, v{V_LANE}")
e(f"v_mul_u32_u24 v5, 256, v5")
e(f"v_bfe_u32 v6, v{V_LANE}, 4, 1")
e(f"v_lshl_add_u32 v5, v6, 4, v5")
e(f"v_and_b32 v6, 15, v{V_LANE}")
e(f"v_lshl_add_u32 v5, v6, 5, v5")
e(f"s_mul_i32 s{S_T0}, s{S_LW}, {QB}")
e(f"s_add_u32 s{S_T0}, s{S_T0}, {WS_QBOX+768}")
e(f"v_add_u32 v5, s{S_T0}, v5")
e(f"v_cmp_gt_u32 vcc, 8, v6")
e("s_nop 1")
e(f"v_cndmask_b32 v5, v63, v5, vcc")
cm("H0's clear of this box must have completed")
e(f"v_mov_b32 v6, {LDS_FLAG2}")
e(f"s_mov_b32 s{S_CNT}, {OPT['spin_cap']*8}")
lab("L_h1flag")
e("ds_read_b32 v7, v6")
e("s_waitcnt lgkmcnt(0)")
e("v_readfirstlane_b32 s30, v7")
e(f"s_sub_u32 s{S_CNT}, s{S_CNT}, 1")
e(f"s_cmp_eq_u32 s{S_CNT}, 0")
e("s_cbranch_scc1 L_h1st")
e("s_cmp_eq_u32 s30, 0")
e("s_cbranch_scc1 L_h1flag")
lab("L_h1st")
e(f"buffer_store_dwordx4 v[{MA}:{MA+3}], v5, {srd(R_WS)}, 0 offen sc1")
cm("gate logit operands: lane l owns elements 10l..10l+9")
e(f"v_mul_u32_u24 v4, 20, v{V_LANE}")
e(f"buffer_load_dwordx4 v[44:47], v4, {srd(R_X)}, 0 offen")
e(f"buffer_load_dword v48, v4, {srd(R_X)}, 0 offen offset:16")
e(f"buffer_load_dwordx4 v[52:55], v4, {srd(R_GW)}, 0 offen")
e(f"buffer_load_dword v56, v4, {srd(R_GW)}, 0 offen offset:16")
stamp(2, 4, 5)
e("s_waitcnt lgkmcnt(0)")
e("s_barrier")
cm("slice counter: this WG's out2 slot is cleared (H0 drained the clears before barrier #1)")
e(f"s_lshl_b32 s{S_T0}, s{S_SPLIT}, 5")
e(f"s_add_u32 s{S_T0}, s{S_T0}, 4")
e(f"v_mov_b32 v10, s{S_T0}")
e(f"v_cmp_eq_u32 vcc, 0, v{V_LANE}")
e("v_mov_b32 v12, 1")
e("s_nop 0")
e(f"v_cndmask_b32 v10, v63, v10, vcc")
e(f"buffer_atomic_add v12, v10, {srd(R_DBG)}, 0 offen")
cm("gather the 8 gate/up partials: lanes 0..11 gate quads, lanes 16..27 up quads")
e(f"v_and_b32 v5, 15, v{V_LANE}")
e(f"v_lshlrev_b32 v6, 4, v5")
e(f"v_lshrrev_b32 v7, 4, v{V_LANE}")
e(f"v_mul_u32_u24 v9, 256, v7")
e(f"v_add_u32 v6, v6, v9")
e(f"s_mul_i32 s{S_T0}, s{S_HEAD}, {8*QB}")
e(f"s_add_u32 s{S_T0}, s{S_T0}, {WS_QBOX+768}")
e(f"v_add_u32 v6, s{S_T0}, v6")
e(f"v_cmp_gt_u32 vcc, 32, v{V_LANE}")
e("s_nop 1")
e(f"v_cndmask_b32 v6, v63, v6, vcc")
poll_quads([RING0 + 4 * j for j in range(8)], 6, [QB * j for j in range(8)], 7)
for stp in (1, 2, 4):
    for j in range(0, 8, 2 * stp):
        for i in range(4):
            e(f"v_add_f32 v{RING0+4*j+i}, v{RING0+4*j+i}, v{RING0+4*(j+stp)+i}")
G0 = RING0; U0 = RING0 + 4
for i in range(4):
    bf16_round(G0 + i)
for i in range(4):
    e(f"v_mov_b32 v{U0+i}, v{G0+i}")
e("s_nop 1")
for i in range(4):
    e(f"v_permlane16_swap_b32 v{G0+i}, v{U0+i}")
for i in range(4):
    e(f"v_mul_f32 v{20+i}, s{S_L2E}, v{G0+i}")
    e(f"v_sub_f32 v{20+i}, 0, v{20+i}")
    e(f"v_exp_f32 v{20+i}, v{20+i}")
    e("s_nop 0")
    e(f"v_add_f32 v{20+i}, 1.0, v{20+i}")
    e(f"v_rcp_f32 v{20+i}, v{20+i}")
    e("s_nop 0")
    e(f"v_mul_f32 v{20+i}, v{G0+i}, v{20+i}")
    bf16_round(20 + i)
    e(f"v_mul_f32 v{20+i}, v{20+i}, v{U0+i}")
    bf16_round(20 + i)
e(f"v_cmp_gt_u32 vcc, 16, v{V_LANE}")
e(f"s_and_saveexec_b64 s[{S_EX}:{S_EX+1}], vcc")
e(f"ds_write_b128 v8, v[20:23] offset:{LDS_H48}")
e(f"s_mov_b64 exec, s[{S_EX}:{S_EX+1}]")
cm("gate logit")
e("v_mov_b32 v20, 0")
for k in range(10):
    if k % 2 == 0:
        e(f"v_lshlrev_b32 v5, 16, v{44+k//2}")
        e(f"v_lshlrev_b32 v6, 16, v{52+k//2}")
    else:
        e(f"v_and_b32 v5, s{S_HI}, v{44+k//2}")
        e(f"v_and_b32 v6, s{S_HI}, v{52+k//2}")
    e("v_mul_f32 v6, v5, v6")
    bf16_round(6)
    e("v_add_f32 v20, v20, v6")
allgroups("v_add_f32", 20, 21)
for sh in (8, 4, 2, 1):
    e("s_nop 1")
    e(f"v_add_f32_dpp v20, v20, v20 row_ror:{sh} row_mask:0xf bank_mask:0xf")
bf16_round(20)
e(f"v_mul_f32 v22, s{S_L2E}, v20")
e("v_sub_f32 v22, 0, v22")
e("v_exp_f32 v22, v22")
e("s_nop 0")
e("v_add_f32 v22, 1.0, v22")
e("v_rcp_f32 v22, v22")
e("s_nop 0")
bf16_round(22)
e(f"v_mov_b32 v4, {LDS_HG+28}")
e("ds_write_b32 v4, v22")
e("s_waitcnt lgkmcnt(0)")
stamp(3, 4, 5)
e("s_barrier")
e("s_branch " + ("L_fin" if OPT["stamps"] else "L_end"))

if OPT["stamps"]:
    lab("L_fin")
    stamp(9, 4, 5)
    e("s_getreg_b32 s98, hwreg(HW_REG_XCC_ID)")
    e("v_mov_b32 v4, s98")
    e(f"ds_write_b32 v5, v4 offset:{LDS_STAMP+4*15}")
    e("s_waitcnt lgkmcnt(0)")
    e(f"v_and_b32 v4, 15, v{V_LANE}")
    e("v_lshlrev_b32 v4, 2, v4")
    e("v_add_u32 v5, s99, v4")
    e(f"ds_read_b32 v6, v5 offset:{LDS_STAMP}")
    e("s_lshl_b32 s98, s2, 10")
    e("s_add_u32 s98, s98, 0x100000")
    e("v_add_u32 v5, s98, v5")
    e("s_waitcnt lgkmcnt(0)")
    e(f"buffer_store_dword v6, v5, {srd(R_WS)}, 0 offen")
lab("L_end")
e("s_endpgm")
L.append('.section .rodata,"a"')
L.append(".p2align 6")
L.append(f".amdhsa_kernel {NAME}_kernel")
L.append(f"  .amdhsa_next_free_vgpr {NVGPR}")
L.append("  .amdhsa_next_free_sgpr 102")
L.append(f"  .amdhsa_accum_offset {NVGPR}")
L.append("  .amdhsa_group_segment_fixed_size 0")
L.append("  .amdhsa_kernarg_size 104")
L.append("  .amdhsa_user_sgpr_count 2")
L.append("  .amdhsa_user_sgpr_kernarg_segment_ptr 1")
L.append("  .amdhsa_system_sgpr_workgroup_id_x 1")
L.append("  .amdhsa_float_denorm_mode_32 3")
L.append(".end_amdhsa_kernel")
out = sys.argv[1] if len(sys.argv) > 1 else f"cdna_kernels/{NAME}.s"
open(out, "w").write("\n".join(L) + "\n")
print("wrote", out, len(L), "lines")
```

```python
import sys

NAME = "gated_mix__mha_block_cached__glu_gated_swiglu__decode"
HEADER = open(f"cdna_kernels/{NAME}.s.ref").read().split("; Override launch geometry")[0]

OPT = dict(
    w_nt=True,
    spin_cap=400000,
    sleep=1,
    stamps=0,
    depth=5,
    depth0=3,
    kv_nt=1,
    v_nt=-1,
    dot2=1,
    pool_ahead=3,
    rot=1,
    bias=1,
    F=13,
)
for a in sys.argv[2:]:
    k, v = a.split("=")
    OPT[k] = type(OPT[k])(int(v))


L = []
def e(s=""):
    L.append("    " + s if s and not s.endswith(":") else s)
def lab(s):
    L.append(s + ":")
def cm(s):
    L.append("    ; " + s)

P_X, P_K, P_V, P_WQ, P_WO, P_BX, P_W1, P_W3, P_W2, P_GW, P_OUT, P_DBG, P_WS = [4 + 2 * i for i in range(13)]
R_K, R_V, R_WQ, R_WO, R_W1, R_W3, R_W2, R_X, R_GW, R_OUT, R_DBG, R_WS = [32 + 4 * i for i in range(12)]
S_HEAD, S_SPLIT, S_WAVE, S_OFF, S_HI, S_L2E, S_SCALE, S_T0, S_T1, S_T2, S_CNT = 80, 81, 82, 83, 84, 85, 86, 87, 92, 93, 94
S_MC8 = 88
S_MSK = 90
S_EX = 96
S_F0, S_FOK = 14, 15
S_COL, S_NCC = 100, 101
def srd(r): return f"s[{r}:{r+3}]"

V_TID, V_KOFF, V_VOFF, V_LANE = 0, 1, 2, 3
V_SC = 4
V_ACC = 20
V_QF = 44
V_MACC = 60
pX, pY, pM, t0, t1 = 76, 77, 78, 79, 80
V_MAX, V_ML2, V_LS = 81, 82, 83
V_TWO, V_TWO2 = 84, 85
V_CLM, V_CLMO = 86, 87
V_T = 76
SRING0 = 88
NVGPR = 168
V_XW = 44
V_WQO = 54
RING0 = 64
def vr(a, n): return f"v[{a}:{a+n-1}]"
BIAS = OPT["bias"]
FAVG = OPT["F"]
F = FAVG + 1 if BIAS else FAVG
NPOOL = 1024 - 64 * FAVG
POOL0 = 512 * FAVG * 384
S_FB = 3
NROT = F - 2 if BIAS else F
S_FBR, S_FBE = 30, 31
S_FBA, S_FBB = 98, 99

LDS_RED = 0
LDS_STAT = 12288
LDS_MLPR = 12352
LDS_QBF = 12864
LDS_ZERO = 13248
LDS_HG = 13280
LDS_GATH = 13312
LDS_RED2 = 21504
LDS_RED3 = 29696
LDS_STAMP = 37888
LDS_TOTAL = 37888 + (640 if OPT["stamps"] else 0)

WS_OUT1 = 0
WS_OUT2 = 262144
WS_QBOX = WS_OUT2 + 8 * 32 * 1024
QB = 1408
WS_POOL = WS_QBOX + 256 * QB
WS_BYTES = WS_POOL + 32 * 128 if not OPT["stamps"] else (2 << 20)
LDS_H48 = LDS_MLPR
LDS_FLAG2 = LDS_HG + 20
LDS_FLAG = LDS_HG + 24
OOB = 0x80000000

class VM:
    def __init__(self): self.n = 0
    def issue(self, s):
        e(s); self.n += 1; return self.n - 1
    def wait(self, idx):
        k = self.n - 1 - idx
        assert k >= 0
        e(f"s_waitcnt vmcnt({min(k, 63)})")
vm = VM()

WNT = " nt" if OPT["w_nt"] else ""
_POL = {0: "", 1: " nt", 2: " sc1", 3: " sc0 sc1", 4: " sc1 nt", 5: " sc0"}
KNT = _POL[OPT["kv_nt"]]
VNT = _POL[OPT["v_nt"] if OPT["v_nt"] >= 0 else OPT["kv_nt"]]

def make_srd(r, p, off_s=None, nrec=None, nrec_s=None):
    if off_s is None:
        e(f"s_mov_b32 s{r}, s{p}")
        e(f"s_and_b32 s{r+1}, s{p+1}, 0xffff")
    else:
        e(f"s_add_u32 s{r}, s{p}, s{off_s}")
        e(f"s_addc_u32 s{r+1}, s{p+1}, 0")
        e(f"s_and_b32 s{r+1}, s{r+1}, 0xffff")
    if nrec_s is not None:
        e(f"s_sub_u32 s{r+2}, {nrec}, s{nrec_s}")
    else:
        e(f"s_mov_b32 s{r+2}, {nrec}")
    e(f"s_mov_b32 s{r+3}, 0x00020000")

def fma_tile(src, p, acc, t0, t1):
    for d in range(4):
        e(f"v_lshlrev_b32 v{t0}, 16, v{src+d}")
        e(f"v_and_b32 v{t1}, s{S_HI}, v{src+d}")
        e(f"v_fmac_f32 v{acc+2*d}, v{p}, v{t0}")
        e(f"v_fmac_f32 v{acc+2*d+1}, v{p}, v{t1}")

def dot_tile(src, phi, plo, acc, first):
    for d in range(4):
        if first:
            e(f"v_dot2_f32_bf16 v{acc+2*d}, v{src+d}, v{plo}, 0")
            e(f"v_dot2_f32_bf16 v{acc+2*d+1}, v{src+d}, v{phi}, 0")
        else:
            e(f"v_dot2c_f32_bf16 v{acc+2*d}, v{src+d}, v{plo}")
            e(f"v_dot2c_f32_bf16 v{acc+2*d+1}, v{src+d}, v{phi}")

def swap_reduce(acc, n):
    h = n // 2
    e("s_nop 1")
    for i in range(h):
        e(f"v_permlane32_swap_b32 v{acc+i}, v{acc+i+h}")
    for i in range(h):
        e(f"v_add_f32 v{acc+i}, v{acc+i}, v{acc+i+h}")
    q = h // 2
    e("s_nop 1")
    for i in range(q):
        e(f"v_permlane16_swap_b32 v{acc+i}, v{acc+i+q}")
    for i in range(q):
        e(f"v_add_f32 v{acc+i}, v{acc+i}, v{acc+i+q}")

def allgroups(op, v, t):
    e(f"v_mov_b32 v{t}, v{v}")
    e("s_nop 1")
    e(f"v_permlane32_swap_b32 v{v}, v{t}")
    e(f"{op} v{v}, v{v}, v{t}")
    e(f"v_mov_b32 v{t}, v{v}")
    e("s_nop 1")
    e(f"v_permlane16_swap_b32 v{v}, v{t}")
    e(f"{op} v{v}, v{v}, v{t}")

def red24_to_lds(acc, tA, tB, tC, tD, sreg=None):
    e(f"v_and_b32 v{tD}, 15, v{V_LANE}")
    e(f"v_lshlrev_b32 v{tD}, 5, v{tD}")
    e(f"s_mul_i32 s{S_T0}, s{S_WAVE if sreg is None else sreg}, 1536")
    e(f"v_add_u32 v{tD}, s{S_T0}, v{tD}")
    e(f"v_lshrrev_b32 v{tA}, 4, v{V_LANE}")
    e(f"v_mul_u32_u24 v{tA}, 6, v{tA}")
    for p in range(3):
        e(f"v_add_u32 v{tB}, {2*p}, v{tA}")
        e(f"v_lshrrev_b32 v{tC}, 3, v{tB}")
        e(f"v_lshl_add_u32 v{tC}, v{tC}, 9, v{tD}")
        e(f"v_and_b32 v{tB}, 7, v{tB}")
        e(f"v_lshl_add_u32 v{tC}, v{tB}, 2, v{tC}")
        e(f"ds_write_b64 v{tC}, v[{acc+2*p}:{acc+2*p+1}] offset:{LDS_RED}")

def canon4(r, t):
    e(f"v_mov_b32 v{t}, 0x7fc00000")
    for i in range(4):
        e(f"v_cmp_eq_u32 vcc, -1, v{r+i}")
        e("s_nop 1")
        e(f"v_cndmask_b32 v{r+i}, v{r+i}, v{t}, vcc")

def bf16_round(v, t=None):
    e(f"v_cvt_pk_bf16_f32 v{v}, v{v}, v{v}")
    e(f"v_lshlrev_b32 v{v}, 16, v{v}")

def stamp(k, ta, tb):
    if not OPT["stamps"]:
        return
    e("s_memrealtime s[12:13]")
    e("s_waitcnt lgkmcnt(0)")
    e(f"s_lshl_b32 s13, s{S_WAVE}, 6")
    e(f"v_mov_b32 v{ta}, s12")
    e(f"v_mov_b32 v{tb}, s13")
    e(f"ds_write_b32 v{tb}, v{ta} offset:{LDS_STAMP+4*k}")

_lbl = [0]
def newlabel(p):
    _lbl[0] += 1
    return f"L_{p}_{_lbl[0]}"

def spin_counter(lane_sel, target, vcnt, voff, hi=False):
    lo, done = newlabel("cspin"), newlabel("cdone")
    e(f"s_mov_b32 s{S_CNT}, {OPT['spin_cap']}")
    lab(lo)
    e(f"v_readlane_b32 s{S_T0}, v{vcnt}, {lane_sel}")
    e("s_nop 3")
    if hi:
        e(f"s_lshr_b32 s{S_T0}, s{S_T0}, 16")
    else:
        e(f"s_and_b32 s{S_T0}, s{S_T0}, 0xffff")
    e(f"s_cmp_ge_u32 s{S_T0}, {target}")
    e(f"s_cbranch_scc1 {done}")
    e(f"s_sub_u32 s{S_CNT}, s{S_CNT}, 1")
    e(f"s_cmp_eq_u32 s{S_CNT}, 0")
    e(f"s_cbranch_scc1 {done}")
    e("s_sleep 32")
    e(f"buffer_load_dword v{vcnt}, v{voff}, {srd(R_DBG)}, 0 offen sc1")
    e("s_waitcnt vmcnt(0)")
    e(f"s_branch {lo}")
    lab(done)

def poll_quads(regs, voff, offs, t):
    big = max(offs) > 4095
    lo, done = newlabel("poll"), newlabel("pdone")
    e(f"s_mov_b32 s{S_CNT}, {OPT['spin_cap']}")
    lab(lo)
    for r, o in zip(regs, offs):
        if big:
            e(f"s_mov_b32 s{S_OFF}, {o}")
            e(f"buffer_load_dwordx4 {vr(r,4)}, v{voff}, {srd(R_WS)}, s{S_OFF} offen sc1")
        else:
            e(f"buffer_load_dwordx4 {vr(r,4)}, v{voff}, {srd(R_WS)}, 0 offen offset:{o} sc1")
    e("s_waitcnt vmcnt(0)")
    first = True
    for r in regs:
        if first:
            e(f"v_max_u32 v{t}, v{r}, v{r+1}")
            first = False
        else:
            e(f"v_max3_u32 v{t}, v{t}, v{r}, v{r+1}")
        e(f"v_max3_u32 v{t}, v{t}, v{r+2}, v{r+3}")
    e(f"v_cmp_eq_u32 vcc, -1, v{t}")
    e("s_nop 4")
    e(f"s_cbranch_vccz {done}")
    e(f"s_sub_u32 s{S_CNT}, s{S_CNT}, 1")
    e(f"s_cmp_eq_u32 s{S_CNT}, 0")
    e(f"s_cbranch_scc1 {done}")
    e(f"s_sleep {OPT['sleep']}")
    e(f"s_branch {lo}")
    lab(done)

early_slots = [8, 12, 16, 20, 24, 28, 32, 36, 40]
ring_slots = list(range(SRING0, NVGPR, 4))
free_slots = early_slots + ring_slots
slot_of = {}
vmid = {}
def sl(kind, i): return slot_of[(kind, i)]
def issue(kind, i):
    free_slots.sort()
    slot_of[(kind, i)] = free_slots.pop(-1 if kind == "tw" else 0)
    r = sl(kind, i)
    n = (kind, i)
    if kind in ("k", "v"):
        T, j = divmod(i, 3)
        sb = S_FB
        if BIAS and T == F - 2: sb = S_FBA
        if BIAS and T == F - 1: sb = S_FBB
        if OPT["rot"] and T < NROT:
            if j == 0:
                e(f"s_add_u32 s{S_OFF}, s{S_FBR}, {T*3072}")
                e(f"s_sub_u32 s{S_T0}, s{S_OFF}, {NROT*3072}")
                e(f"s_cmp_ge_u32 s{S_OFF}, s{S_FBE}")
                e(f"s_cselect_b32 s{S_OFF}, s{S_T0}, s{S_OFF}")
        else:
            e(f"s_add_u32 s{S_OFF}, s{sb}, {T*3072}")
        vo, rr, pol = (V_KOFF, R_K, KNT) if kind == "k" else (V_VOFF, R_V, VNT)
        vmid[n] = vm.issue(f"buffer_load_dwordx4 {vr(r,4)}, v{vo}, {srd(rr)}, s{S_OFF} offen offset:{256*j}{pol}")
    elif kind == "tw":
        if i < 6:
            e(f"s_mov_b32 s{S_OFF}, {i*40960}")
            vmid[n] = vm.issue(f"buffer_load_dwordx4 {vr(r,4)}, v{V_TWO}, {srd(R_WO)}, s{S_OFF} offen{WNT}")
        else:
            e(f"s_mov_b32 s{S_OFF}, {(i-6)*40960}")
            vo = V_TWO2
            vmid[n] = vm.issue(f"buffer_load_dwordx4 {vr(r,4)}, v{vo}, {srd(R_W2)}, s{S_OFF} offen{WNT}")
def release(kind, idxs):
    for i in idxs:
        if slot_of[(kind, i)] in ring_slots:
            free_slots.append(slot_of[(kind, i)])
main = [("k", i) for i in range(3*F)] + [("v", i) for i in range(3*F-12)] + [("tw", i) for i in range(8)] + [("v", i) for i in range(3*F-12, 3*F)]
pos_of = {n: i for i, n in enumerate(main)}
st = dict(pos=0, landed=0)
D = OPT["depth"]
def can_issue():
    return st["pos"] < len(main) and bool(free_slots)
def wait_main(j):
    if st["landed"] <= j:
        vm.wait(vmid[main[j]])
        st["landed"] = j + 1
def paced_issue(d=None):
    d = D if d is None else d
    p = st["pos"]
    if p >= d:
        wait_main(p - d)
    issue(*main[p]); st["pos"] += 1

L.append(HEADER.rstrip("\n"))
L.append(f"; @launch grid=(256,1,1) block=(640,1,1) lds={LDS_TOTAL}")
L.append('.amdgcn_target "amdgcn-amd-amdhsa--gfx950"')
L.append(".text")
L.append(f".globl {NAME}_kernel")
L.append(".p2align 8")
L.append(f".type {NAME}_kernel,@function")
lab(f"{NAME}_kernel")
e("s_cmp_ge_u32 s2, 256")
e("s_cbranch_scc1 L_end")
e("s_load_dwordx16 s[4:19], s[0:1], 0")
e("s_load_dwordx8 s[20:27], s[0:1], 64")
e("s_load_dwordx2 s[28:29], s[0:1], 96")
cm("head = b>>3 ; split = b&7  (the 8 splits of a head sit on 8 different XCDs)")
e(f"s_lshr_b32 s{S_HEAD}, s2, 3")
e(f"s_and_b32 s{S_SPLIT}, s2, 7")
e(f"v_lshrrev_b32 v{V_T}, 6, v{V_TID}")
e(f"v_and_b32 v{V_LANE}, 63, v{V_TID}")
e(f"v_readfirstlane_b32 s{S_WAVE}, v{V_T}")
e(f"s_mov_b32 s{S_HI}, 0xffff0000")
e(f"s_mov_b32 s{S_L2E}, 0x3fb8aa3b")
e(f"s_mov_b32 s{S_SCALE}, 0x3d93cd3a")
Vc, Vg = 58, 59
e(f"v_and_b32 v{Vc}, 15, v{V_LANE}")
e(f"v_lshrrev_b32 v{Vg}, 4, v{V_LANE}")
e(f"v_cmp_gt_u32 s[{S_MC8}:{S_MC8+1}], 8, v{Vc}")
cm("K voffset = m*768 + g*64 + u*16 ; V voffset = g*768 + c*16 ; fixed part starts at (split*64F + w*8F)*384")
e(f"v_bfe_u32 v60, v{V_LANE}, 2, 2")
e(f"v_mul_u32_u24 v60, 768, v60")
e(f"v_lshl_add_u32 v60, v{Vg}, 6, v60")
e(f"v_and_b32 v61, 3, v{V_LANE}")
e(f"v_lshl_add_u32 v{V_KOFF}, v61, 4, v60")
e(f"v_mul_u32_u24 v60, 768, v{Vg}")
e(f"v_lshl_add_u32 v{V_VOFF}, v{Vc}, 4, v60")
if not BIAS:
    e(f"s_lshl_b32 s{S_FB}, s{S_SPLIT}, 3")
    e(f"s_add_u32 s{S_FB}, s{S_FB}, s{S_WAVE}")
    e(f"s_mul_i32 s{S_FB}, s{S_FB}, {8*F*384}")
else:
    cm("tiles n = FAVG+1 - odd - (w>=4); start(tiles) = (s>>1)*16*FAVG*... see generator")
    e(f"s_and_b32 s{S_T0}, s{S_SPLIT}, 1")
    e(f"s_sub_u32 s{S_T1}, {FAVG+1}, s{S_T0}")
    e(f"s_lshr_b32 s{S_FB}, s{S_SPLIT}, 1")
    e(f"s_mul_i32 s{S_FB}, s{S_FB}, {16*FAVG}")
    e(f"s_mul_i32 s{S_T2}, s{S_T0}, {8*FAVG+4}")
    e(f"s_add_u32 s{S_FB}, s{S_FB}, s{S_T2}")
    e(f"s_mul_i32 s{S_T2}, s{S_WAVE}, s{S_T1}")
    e(f"s_add_u32 s{S_FB}, s{S_FB}, s{S_T2}")
    e(f"s_sub_u32 s{S_T2}, s{S_WAVE}, 4")
    e(f"s_cmp_ge_u32 s{S_WAVE}, 4")
    e(f"s_cselect_b32 s{S_T2}, s{S_T2}, 0")
    e(f"s_cselect_b32 s{S_T0}, 1, 0")
    e(f"s_sub_u32 s{S_FB}, s{S_FB}, s{S_T2}")
    e(f"s_sub_u32 s{S_T1}, s{S_T1}, s{S_T0}")
    e(f"s_mul_i32 s{S_FB}, s{S_FB}, 3072")
    e(f"s_cmp_ge_u32 s{S_T1}, {F-1}")
    e(f"s_cselect_b32 s{S_FBA}, s{S_FB}, {OOB:#x}")
    e(f"s_cmp_ge_u32 s{S_T1}, {F}")
    e(f"s_cselect_b32 s{S_FBB}, s{S_FB}, {OOB:#x}")
if OPT["rot"]:
    cm("r = head mod NROT")
    e(f"s_mul_i32 s{S_T0}, s{S_HEAD}, {(65536 + NROT - 1)//NROT}")
    e(f"s_lshr_b32 s{S_T0}, s{S_T0}, 16")
    e(f"s_mul_i32 s{S_T0}, s{S_T0}, {NROT}")
    e(f"s_sub_u32 s{S_T0}, s{S_HEAD}, s{S_T0}")
    e(f"s_mul_i32 s{S_T0}, s{S_T0}, 3072")
    e(f"s_add_u32 s{S_FBR}, s{S_FB}, s{S_T0}")
    e(f"s_add_u32 s{S_FBE}, s{S_FB}, {NROT*3072}")
e("s_waitcnt lgkmcnt(0)")
cm("SRDs")
S_LW = 95
e(f"s_lshl_b32 s{S_LW}, s{S_HEAD}, 3")
e(f"s_add_u32 s{S_LW}, s{S_LW}, s{S_SPLIT}")
e(f"s_mul_i32 s{S_T1}, s{S_HEAD}, 3145728")
make_srd(R_K, P_K, S_T1, 3145728)
cm("streaming waves start their K stream right away")
e(f"s_cmp_ge_u32 s{S_WAVE}, 8")
e("s_cbranch_scc1 L_skipk")
D0 = OPT["depth0"]
for _ in range(D0):
    paced_issue(D0)
lab("L_skipk")
make_srd(R_V, P_V, S_T1, 3145728)
make_srd(R_X, P_X, None, 1280)
make_srd(R_GW, P_GW, None, 1280)
e(f"s_mul_i32 s{S_T1}, s{S_HEAD}, 384")
make_srd(R_WQ, P_WQ, S_T1, 640 * 12288, S_T1)
cm("mlp columns of this head: f0 = (head>>2)*192 + (head&3)*64, 64 of them (none if head&3==3)")
e(f"s_lshr_b32 s{S_F0}, s{S_HEAD}, 2")
e(f"s_mul_i32 s{S_F0}, s{S_F0}, 192")
e(f"s_and_b32 s{S_T1}, s{S_HEAD}, 3")
e(f"s_lshl_b32 s{S_T1}, s{S_T1}, 6")
e(f"s_add_u32 s{S_F0}, s{S_F0}, s{S_T1}")
e(f"s_cmp_eq_u32 s{S_T1}, 192")
e(f"s_cselect_b32 s{S_F0}, 0, s{S_F0}")
e(f"s_cselect_b32 s{S_FOK}, 0, 1")
e(f"s_lshl_b32 s{S_T1}, s{S_F0}, 1")
make_srd(R_W1, P_W1, S_T1, 640 * 3072, S_T1)
make_srd(R_W3, P_W3, S_T1, 640 * 3072, S_T1)
make_srd(R_WS, P_WS, None, WS_BYTES)
make_srd(R_DBG, P_DBG, None, 256)
make_srd(R_OUT, P_OUT, None, 1280)
e(f"s_mul_i32 s{S_T1}, s{S_HEAD}, {192*1280}")
cm("output column slice (128-B aligned): split%4==0 -> 128 columns, else 64; byte start (s>>2)*640 + {0,256,384,512}")
e(f"s_lshr_b32 s{S_COL}, s{S_SPLIT}, 2")
e(f"s_mul_i32 s{S_COL}, s{S_COL}, 640")
e(f"s_and_b32 s{S_T2}, s{S_SPLIT}, 3")
e(f"s_cmp_eq_u32 s{S_T2}, 0")
e(f"s_cselect_b32 s{S_NCC}, 16, 8")
e(f"s_lshl_b32 s{S_T2}, s{S_T2}, 7")
e(f"s_add_u32 s{S_T2}, s{S_T2}, 128")
e(f"s_cmp_eq_u32 s{S_NCC}, 16")
e(f"s_cselect_b32 s{S_T2}, 0, s{S_T2}")
e(f"s_add_u32 s{S_COL}, s{S_COL}, s{S_T2}")
e(f"s_mov_b32 s{S_T2}, s{S_COL}")
e(f"s_add_u32 s{S_T1}, s{S_T1}, s{S_T2}")
make_srd(R_WO, P_WO, S_T1, 6144 * 1280, S_T1)
e(f"s_mul_i32 s{S_T1}, s{S_F0}, 1280")
e(f"s_add_u32 s{S_T1}, s{S_T1}, s{S_T2}")
make_srd(R_W2, P_W2, S_T1, 1536 * 1280, S_T1)
stamp(0, 4, 5)
e(f"s_cmp_ge_u32 s{S_WAVE}, 8")
e("s_cbranch_scc1 L_helper")

cm("================= streaming waves =================")
cm("park K tiles until q is ready")
e("s_barrier")
while can_issue() and st["pos"] < 3 * F:
    paced_issue(D0)
cm("tail weight voffsets: rgrp*1280 + cc*16 (cc<10)")
e(f"v_lshrrev_b32 v{V_T}, 4, v{V_LANE}")
e(f"s_lshl_b32 s{S_T0}, s{S_WAVE}, 2")
e(f"v_add_u32 v{V_T}, s{S_T0}, v{V_T}")
e(f"v_mul_u32_u24 v{V_T}, 1280, v{V_T}")
e(f"v_and_b32 v{V_T+1}, 15, v{V_LANE}")
e(f"v_lshl_add_u32 v{V_T}, v{V_T+1}, 4, v{V_T}")
e(f"v_mov_b32 v{V_T+2}, {OOB:#x}")
e(f"v_cmp_gt_u32 vcc, s{S_NCC}, v{V_T+1}")
e("s_nop 1")
e(f"v_cndmask_b32 v{V_TWO}, v{V_T+2}, v{V_T}, vcc")
e(f"s_cmp_eq_u32 s{S_FOK}, 1")
e(f"s_cselect_b64 vcc, vcc, 0")
e("s_nop 1")
e(f"v_cndmask_b32 v{V_TWO2}, v{V_T+2}, v{V_T}, vcc")
cm("pool ticket address (lane 0)")
e(f"s_lshl_b32 s{S_T0}, s{S_HEAD}, 7")
e(f"s_add_u32 s{S_T0}, s{S_T0}, {WS_POOL}")
e(f"v_mov_b32 v{V_CLMO}, s{S_T0}")
e(f"v_cmp_eq_u32 vcc, 0, v{V_LANE}")
e(f"v_mov_b32 v{V_CLM}, 1")
e("s_nop 0")
e(f"v_cndmask_b32 v{V_CLMO}, v{V_T+2}, v{V_CLMO}, vcc")
cm("q fragment addresses: g=l>>4,u=l&3 ; qo = g*64+u*16")
e(f"v_lshrrev_b32 v4, 4, v{V_LANE}")
e(f"v_and_b32 v5, 3, v{V_LANE}")
e(f"v_lshlrev_b32 v5, 4, v5")
e(f"v_lshl_add_u32 v5, v4, 6, v5")
e(f"v_add_u32 v5, {LDS_QBF}, v5")
e(f"v_mov_b32 v6, {LDS_ZERO}")
e(f"v_cmp_gt_u32 vcc, 32, v{V_LANE}")
e(f"v_add_u32 v7, 256, v5")
e(f"v_subrev_u32 v4, 128, v5")
e(f"v_cndmask_b32 v7, v6, v7, vcc")
e(f"v_cndmask_b32 v4, v4, v6, vcc")
e(f"v_mov_b32 v{V_MAX}, 0xff800000")
stamp(1, 76, 77)
e("s_barrier")
B0, B1L, B1H, B2 = V_QF, V_QF + 4, V_QF + 8, V_QF + 12
e(f"ds_read_b128 {vr(B0,4)}, v5")
e(f"ds_read_b128 {vr(B1L,4)}, v7")
e(f"ds_read_b128 {vr(B1H,4)}, v4")
e(f"ds_read_b128 {vr(B2,4)}, v5 offset:128")
e("s_waitcnt lgkmcnt(0)")
stamp(2, 76, 77)

def mfma_tile(r0, r1, r2, aX, aY):
    e(f"v_mfma_f32_16x16x32_bf16 {vr(aX,4)}, {vr(r0,4)}, {vr(B0,4)}, 0")
    e(f"v_mfma_f32_16x16x32_bf16 {vr(aY,4)}, {vr(r1,4)}, {vr(B1H,4)}, 0")
    e(f"v_mfma_f32_16x16x32_bf16 {vr(aX,4)}, {vr(r1,4)}, {vr(B1L,4)}, {vr(aX,4)}")
    e(f"v_mfma_f32_16x16x32_bf16 {vr(aY,4)}, {vr(r2,4)}, {vr(B2,4)}, {vr(aY,4)}")
def score_pair(aX, aY, dst, tx, ty):
    e(f"v_mov_b32_dpp v{tx}, v{aX} quad_perm:[0,0,0,0] row_mask:0xf bank_mask:0xf")
    e(f"v_mov_b32_dpp v{ty}, v{aY} quad_perm:[0,0,0,0] row_mask:0xf bank_mask:0xf")
    for r in (1, 2, 3):
        e(f"v_add_f32_dpp v{tx}, v{aX+r}, v{tx} quad_perm:[{r},{r},{r},{r}] row_mask:0xf bank_mask:0xf")
        e(f"v_add_f32_dpp v{ty}, v{aY+r}, v{ty} quad_perm:[{r},{r},{r},{r}] row_mask:0xf bank_mask:0xf")
    e(f"v_cvt_pk_bf16_f32 v{tx}, v{tx}, v{ty}")
    e(f"v_and_b32 v{ty}, s{S_HI}, v{tx}")
    e(f"v_lshlrev_b32 v{tx}, 16, v{tx}")
    e(f"v_mul_f32 v{tx}, s{S_SCALE}, v{tx}")
    e(f"v_mul_f32 v{ty}, s{S_SCALE}, v{ty}")
    e(f"v_cvt_pk_bf16_f32 v{dst}, v{tx}, v{ty}")
    e(f"v_and_b32 v{ty}, s{S_HI}, v{dst}")
    e(f"v_lshlrev_b32 v{tx}, 16, v{dst}")
def post_scores(T):
    aX = V_MACC + 8 * (T & 1)
    score_pair(aX, aX + 4, V_SC + T, t0, t1)
    if BIAS and T >= F - 2:
        lx = newlabel("void")
        e(f"s_cmp_lg_u32 s{S_FBA if T == F - 2 else S_FBB}, {OOB:#x}")
        e(f"s_cbranch_scc1 {lx}a")
        e(f"v_mov_b32 v{V_SC+T}, 0xff80ff80")
        e(f"s_branch {lx}b")
        lab(lx + "a")
        e(f"v_max3_f32 v{V_MAX}, v{V_MAX}, v{t0}, v{t1}")
        lab(lx + "b")
    else:
        e(f"v_max3_f32 v{V_MAX}, v{V_MAX}, v{t0}, v{t1}")
def consume_k(T):
    n0 = 3 * T
    aX = V_MACC + 8 * (T & 1)
    cm(f"K tile {T}")
    mfma_tile(sl('k', n0), sl('k', n0 + 1), sl('k', n0 + 2), aX, aX + 4)
    release("k", range(n0, n0 + 3))
    if T > 0:
        post_scores(T - 1)
    else:
        e("s_nop 7")
    if T == F - 1:
        e("s_nop 1")
        post_scores(F - 1)
        stamp(3, 76, 77)
        cm("wave max")
        allgroups("v_max_f32", V_MAX, t0)
        e(f"v_mul_f32 v{V_ML2}, s{S_L2E}, v{V_MAX}")
        e(f"v_mov_b32 v{V_LS}, 0")
        for i in range(24):
            e(f"v_mov_b32 v{V_ACC+i}, 0")
def pv_tile(r0, r1, r2):
    e(f"v_cndmask_b32 v{pM}, v{pY}, v{pX}, s[{S_MC8}:{S_MC8+1}]")
    e(f"v_add_f32 v{V_LS}, v{V_LS}, v{pX}")
    e(f"v_add_f32 v{V_LS}, v{V_LS}, v{pY}")
    for j, (r, p) in enumerate(((r0, pX), (r1, pM), (r2, pY))):
        fma_tile(r, p, V_ACC + 8 * j, t0, t1)
def consume_v(T):
    n0 = 3 * T
    cm(f"V tile {T}")
    e(f"v_lshlrev_b32 v{pX}, 16, v{V_SC+T}")
    e(f"v_and_b32 v{pY}, s{S_HI}, v{V_SC+T}")
    e(f"v_fma_f32 v{pX}, v{pX}, s{S_L2E}, -v{V_ML2}")
    e(f"v_fma_f32 v{pY}, v{pY}, s{S_L2E}, -v{V_ML2}")
    e(f"v_exp_f32 v{pX}, v{pX}")
    e(f"v_exp_f32 v{pY}, v{pY}")
    e("s_nop 0")
    pv_tile(sl("v", n0), sl("v", n0 + 1), sl("v", n0 + 2))
    release("v", range(n0, n0 + 3))
tile = 0
claimed = False
while tile < 2 * F:
    last = pos_of[("k", 3 * tile + 2) if tile < F else ("v", 3 * (tile - F) + 2)]
    if can_issue():
        paced_issue()
        if st["pos"] == len(main) - 3 and NPOOL:
            cm("first pool ticket")
            vm.issue(f"buffer_atomic_add v{V_CLM}, v{V_CLMO}, {srd(R_WS)}, 0 offen sc0")
            claimed = True
    else:
        wait_main(last)
    if st["landed"] > last:
        if tile < F: consume_k(tile)
        else: consume_v(tile - F)
        tile += 1
assert st["pos"] == len(main)
stamp(10, 76, 77)
tws = sorted(slot_of[("tw", i)] for i in range(8))
assert tws == list(range(NVGPR - 32, NVGPR, 4)), tws
if NPOOL:
    assert claimed
    cm("==== pool tiles: claimed one at a time, online softmax per lane group ====")
    BUF = [[SRING0 + 4 * i for i in range(6)], [SRING0 + 24 + 4 * i for i in range(6)]]
    S_C = 30
    def pool_next(buf, lbl_none):
        e(f"v_readfirstlane_b32 s{S_C}, v{V_CLM}")
        e(f"v_mov_b32 v{V_CLM}, 1")
        e("s_nop 2")
        e(f"s_cmp_ge_u32 s{S_C}, {NPOOL}")
        e(f"s_cbranch_scc1 {lbl_none}")
        e(f"s_mul_i32 s{S_OFF}, s{S_C}, 3072")
        e(f"s_add_u32 s{S_OFF}, s{S_OFF}, {POOL0}")
        e(f"buffer_atomic_add v{V_CLM}, v{V_CLMO}, {srd(R_WS)}, 0 offen sc0")
        for j in range(3):
            e(f"buffer_load_dwordx4 {vr(buf[j],4)}, v{V_KOFF}, {srd(R_K)}, s{S_OFF} offen offset:{256*j}{KNT}")
        for j in range(3):
            e(f"buffer_load_dwordx4 {vr(buf[3+j],4)}, v{V_VOFF}, {srd(R_V)}, s{S_OFF} offen offset:{256*j}{VNT}")
    def pool_front(buf):
        e("s_waitcnt vmcnt(3)")
        mfma_tile(buf[0], buf[1], buf[2], V_MACC, V_MACC + 4)
        e("s_nop 7")
        score_pair(V_MACC, V_MACC + 4, 4, pX, pY)
        e(f"v_max3_f32 v{t0}, v{V_MAX}, v{pX}, v{pY}")
        e(f"v_sub_f32 v{t1}, v{V_MAX}, v{t0}")
        e(f"v_mul_f32 v{t1}, s{S_L2E}, v{t1}")
        e(f"v_exp_f32 v{t1}, v{t1}")
        e(f"v_mov_b32 v{V_MAX}, v{t0}")
        e(f"v_mul_f32 v{V_ML2}, s{S_L2E}, v{t0}")
        e(f"v_fma_f32 v{pX}, v{pX}, s{S_L2E}, -v{V_ML2}")
        e(f"v_fma_f32 v{pY}, v{pY}, s{S_L2E}, -v{V_ML2}")
        e(f"v_exp_f32 v{pX}, v{pX}")
        e(f"v_exp_f32 v{pY}, v{pY}")
        e(f"v_mul_f32 v{V_LS}, v{V_LS}, v{t1}")
        for i in range(24):
            e(f"v_mul_f32 v{V_ACC+i}, v{V_ACC+i}, v{t1}")
        e(f"s_waitcnt vmcnt({OPT['pool_ahead']})")
    e("s_waitcnt vmcnt(0)")
    pool_next(BUF[0], "L_pool_done")
    lab("L_pool_loop")
    pool_front(BUF[0])
    pool_next(BUF[1], "L_pool_lastA")
    if OPT['pool_ahead']: e("s_waitcnt vmcnt(7)")
    pv_tile(*BUF[0][3:])
    pool_front(BUF[1])
    pool_next(BUF[0], "L_pool_lastB")
    if OPT['pool_ahead']: e("s_waitcnt vmcnt(7)")
    pv_tile(*BUF[1][3:])
    e("s_branch L_pool_loop")
    lab("L_pool_lastA")
    e("s_waitcnt vmcnt(0)")
    pv_tile(*BUF[0][3:])
    e("s_branch L_pool_done")
    lab("L_pool_lastB")
    e("s_waitcnt vmcnt(0)")
    pv_tile(*BUF[1][3:])
    lab("L_pool_done")
    cm("bring the 4 lane groups to a common max")
    e(f"v_mov_b32 v{pX}, v{V_MAX}")
    allgroups("v_max_f32", V_MAX, t0)
    e(f"v_sub_f32 v{t1}, v{pX}, v{V_MAX}")
    e(f"v_mul_f32 v{t1}, s{S_L2E}, v{t1}")
    e(f"v_exp_f32 v{t1}, v{t1}")
    e("s_nop 0")
    e(f"v_mul_f32 v{V_LS}, v{V_LS}, v{t1}")
    for i in range(24):
        e(f"v_mul_f32 v{V_ACC+i}, v{V_ACC+i}, v{t1}")
stamp(4, 76, 77)
V_CNT, V_CNTO = 16, 17
cm("slice counter (only the reducers look at it)")
e(f"s_lshl_b32 s{S_T0}, s{S_SPLIT}, 5")
e(f"s_add_u32 s{S_T0}, s{S_T0}, 4")
e(f"v_mov_b32 v{V_CNTO}, s{S_T0}")
e(f"buffer_load_dword v{V_CNT}, v{V_CNTO}, {srd(R_DBG)}, 0 offen sc1")
cm("==== T0: wave reduce ====")
swap_reduce(V_ACC, 24)
red24_to_lds(V_ACC, 4, 5, 6, 7)
allgroups("v_add_f32", V_LS, V_T)
e(f"s_lshl_b32 s{S_T0}, s{S_WAVE}, 3")
e(f"v_mov_b32 v4, s{S_T0}")
e(f"v_mov_b32 v6, v{V_MAX}")
e(f"v_mov_b32 v7, v{V_LS}")
e(f"ds_write_b64 v4, v[6:7] offset:{LDS_STAT}")
e("s_waitcnt lgkmcnt(0)")
e("s_barrier")

cm("==== T1: wave 0 combines the 8 waves and publishes ====")
e(f"s_lshl_b32 s{S_T1}, s{S_HEAD}, 3")
e(f"s_add_u32 s{S_T2}, s{S_T1}, s{S_SPLIT}")
e(f"s_cmp_lg_u32 s{S_WAVE}, 0")
e("s_cbranch_scc1 L_t1done")
e("v_mov_b32 v4, 0")
SB = SRING0
RB = 20
for w in range(4):
    e(f"ds_read_b128 {vr(SB+4*w,4)}, v4 offset:{LDS_STAT+16*w}")
e(f"v_lshlrev_b32 v5, 4, v{V_LANE}")
e(f"v_min_u32 v5, 752, v5")
for w in range(8):
    e(f"ds_read_b128 {vr(RB+8*w,4)}, v5 offset:{LDS_RED+1536*w}")
    e(f"ds_read_b128 {vr(RB+8*w+4,4)}, v5 offset:{LDS_RED+1536*w+768}")
e("s_waitcnt lgkmcnt(15)")
e(f"v_max3_f32 v6, v{SB}, v{SB+2}, v{SB+4}")
e(f"v_max3_f32 v6, v6, v{SB+6}, v{SB+8}")
e(f"v_max3_f32 v6, v6, v{SB+10}, v{SB+12}")
e(f"v_max_f32 v6, v6, v{SB+14}")
e(f"v_mul_f32 v7, s{S_L2E}, v6")
for w in range(8):
    e(f"v_fma_f32 v{SB+2*w}, v{SB+2*w}, s{S_L2E}, -v7")
for w in range(8):
    e(f"v_exp_f32 v{SB+2*w}, v{SB+2*w}")
e("s_nop 0")
e(f"v_mul_f32 v7, v{SB}, v{SB+1}")
for w in range(1, 8):
    e(f"v_fmac_f32 v7, v{SB+2*w}, v{SB+2*w+1}")
e("s_waitcnt lgkmcnt(0)")
for w in range(8):
    for i in range(4):
        e(f"v_add_f32 v{RB+8*w+i}, v{RB+8*w+i}, v{RB+8*w+4+i}")
    for i in range(4):
        if w == 0:
            e(f"v_mul_f32 v{8+i}, v{SB}, v{RB+i}")
        else:
            e(f"v_fmac_f32 v{8+i}, v{SB+2*w}, v{RB+8*w+i}")
cm("lane48: (M,L,0,0) ; lanes>=49: 0")
e(f"v_cmp_lt_u32 vcc, 47, v{V_LANE}")
e("s_nop 1")
for i in range(4):
    e(f"v_cndmask_b32 v{8+i}, v{8+i}, v4, vcc")
e(f"v_cmp_eq_u32 vcc, 48, v{V_LANE}")
e("s_nop 1")
e("v_cndmask_b32 v8, v8, v6, vcc")
e("v_cndmask_b32 v9, v9, v7, vcc")
canon4(8, 12)
e(f"s_lshl_b32 s{S_T0}, s{S_T2}, 10")
e(f"v_lshlrev_b32 v5, 4, v{V_LANE}")
e(f"v_add_u32 v5, s{S_T0}, v5")
e(f"buffer_store_dwordx4 v[8:11], v5, {srd(R_WS)}, 0 offen sc1")
lab("L_t1done")
stamp(5, 4, 5)
cm("all waves: wave j gathers outbox j of this head")
e(f"s_add_u32 s{S_T0}, s{S_T1}, s{S_WAVE}")
e(f"s_lshl_b32 s{S_T0}, s{S_T0}, 10")
e(f"v_lshlrev_b32 v5, 4, v{V_LANE}")
e(f"v_add_u32 v6, s{S_T0}, v5")
cm("(addresses for T3 while waiting)")
e(f"s_lshl_b32 s{S_T0}, s{S_WAVE}, 10")
e(f"v_add_u32 v13, s{S_T0}, v5")
e(f"v_lshrrev_b32 v5, 4, v{V_LANE}")
e(f"s_lshl_b32 s{S_T0}, s{S_WAVE}, 2")
e(f"v_add_u32 v5, s{S_T0}, v5")
e(f"v_and_b32 v14, 15, v{V_LANE}")
e(f"v_min_u32 v14, 5, v14")
e(f"v_lshl_add_u32 v14, v14, 5, v5")
e(f"v_lshlrev_b32 v14, 2, v14")
e("v_lshlrev_b32 v7, 2, v5")
e(f"ds_read_b32 v44, v7 offset:{LDS_H48}")
e(f"ds_read_b32 v45, v7 offset:{LDS_H48+128}")
e("v_mov_b32 v4, 0")
GA = 52
cm("b part of the GEMV slice (h @ w2) does not depend on the gather")
e("s_waitcnt lgkmcnt(0)")
e("v_lshrrev_b32 v74, 16, v44")
e("v_lshrrev_b32 v75, 16, v45")
if OPT["dot2"]:
    dot_tile(sl("tw", 6), 44, 74, GA + 8, True)
    dot_tile(sl("tw", 7), 45, 75, GA + 8, False)
else:
    for i in range(8):
        e(f"v_mov_b32 v{GA+8+i}, 0")
    for k in range(2):
        fma_tile(sl("tw", 6 + k), 44 + k, GA + 8, 74, 75)
poll_quads([8], 6, [0], 7)
stamp(6, 15, 12)
e(f"ds_write_b128 v13, v[8:11] offset:{LDS_GATH}")
e("s_waitcnt lgkmcnt(0)")
e("s_barrier")

cm("==== T3: combine splits, output GEMV slice ====")
for j in range(8):
    e(f"ds_read_b64 v[{20+2*j}:{21+2*j}], v4 offset:{LDS_GATH+1024*j+768}")
for j in range(8):
    e(f"ds_read_b32 v{36+j}, v14 offset:{LDS_GATH+1024*j}")
e("s_waitcnt lgkmcnt(8)")
e("v_max3_f32 v6, v20, v22, v24")
e("v_max3_f32 v6, v6, v26, v28")
e("v_max3_f32 v6, v6, v30, v32")
e("v_max_f32 v6, v6, v34")
e(f"v_mul_f32 v7, s{S_L2E}, v6")
for j in range(8):
    e(f"v_fma_f32 v{20+2*j}, v{20+2*j}, s{S_L2E}, -v7")
for j in range(8):
    e(f"v_exp_f32 v{20+2*j}, v{20+2*j}")
e("s_waitcnt lgkmcnt(0)")
e("v_mul_f32 v7, v20, v21")
e("v_mul_f32 v8, v20, v36")
for j in range(1, 8):
    e(f"v_fmac_f32 v7, v{20+2*j}, v{21+2*j}")
    e(f"v_fmac_f32 v8, v{20+2*j}, v{36+j}")
e("v_rcp_f32 v7, v7")
e("s_nop 0")
e("v_mul_f32 v8, v8, v7")
bf16_round(8)
e("v_lshrrev_b32 v9, 16, v8")
e("s_nop 0")
for k in range(6):
    e(f"v_mov_b32_dpp v{46+k}, v8 row_newbcast:{k} row_mask:0xf bank_mask:0xf")
if OPT["dot2"]:
    for k in range(6):
        e(f"v_mov_b32_dpp v{68+k}, v9 row_newbcast:{k} row_mask:0xf bank_mask:0xf")
    for k in range(6):
        dot_tile(sl("tw", k), 46 + k, 68 + k, GA, k == 0)
    e("s_nop 1")
else:
    for i in range(8):
        e(f"v_mov_b32 v{GA+i}, 0")
    for k in range(6):
        fma_tile(sl("tw", k), 46 + k, GA, 4, 5)
swap_reduce(GA, 16)
cm("RED2[w] + (g>>1)*512 + cc*32 + (g&1)*16")
e(f"v_lshrrev_b32 v5, 5, v{V_LANE}")
e(f"v_mul_u32_u24 v5, 512, v5")
e(f"v_bfe_u32 v6, v{V_LANE}, 4, 1")
e(f"v_lshl_add_u32 v5, v6, 4, v5")
e(f"v_and_b32 v6, 15, v{V_LANE}")
e(f"v_lshl_add_u32 v5, v6, 5, v5")
e(f"s_mul_i32 s{S_T0}, s{S_WAVE}, 1024")
e(f"v_add_u32 v5, s{S_T0}, v5")
e(f"ds_write_b128 v5, v[{GA}:{GA+3}] offset:{LDS_RED2}")
e("s_waitcnt lgkmcnt(0)")
e("s_barrier")

cm("==== T4: wave 0 publishes the slice partial ====")
e(f"s_cmp_lg_u32 s{S_WAVE}, 0")
e("s_cbranch_scc1 L_t4done")
e(f"v_lshlrev_b32 v5, 4, v{V_LANE}")
for w in range(8):
    e(f"ds_read_b128 {vr(RB+4*w,4)}, v5 offset:{LDS_RED2+1024*w}")
e("s_waitcnt lgkmcnt(0)")
for st in (1, 2, 4):
    for w in range(0, 8, 2 * st):
        for i in range(4):
            e(f"v_add_f32 v{RB+4*w+i}, v{RB+4*w+i}, v{RB+4*(w+st)+i}")
canon4(RB, 12)
e(f"s_lshl_b32 s{S_T0}, s{S_SPLIT}, 5")
e(f"s_add_u32 s{S_T0}, s{S_T0}, s{S_HEAD}")
e(f"s_mul_i32 s{S_T0}, s{S_T0}, 1024")
e(f"s_add_u32 s{S_T0}, s{S_T0}, {WS_OUT2}")
e(f"v_add_u32 v5, s{S_T0}, v5")
e(f"v_mov_b32 v6, {OOB:#x}")
e(f"v_cmp_gt_u32 vcc, 64, v{V_LANE}")
e("s_nop 1")
e(f"v_cndmask_b32 v5, v6, v5, vcc")
e(f"buffer_store_dwordx4 {vr(RB,4)}, v5, {srd(R_WS)}, 0 offen sc1")
lab("L_t4done")

stamp(7, 4, 5)
cm("==== T5: reducer WGs (head == 4*split) ====")
e(f"s_lshl_b32 s{S_T0}, s{S_SPLIT}, 2")
e(f"s_cmp_lg_u32 s{S_T0}, s{S_HEAD}")
e("s_cbranch_scc1 " + ("L_fin" if OPT["stamps"] else "L_end"))
e("s_waitcnt vmcnt(0)")
spin_counter(0, 32, V_CNT, V_CNTO)
e(f"s_lshl_b32 s{S_T0}, s{S_SPLIT}, 5")
e(f"s_lshl_b32 s{S_T1}, s{S_WAVE}, 2")
e(f"s_add_u32 s{S_T0}, s{S_T0}, s{S_T1}")
e(f"s_mul_i32 s{S_T0}, s{S_T0}, 1024")
e(f"s_add_u32 s{S_T0}, s{S_T0}, {WS_OUT2}")
e(f"v_lshlrev_b32 v5, 4, v{V_LANE}")
e(f"v_add_u32 v7, s{S_T0}, v5")
e(f"v_mov_b32 v6, {OOB:#x}")
e(f"v_cmp_gt_u32 vcc, 64, v{V_LANE}")
e("s_nop 1")
e(f"v_cndmask_b32 v7, v6, v7, vcc")
poll_quads([20, 24, 28, 32], 7, [0, 1024, 2048, 3072], 8)
stamp(8, 4, 12)
for i in range(4):
    e(f"v_add_f32 v{20+i}, v{20+i}, v{24+i}")
    e(f"v_add_f32 v{28+i}, v{28+i}, v{32+i}")
for i in range(4):
    e(f"v_add_f32 v{20+i}, v{20+i}, v{28+i}")
e(f"s_mul_i32 s{S_T0}, s{S_WAVE}, 1024")
e(f"v_add_u32 v5, s{S_T0}, v5")
e(f"v_cmp_gt_u32 vcc, 64, v{V_LANE}")
e(f"s_and_saveexec_b64 s[{S_EX}:{S_EX+1}], vcc")
e(f"ds_write_b128 v5, v[20:23] offset:{LDS_RED3}")
e(f"s_mov_b64 exec, s[{S_EX}:{S_EX+1}]")
e("s_waitcnt lgkmcnt(0)")
e("s_barrier")
e(f"s_cmp_gt_u32 s{S_WAVE}, 1")
e("s_cbranch_scc1 " + ("L_fin" if OPT["stamps"] else "L_end"))
e(f"v_min_u32 v5, 127, v{V_TID}")
e(f"v_lshlrev_b32 v5, 2, v5")
for w in range(8):
    e(f"ds_read_b32 v{20+w}, v5 offset:{LDS_RED3+1024*w}")
    e(f"ds_read_b32 v{28+w}, v5 offset:{LDS_RED3+1024*w+512}")
e("v_mov_b32 v4, 0")
e(f"ds_read_b32 v36, v4 offset:{LDS_HG+28}")
e("s_waitcnt lgkmcnt(0)")
for base in (20, 28):
    for a, b in ((0, 1), (2, 3), (4, 5), (6, 7), (0, 2), (4, 6), (0, 4)):
        e(f"v_add_f32 v{base+a}, v{base+a}, v{base+b}")
bf16_round(20)
bf16_round(28)
e("v_mul_f32 v20, v36, v20")
bf16_round(20)
e("v_sub_f32 v21, 1.0, v36")
bf16_round(21)
e("v_mul_f32 v21, v21, v28")
bf16_round(21)
e("v_add_f32 v20, v20, v21")
e("v_cvt_pk_bf16_f32 v20, v20, v20")
e(f"s_lshl_b32 s{S_T0}, s{S_NCC}, 3")
e(f"v_lshlrev_b32 v5, 1, v{V_TID}")
e(f"v_add_u32 v5, s{S_COL}, v5")
e(f"v_mov_b32 v6, {OOB:#x}")
e(f"v_cmp_gt_u32 vcc, s{S_T0}, v{V_TID}")
e("s_nop 1")
e(f"v_cndmask_b32 v5, v6, v5, vcc")
e(f"buffer_store_short v20, v5, {srd(R_OUT)}, 0 offen")
e("s_branch " + ("L_fin" if OPT["stamps"] else "L_end"))

L_SAVE = L
cm("================= helper waves (8: H0, 9: H1) =================")
lab("L_helper")
S_H = 31
e(f"s_sub_u32 s{S_H}, s{S_WAVE}, 8")
e(f"v_mov_b32 v63, {OOB:#x}")
e(f"v_lshlrev_b32 v8, 4, v{V_LANE}")
e("v_mov_b32 v57, v63")
for i in range(24):
    e(f"v_mov_b32 v{V_ACC+i}, 0")
cm("H0: clear own boxes to the sentinel (out1, out2 slot, qbox); zero LDS flag and zero block")
e(f"s_cmp_lg_u32 s{S_H}, 0")
e("s_cbranch_scc1 L_noclear")
e("v_mov_b32 v4, -1"); e("v_mov_b32 v5, -1"); e("v_mov_b32 v6, -1"); e("v_mov_b32 v7, -1")
e(f"s_mul_i32 s{S_T1}, s{S_LW}, {QB}")
e(f"s_add_u32 s{S_T1}, s{S_T1}, {WS_QBOX}")
e(f"v_add_u32 v11, s{S_T1}, v8")
e(f"buffer_store_dwordx4 v[4:7], v11, {srd(R_WS)}, 0 offen sc1")
e(f"v_cmp_gt_u32 vcc, 17, v{V_LANE}")
e("s_nop 1")
e(f"v_cndmask_b32 v11, v63, v11, vcc")
e(f"buffer_store_dwordx4 v[4:7], v11, {srd(R_WS)}, 0 offen offset:1024 sc1")
e(f"s_lshl_b32 s{S_T1}, s{S_LW}, 10")
e(f"v_add_u32 v9, s{S_T1}, v8")
e(f"buffer_store_dwordx4 v[4:7], v9, {srd(R_WS)}, 0 offen sc1")
e(f"s_lshl_b32 s{S_T1}, s{S_SPLIT}, 5")
e(f"s_add_u32 s{S_T1}, s{S_T1}, s{S_HEAD}")
e(f"s_mul_i32 s{S_T1}, s{S_T1}, 1024")
e(f"s_add_u32 s{S_T1}, s{S_T1}, {WS_OUT2}")
e(f"v_add_u32 v10, s{S_T1}, v8")
e(f"v_cmp_gt_u32 vcc, 64, v{V_LANE}")
e("s_nop 1")
e(f"v_cndmask_b32 v10, v63, v10, vcc")
e(f"buffer_store_dwordx4 v[4:7], v10, {srd(R_WS)}, 0 offen sc1")
cm("split 0 zeroes the pool ticket counter of the head")
e(f"s_lshl_b32 s{S_T1}, s{S_HEAD}, 7")
e(f"s_add_u32 s{S_T1}, s{S_T1}, {WS_POOL}")
e(f"s_cmp_eq_u32 s{S_SPLIT}, 0")
e(f"s_cselect_b32 s{S_T1}, s{S_T1}, {OOB:#x}")
e(f"v_mov_b32 v12, s{S_T1}")
e(f"v_cmp_eq_u32 vcc, 0, v{V_LANE}")
e("s_nop 1")
e(f"v_cndmask_b32 v12, v63, v12, vcc")
e(f"buffer_store_dword v{V_ACC}, v12, {srd(R_WS)}, 0 offen sc1")
e(f"v_mov_b32 v12, {LDS_ZERO}")
e(f"ds_write_b128 v12, v[{V_ACC}:{V_ACC+3}]")
e(f"v_mov_b32 v12, {LDS_FLAG2}")
e(f"ds_write_b32 v12, v{V_ACC}")
e(f"ds_write_b32 v12, v{V_ACC} offset:4")
lab("L_noclear")
cm("wq rows: row0 = 80*split + 20g + 10h ; pairs T=0..4")
e(f"s_mul_i32 s{S_T0}, s{S_SPLIT}, 80")
e(f"s_mul_i32 s{S_T1}, s{S_H}, 10")
e(f"s_add_u32 s{S_T1}, s{S_T0}, s{S_T1}")
e(f"v_mul_u32_u24 v60, 20, v{Vg}")
e(f"v_add_u32 v60, s{S_T1}, v60")
e(f"v_lshlrev_b32 v61, 1, v60")
e(f"s_mov_b32 s{S_T1}, 12288")
e(f"v_mul_lo_u32 v60, v60, s{S_T1}")
e(f"v_lshl_add_u32 v{V_WQO}, v{Vc}, 4, v60")
e(f"v_add_u32 v{V_WQO+2}, 12416, v{V_WQO}")
e(f"v_add_u32 v62, 256, v{V_WQO}")
e(f"v_add_u32 v60, 12160, v{V_WQO}")
e(f"v_cndmask_b32 v{V_WQO+1}, v60, v62, s[{S_MC8}:{S_MC8+1}]")
hv = VM()
hv.issue(f"buffer_load_dwordx4 {vr(V_XW,4)}, v61, {srd(R_X)}, 0 offen")
hv.issue(f"buffer_load_dword v{V_XW+4}, v61, {srd(R_X)}, 0 offen offset:16")
hid = {}
for T in range(5):
    e(f"s_mov_b32 s{S_OFF}, {T*24576}")
    for j in range(3):
        hid[(T, j)] = hv.issue(f"buffer_load_dwordx4 {vr(RING0+4*(3*T+j),4)}, v{V_WQO+j}, {srd(R_WQ)}, s{S_OFF} offen{WNT}")
e(f"s_cmp_lg_u32 s{S_H}, 0")
e("s_cbranch_scc1 L_h1pre")
cm("H0: clears done -> arrive on the group counter (returning atomic, lane 0)")
e(f"s_lshl_b32 s{S_T1}, s{S_HEAD}, 3")
e(f"v_mov_b32 v10, s{S_T1}")
e(f"v_cmp_eq_u32 vcc, 0, v{V_LANE}")
e("v_mov_b32 v13, 1")
e("s_nop 0")
e(f"v_cndmask_b32 v10, v63, v10, vcc")
e("s_waitcnt lgkmcnt(0)")
e("s_barrier")
e("s_waitcnt vmcnt(17)")
e(f"buffer_atomic_add v13, v10, {srd(R_DBG)}, 0 offen sc0")
e(f"v_mov_b32 v12, {LDS_FLAG2}")
e("v_mov_b32 v14, 1")
e("ds_write_b32 v12, v14")
e("s_branch L_hq")
lab("L_h1pre")
cm("H1: gate/up partial loads: lane (cq=l&7 <6, r8=l>>3), rows 80*split + 10*r8 + k")
MB = RING0 + 60
e(f"v_lshrrev_b32 v9, 3, v{V_LANE}")
e(f"v_mul_u32_u24 v9, 10, v9")
e(f"v_add_u32 v9, s{S_T0}, v9")
e(f"v_lshlrev_b32 v10, 1, v9")
e(f"v_mul_u32_u24 v9, 3072, v9")
e(f"v_and_b32 v11, 7, v{V_LANE}")
e(f"v_lshl_add_u32 v9, v11, 4, v9")
e(f"s_cmp_eq_u32 s{S_FOK}, 1")
e("s_cselect_b64 vcc, -1, 0")
e("s_nop 1")
e(f"v_cndmask_b32 v57, v63, v9, vcc")
e(f"buffer_load_dwordx4 v[12:15], v10, {srd(R_X)}, 0 offen")
e(f"buffer_load_dword v16, v10, {srd(R_X)}, 0 offen offset:16")
NPRE = 5
for k in range(NPRE):
    e(f"s_mov_b32 s{S_OFF}, {k*3072}")
    e(f"buffer_load_dwordx4 {vr(MB+8*k,4)}, v57, {srd(R_W1)}, s{S_OFF} offen{WNT}")
    e(f"buffer_load_dwordx4 {vr(MB+8*k+4,4)}, v57, {srd(R_W3)}, s{S_OFF} offen{WNT}")
e("s_barrier")
lab("L_hq")
hpX, hpY, hpM, ht0, ht1 = 4, 5, 6, 7, 9
for T in range(5):
    k = hv.n - 1 - hid[(T, 2)]
    lx = newlabel("hw")
    e(f"s_cmp_eq_u32 s{S_H}, 1")
    e(f"s_cbranch_scc1 {lx}a")
    e(f"s_waitcnt vmcnt({k+1})")
    e(f"s_branch {lx}b")
    lab(lx + "a")
    e(f"s_waitcnt vmcnt({k+2+2*NPRE})")
    lab(lx + "b")
    e(f"v_lshlrev_b32 v{hpX}, 16, v{V_XW+T}")
    e(f"v_and_b32 v{hpY}, s{S_HI}, v{V_XW+T}")
    e(f"v_cndmask_b32 v{hpM}, v{hpY}, v{hpX}, s[{S_MC8}:{S_MC8+1}]")
    for j, p in enumerate((hpX, hpM, hpY)):
        fma_tile(RING0 + 4 * (3 * T + j), p, V_ACC + 8 * j, ht0, ht1)
stamp(1, 4, 5)
swap_reduce(V_ACC, 24)
red24_to_lds(V_ACC, 4, 5, 6, 7, sreg=S_H)
e("s_waitcnt lgkmcnt(0)")
e(f"s_cmp_eq_u32 s{S_H}, 1")
e("s_cbranch_scc1 L_h1")
cm("---- H0: wait for H1's half, publish the WG partial, gather the 8 partials of the head ----")
e(f"v_mov_b32 v12, {LDS_FLAG}")
e(f"s_mov_b32 s{S_CNT}, {OPT['spin_cap']*8}")
lab("L_h0flag")
e("ds_read_b32 v14, v12")
e("s_waitcnt lgkmcnt(0)")
e("v_readfirstlane_b32 s30, v14")
e(f"s_sub_u32 s{S_CNT}, s{S_CNT}, 1")
e(f"s_cmp_eq_u32 s{S_CNT}, 0")
e("s_cbranch_scc1 L_h0go")
e("s_cmp_eq_u32 s30, 0")
e("s_cbranch_scc1 L_h0flag")
lab("L_h0go")
e(f"v_min_u32 v5, 752, v8")
e(f"ds_read_b128 v[20:23], v5 offset:{LDS_RED}")
e(f"ds_read_b128 v[24:27], v5 offset:{LDS_RED+768}")
e(f"ds_read_b128 v[28:31], v5 offset:{LDS_RED+1536}")
e(f"ds_read_b128 v[32:35], v5 offset:{LDS_RED+1536+768}")
e(f"s_mul_i32 s{S_T0}, s{S_LW}, {QB}")
e(f"s_add_u32 s{S_T0}, s{S_T0}, {WS_QBOX}")
e(f"v_add_u32 v9, s{S_T0}, v8")
e(f"v_cmp_gt_u32 s[{S_MSK}:{S_MSK+1}], 48, v{V_LANE}")
e("s_nop 1")
e(f"v_cndmask_b32 v9, v63, v9, s[{S_MSK}:{S_MSK+1}]")
e("s_waitcnt lgkmcnt(0)")
for i in range(4):
    e(f"v_add_f32 v{20+i}, v{20+i}, v{24+i}")
    e(f"v_add_f32 v{28+i}, v{28+i}, v{32+i}")
for i in range(4):
    e(f"v_add_f32 v{20+i}, v{20+i}, v{28+i}")
canon4(20, 12)
e(f"buffer_store_dwordx4 v[20:23], v9, {srd(R_WS)}, 0 offen sc1")
cm("---- H0: last arriver tells the 8 WGs of the head that every box is cleared ----")
e("s_waitcnt vmcnt(1)")
e("v_readfirstlane_b32 s30, v13")
e(f"s_mul_i32 s{S_T0}, s{S_HEAD}, {8*QB}")
e(f"s_add_u32 s{S_T0}, s{S_T0}, {WS_QBOX+1280}")
e("s_and_b32 s30, s30, 7")
e("s_cmp_lg_u32 s30, 7")
e("s_cbranch_scc1 L_h0nogo")
e(f"v_mul_u32_u24 v9, {QB}, v{V_LANE}")
e(f"v_add_u32 v9, s{S_T0}, v9")
e(f"v_cmp_gt_u32 vcc, 8, v{V_LANE}")
e("v_mov_b32 v12, 0")
e("s_nop 0")
e(f"v_cndmask_b32 v9, v63, v9, vcc")
e(f"buffer_store_dword v12, v9, {srd(R_WS)}, 0 offen sc1")
lab("L_h0nogo")
e(f"s_mul_i32 s{S_T0}, s{S_LW}, {QB}")
e(f"s_add_u32 s{S_T0}, s{S_T0}, {WS_QBOX+1280}")
e(f"v_mov_b32 v10, s{S_T0}")
e(f"buffer_load_dword v13, v10, {srd(R_WS)}, 0 offen sc1")
stamp(2, 4, 5)
e("s_waitcnt vmcnt(0)")
e(f"s_mov_b32 s{S_CNT}, {OPT['spin_cap']}")
lab("L_h0gospin")
e("v_readfirstlane_b32 s30, v13")
e(f"s_sub_u32 s{S_CNT}, s{S_CNT}, 1")
e(f"s_cmp_eq_u32 s{S_CNT}, 0")
e("s_cbranch_scc1 L_h0godone")
e("s_cmp_lg_u32 s30, -1")
e("s_cbranch_scc1 L_h0godone")
e(f"s_sleep {OPT['sleep']}")
e(f"buffer_load_dword v13, v10, {srd(R_WS)}, 0 offen sc1")
e("s_waitcnt vmcnt(0)")
e("s_branch L_h0gospin")
lab("L_h0godone")
stamp(3, 4, 5)
e(f"s_mul_i32 s{S_T0}, s{S_HEAD}, {8*QB}")
e(f"s_add_u32 s{S_T0}, s{S_T0}, {WS_QBOX}")
e(f"v_add_u32 v9, s{S_T0}, v8")
e(f"v_cndmask_b32 v9, v63, v9, s[{S_MSK}:{S_MSK+1}]")
poll_quads([RING0 + 4 * j for j in range(8)], 9, [QB * j for j in range(8)], 7)
for stp in (1, 2, 4):
    for j in range(0, 8, 2 * stp):
        for i in range(4):
            e(f"v_add_f32 v{RING0+4*j+i}, v{RING0+4*j+i}, v{RING0+4*(j+stp)+i}")
e(f"v_cvt_pk_bf16_f32 v20, v{RING0}, v{RING0+1}")
e(f"v_cvt_pk_bf16_f32 v21, v{RING0+2}, v{RING0+3}")
e(f"v_lshlrev_b32 v5, 3, v{V_LANE}")
e(f"s_and_saveexec_b64 s[{S_EX}:{S_EX+1}], s[{S_MSK}:{S_MSK+1}]")
e(f"ds_write_b64 v5, v[20:21] offset:{LDS_QBF}")
e(f"s_mov_b64 exec, s[{S_EX}:{S_EX+1}]")
e("s_waitcnt lgkmcnt(0)")
stamp(4, 4, 5)
e("s_barrier")
e("s_branch " + ("L_fin" if OPT["stamps"] else "L_end"))

lab("L_h1")
e(f"v_mov_b32 v9, {LDS_FLAG}")
e("v_mov_b32 v10, 1")
e("ds_write_b32 v9, v10")
cm("---- H1: gate/up partial over this WG's 80 rows ----")
for k in range(NPRE, 10):
    e(f"s_mov_b32 s{S_OFF}, {k*3072}")
    r = RING0 + 8 * (k - NPRE)
    e(f"buffer_load_dwordx4 {vr(r,4)}, v57, {srd(R_W1)}, s{S_OFF} offen{WNT}")
    e(f"buffer_load_dwordx4 {vr(r+4,4)}, v57, {srd(R_W3)}, s{S_OFF} offen{WNT}")
MA = V_ACC
for i in range(16):
    e(f"v_mov_b32 v{MA+i}, 0")
for k in range(10):
    e(f"s_waitcnt vmcnt({18-2*k})")
    if k % 2 == 0:
        e(f"v_lshlrev_b32 v5, 16, v{12+k//2}")
    else:
        e(f"v_and_b32 v5, s{S_HI}, v{12+k//2}")
    r = MB + 8 * k if k < NPRE else RING0 + 8 * (k - NPRE)
    fma_tile(r, 5, MA, 6, 7)
    fma_tile(r + 4, 5, MA + 8, 6, 7)
swap_reduce(MA, 16)
e("s_nop 1")
for i in range(4):
    e(f"v_add_f32_dpp v{MA+i}, v{MA+i}, v{MA+i} row_ror:8 row_mask:0xf bank_mask:0xf")
canon4(MA, 12)
cm("store at qbox + 768 + (g>>1)*256 + cq*32 + (g&1)*16 for (l&15)<8")
e(f"v_lshrrev_b32 v5, 5, v{V_LANE}")
e(f"v_mul_u32_u24 v5, 256, v5")
e(f"v_bfe_u32 v6, v{V_LANE}, 4, 1")
e(f"v_lshl_add_u32 v5, v6, 4, v5")
e(f"v_and_b32 v6, 15, v{V_LANE}")
e(f"v_lshl_add_u32 v5, v6, 5, v5")
e(f"s_mul_i32 s{S_T0}, s{S_LW}, {QB}")
e(f"s_add_u32 s{S_T0}, s{S_T0}, {WS_QBOX+768}")
e(f"v_add_u32 v5, s{S_T0}, v5")
e(f"v_cmp_gt_u32 vcc, 8, v6")
e("s_nop 1")
e(f"v_cndmask_b32 v5, v63, v5, vcc")
cm("H0's clear of this box must have completed")
e(f"v_mov_b32 v6, {LDS_FLAG2}")
e(f"s_mov_b32 s{S_CNT}, {OPT['spin_cap']*8}")
lab("L_h1flag")
e("ds_read_b32 v7, v6")
e("s_waitcnt lgkmcnt(0)")
e("v_readfirstlane_b32 s30, v7")
e(f"s_sub_u32 s{S_CNT}, s{S_CNT}, 1")
e(f"s_cmp_eq_u32 s{S_CNT}, 0")
e("s_cbranch_scc1 L_h1st")
e("s_cmp_eq_u32 s30, 0")
e("s_cbranch_scc1 L_h1flag")
lab("L_h1st")
e(f"buffer_store_dwordx4 v[{MA}:{MA+3}], v5, {srd(R_WS)}, 0 offen sc1")
cm("gate logit operands: lane l owns elements 10l..10l+9")
e(f"v_mul_u32_u24 v4, 20, v{V_LANE}")
e(f"buffer_load_dwordx4 v[44:47], v4, {srd(R_X)}, 0 offen")
e(f"buffer_load_dword v48, v4, {srd(R_X)}, 0 offen offset:16")
e(f"buffer_load_dwordx4 v[52:55], v4, {srd(R_GW)}, 0 offen")
e(f"buffer_load_dword v56, v4, {srd(R_GW)}, 0 offen offset:16")
stamp(2, 4, 5)
e("s_waitcnt lgkmcnt(0)")
e("s_barrier")
cm("slice counter: this WG's out2 slot is cleared (H0 drained the clears before barrier #1)")
e(f"s_lshl_b32 s{S_T0}, s{S_SPLIT}, 5")
e(f"s_add_u32 s{S_T0}, s{S_T0}, 4")
e(f"v_mov_b32 v10, s{S_T0}")
e(f"v_cmp_eq_u32 vcc, 0, v{V_LANE}")
e("v_mov_b32 v12, 1")
e("s_nop 0")
e(f"v_cndmask_b32 v10, v63, v10, vcc")
e(f"buffer_atomic_add v12, v10, {srd(R_DBG)}, 0 offen")
cm("gather the 8 gate/up partials: lanes 0..11 gate quads, lanes 16..27 up quads")
e(f"v_and_b32 v5, 15, v{V_LANE}")
e(f"v_lshlrev_b32 v6, 4, v5")
e(f"v_lshrrev_b32 v7, 4, v{V_LANE}")
e(f"v_mul_u32_u24 v9, 256, v7")
e(f"v_add_u32 v6, v6, v9")
e(f"s_mul_i32 s{S_T0}, s{S_HEAD}, {8*QB}")
e(f"s_add_u32 s{S_T0}, s{S_T0}, {WS_QBOX+768}")
e(f"v_add_u32 v6, s{S_T0}, v6")
e(f"v_cmp_gt_u32 vcc, 32, v{V_LANE}")
e("s_nop 1")
e(f"v_cndmask_b32 v6, v63, v6, vcc")
poll_quads([RING0 + 4 * j for j in range(8)], 6, [QB * j for j in range(8)], 7)
for stp in (1, 2, 4):
    for j in range(0, 8, 2 * stp):
        for i in range(4):
            e(f"v_add_f32 v{RING0+4*j+i}, v{RING0+4*j+i}, v{RING0+4*(j+stp)+i}")
G0 = RING0; U0 = RING0 + 4
for i in range(4):
    bf16_round(G0 + i)
for i in range(4):
    e(f"v_mov_b32 v{U0+i}, v{G0+i}")
e("s_nop 1")
for i in range(4):
    e(f"v_permlane16_swap_b32 v{G0+i}, v{U0+i}")
for i in range(4):
    e(f"v_mul_f32 v{20+i}, s{S_L2E}, v{G0+i}")
    e(f"v_sub_f32 v{20+i}, 0, v{20+i}")
    e(f"v_exp_f32 v{20+i}, v{20+i}")
    e("s_nop 0")
    e(f"v_add_f32 v{20+i}, 1.0, v{20+i}")
    e(f"v_rcp_f32 v{20+i}, v{20+i}")
    e("s_nop 0")
    e(f"v_mul_f32 v{20+i}, v{G0+i}, v{20+i}")
    bf16_round(20 + i)
    e(f"v_mul_f32 v{20+i}, v{20+i}, v{U0+i}")
    bf16_round(20 + i)
e(f"v_cmp_gt_u32 vcc, 16, v{V_LANE}")
e(f"s_and_saveexec_b64 s[{S_EX}:{S_EX+1}], vcc")
e(f"ds_write_b128 v8, v[20:23] offset:{LDS_H48}")
e(f"s_mov_b64 exec, s[{S_EX}:{S_EX+1}]")
cm("gate logit")
e("v_mov_b32 v20, 0")
for k in range(10):
    if k % 2 == 0:
        e(f"v_lshlrev_b32 v5, 16, v{44+k//2}")
        e(f"v_lshlrev_b32 v6, 16, v{52+k//2}")
    else:
        e(f"v_and_b32 v5, s{S_HI}, v{44+k//2}")
        e(f"v_and_b32 v6, s{S_HI}, v{52+k//2}")
    e("v_mul_f32 v6, v5, v6")
    bf16_round(6)
    e("v_add_f32 v20, v20, v6")
allgroups("v_add_f32", 20, 21)
for sh in (8, 4, 2, 1):
    e("s_nop 1")
    e(f"v_add_f32_dpp v20, v20, v20 row_ror:{sh} row_mask:0xf bank_mask:0xf")
bf16_round(20)
e(f"v_mul_f32 v22, s{S_L2E}, v20")
e("v_sub_f32 v22, 0, v22")
e("v_exp_f32 v22, v22")
e("s_nop 0")
e("v_add_f32 v22, 1.0, v22")
e("v_rcp_f32 v22, v22")
e("s_nop 0")
bf16_round(22)
e(f"v_mov_b32 v4, {LDS_HG+28}")
e("ds_write_b32 v4, v22")
e("s_waitcnt lgkmcnt(0)")
stamp(3, 4, 5)
e("s_barrier")
e("s_branch " + ("L_fin" if OPT["stamps"] else "L_end"))

if OPT["stamps"]:
    lab("L_fin")
    stamp(9, 4, 5)
    e("s_getreg_b32 s12, hwreg(HW_REG_XCC_ID)")
    e("v_mov_b32 v4, s12")
    e(f"ds_write_b32 v5, v4 offset:{LDS_STAMP+4*15}")
    e("s_waitcnt lgkmcnt(0)")
    e(f"v_and_b32 v4, 15, v{V_LANE}")
    e("v_lshlrev_b32 v4, 2, v4")
    e("v_add_u32 v5, s13, v4")
    e(f"ds_read_b32 v6, v5 offset:{LDS_STAMP}")
    e("s_lshl_b32 s12, s2, 10")
    e("s_add_u32 s12, s12, 0x100000")
    e("v_add_u32 v5, s12, v5")
    e("s_waitcnt lgkmcnt(0)")
    e(f"buffer_store_dword v6, v5, {srd(R_WS)}, 0 offen")
lab("L_end")
e("s_endpgm")
L.append('.section .rodata,"a"')
L.append(".p2align 6")
L.append(f".amdhsa_kernel {NAME}_kernel")
L.append(f"  .amdhsa_next_free_vgpr {NVGPR}")
L.append("  .amdhsa_next_free_sgpr 102")
L.append(f"  .amdhsa_accum_offset {NVGPR}")
L.append("  .amdhsa_group_segment_fixed_size 0")
L.append("  .amdhsa_kernarg_size 104")
L.append("  .amdhsa_user_sgpr_count 2")
L.append("  .amdhsa_user_sgpr_kernarg_segment_ptr 1")
L.append("  .amdhsa_system_sgpr_workgroup_id_x 1")
L.append("  .amdhsa_float_denorm_mode_32 3")
L.append(".end_amdhsa_kernel")
out = sys.argv[1] if len(sys.argv) > 1 else f"cdna_kernels/{NAME}.s"
open(out, "w").write("\n".join(L) + "\n")
print("wrote", out, len(L), "lines")
```
